```python
import torch

def _softmax(x, axis=-1):
    return torch.softmax(x, dim=axis)
def _gelu(x):
    return torch.nn.functional.gelu(x, approximate="tanh")
def _silu(x):
    return torch.nn.functional.silu(x)
def _sigmoid(x):
    return torch.sigmoid(x)
def _layernorm(x, axis=-1, eps=1e-5):
    m = x.mean(dim=axis, keepdim=True)
    v = x.var(dim=axis, keepdim=True, unbiased=False)
    return (x - m) / torch.sqrt(v + eps)
def _scatter_add(tgt, idx, src, axis=0):
    return tgt.clone().index_add_(axis, idx, src)
def _segment_sum(src, seg, n):
    out = torch.zeros((n,) + src.shape[1:], dtype=src.dtype)
    return out.index_add_(0, seg, src)
def _pad(x, pw):
    flat = tuple(v for pair in reversed(pw) for v in pair)
    return torch.nn.functional.pad(x, flat)

kernel_name = 'parallel_sum__compressed_kv_cla__dense_activation_squared_relu__decode'

def setup_inputs():

    _w = (lambda a: (lambda t: t.to(torch.bfloat16) if t.is_floating_point() else t)(torch.as_tensor(a)))
    def _A_setup():
        B, H, Sq, Sk, D, M = 2, 32, 1, 4096, 128, 576
        Dc = 4 * D
        return {
            "x": _w((lambda *s: torch.randn(*s, dtype=torch.bfloat16) * 0.05)(B, Sq, M)),
            "c_kv": _w((lambda *s: torch.randn(*s, dtype=torch.bfloat16) * 3.2)(B, Sk, Dc)),
            "w_q": _w((lambda *s: torch.randn(*s, dtype=torch.bfloat16) * 1.6)(M, H, D) * (M ** -0.5)),
            "w_uk": _w((lambda *s: torch.randn(*s, dtype=torch.bfloat16) * 1.6)(Dc, H, D) * (Dc ** -0.5)),
            "w_uv": _w((lambda *s: torch.randn(*s, dtype=torch.bfloat16) * 3.2)(Dc, H, D) * (Dc ** -0.5)),
            "w_o": _w((lambda *s: torch.randn(*s, dtype=torch.bfloat16) * 3.2)(H, D, M) * ((H * D) ** -0.5)),
        }
    _A_in = _A_setup()

    def _B_setup():
        B, S, D, F = 2, 1, 576, 4608
        return {
            "x": _w((lambda *s: torch.randn(*s, dtype=torch.bfloat16) * 0.05)(B, S, D)),
            "w1": _w((lambda *s: torch.randn(*s, dtype=torch.bfloat16) * 0.1)(D, F)),
            "b1": _w((lambda *s: torch.randn(*s, dtype=torch.bfloat16) * 0.4)(F)),
            "w2": _w((lambda *s: torch.randn(*s, dtype=torch.bfloat16) * 0.1)(F, D)),
            "b2": _w((lambda *s: torch.randn(*s, dtype=torch.bfloat16) * 12.8)(D)),
        }
    _B_in = _B_setup()

    return {
        "A_x": _A_in["x"],
        "A_c_kv": _A_in["c_kv"],
        "A_w_q": _A_in["w_q"],
        "A_w_uk": _A_in["w_uk"],
        "A_w_uv": _A_in["w_uv"],
        "A_w_o": _A_in["w_o"],
        "B_x": _B_in["x"],
        "B_w1": _B_in["w1"],
        "B_b1": _B_in["b1"],
        "B_w2": _B_in["w2"],
        "B_b2": _B_in["b2"],
    }

def reference(A_x, A_c_kv, A_w_q, A_w_uk, A_w_uv, A_w_o, B_x, B_w1, B_b1, B_w2, B_b2):
    def _A_ref(x, c_kv, w_q, w_uk, w_uv, w_o):
        B, Sq, M = x.shape[0], x.shape[1], x.shape[2]
        Sk = c_kv.shape[1]
        H, D = w_q.shape[1], w_q.shape[2]
        q = torch.einsum("bqm,mhd->bhqd", x, w_q)
        k = torch.einsum("bkc,chd->bhkd", c_kv, w_uk)
        v = torch.einsum("bkc,chd->bhkd", c_kv, w_uv)
        scores = torch.einsum("bhqd,bhkd->bhqk", q, k) * (D ** -0.5)
        off = Sk - Sq
        qi = torch.arange(Sq)[:, None]
        kj = torch.arange(Sk)[None, :]
        cmask = kj <= (qi + off)
        scores = torch.where(cmask[None, None], scores, -1e9)
        p = _softmax(scores, axis=-1)
        ctx = torch.einsum("bhqk,bhkd->bhqd", p, v)
        return torch.einsum("bhqd,hdm->bqm", ctx, w_o)

    def _B_ref(x, w1, b1, w2, b2):
        h = torch.einsum("bsd,df->bsf", x, w1) + b1
        zero = torch.zeros_like(h)
        r = torch.where(h > zero, h, zero)
        h = r * r
        out = torch.einsum("bsf,fd->bsd", h, w2) + b2
        return out

    x = A_x
    xn = _layernorm(x, axis=-1)
    return x + _A_ref(xn, A_c_kv, A_w_q, A_w_uk, A_w_uv, A_w_o) + _B_ref(xn, B_w1, B_b1, B_w2, B_b2)
```

```python
import sys, math

NAME = 'parallel_sum__compressed_kv_cla__dense_activation_squared_relu__decode'

WS_H1 = 0x10000
WS_H2 = 0x30000
WS_H3P = 0x40000
WS_HF = 0x60000
WS_ML = 0x90000
WS_H4 = 0x100000
WS_H3 = 0x300000
WS_ST = 0x600000
WS_SIZE = 0x800000

LX_WQ = 0
LX_WUK = 41472
LX_WUV = LX_WUK + 33280
LX_WO = LX_WUV + 36864
LX_XN = LX_WO + 39168
LX_QP = LX_XN + 1024
LX_CC = LX_QP + 2048
LX_FIN = LX_CC + 1280
LX_END = LX_FIN + 1024
LY_CKV = 0
LY_Q = 135168
LY_P = LY_Q + 16896
LY_MX = LY_P + 4096
LY_LX = LY_MX + 256
LY_XN = LY_LX + 256
LY_END = LY_XN + 1024
LY_W1 = 0
LY_WOA = 55296
LY_WOB = 0
LDS_BYTES = max(LX_END, LY_END)

SCALE = (128 ** -0.5) * math.log2(math.e)
import struct
def f2u(x):
    return struct.unpack('<I', struct.pack('<f', x))[0]


class G:
    def __init__(self, stamps=False, nt='nt', opts=None):
        self.L = []
        self.stamps = stamps
        self.nt = nt
        self.o = opts or {}
        self.nlab = 0

    def __call__(self, s):
        for line in s.strip('\n').split('\n'):
            line = line.strip()
            if not line:
                continue
            if line.endswith(':'):
                self.L.append(line)
            else:
                self.L.append('    ' + line)

    def lab(self, p):
        self.nlab += 1
        return f'L_{p}_{self.nlab}'

    def stamp(self, k):
        if self.stamps:
            self(f's_memrealtime s[{60+2*k}:{61+2*k}]')

    def text(self):
        return '\n'.join(self.L) + '\n'


S_WAVE = 's3'
S_CU = 's4'
S_H = 's5'
S_J = 's6'
S_T0 = 's7'
SRD_A = 's[8:11]'
SRD_WS = 's[12:15]'
SRD_X = 's[16:19]'
SRD_B = 's[20:23]'
SRD_C = 's[24:27]'
SRD_O = 's[28:31]'
SRD_B2 = 's[32:35]'
SRD_OUT = 's[36:39]'
S_TAG = 's40'
S_EP = 's41'
S_SPIN = 's42'
S_MASK = 's43'
S_OFF = 's44'
S_T1 = 's45'
S_T2 = 's46'
S_T3 = 's47'
S_EXC = 's[48:49]'
S_B = 's50'
S_SPLIT = 's51'
S_HG = 's52'
S_Y = 's53'
S_PC = 's[54:55]'
S_M = 's[56:57]'
S_T4 = 's58'
S_T5 = 's59'


def srd(g, name, karg_off, nbytes):
    n = int(name[2:name.index(':')])
    g(f's_load_dwordx2 s[{n}:{n+1}], s[0:1], {karg_off}')
    return [f's_mov_b32 s{n+2}, {nbytes}', f's_mov_b32 s{n+3}, 0x20000']


def spin_check(g):
    g(f's_sub_u32 {S_SPIN}, {S_SPIN}, 1')
    g('s_cbranch_scc1 L_END')


def tagged_check(g, regs, acc):
    for r in regs:
        g(f'v_xor_b32 v{r}, {S_TAG}, v{r}')
    rs = list(regs)
    g(f'v_or3_b32 v{acc}, v{rs[0]}, v{rs[1]}, v{rs[2]}')
    rs = rs[3:]
    while len(rs) >= 2:
        g(f'v_or3_b32 v{acc}, v{acc}, v{rs[0]}, v{rs[1]}')
        rs = rs[2:]
    if rs:
        g(f'v_or_b32 v{acc}, v{acc}, v{rs[0]}')
    g(f'v_and_b32 v{acc}, 0xfff, v{acc}')
    g(f'v_cmp_ne_u32 vcc, 0, v{acc}')


def layernorm_loads(g, slice_off_sgpr):
    g(f'''
    v_lshrrev_b32 v8, 5, v0
    v_mul_u32_u24 v8, 1152, v8
    v_and_b32 v9, 31, v0
    v_lshl_add_u32 v8, v9, 4, v8
    v_cmp_gt_u32 vcc, 8, v9
    v_mov_b32 v9, 0x7fff0000
    s_nop 0
    v_cndmask_b32 v9, v9, v8, vcc
    buffer_load_dwordx4 v[10:13], v8, {SRD_X}, 0 offen
    buffer_load_dwordx4 v[14:17], v8, {SRD_X}, 0 offen offset:512
    buffer_load_dwordx4 v[18:21], v9, {SRD_X}, 0 offen offset:1024
    buffer_load_dwordx4 v[22:25], v8, {SRD_X}, {slice_off_sgpr} offen
    ''')


def layernorm_compute(g, lds_xn):
    g(f's_mov_b32 {S_T1}, 0x3f803f80')
    g('v_mov_b32 v26, 0')
    g('v_mov_b32 v27, 0')
    for r in range(10, 22):
        g(f'v_dot2c_f32_bf16 v26, {S_T1}, v{r}')
        g(f'v_dot2c_f32_bf16 v27, v{r}, v{r}')
    g('s_nop 2')
    for k in (1, 2, 4, 8):
        g(f'v_add_f32_dpp v26, v26, v26 row_ror:{k} row_mask:0xf bank_mask:0xf')
        g(f'v_add_f32_dpp v27, v27, v27 row_ror:{k} row_mask:0xf bank_mask:0xf')
        g('s_nop 0')
    g(f'''
    v_mov_b32 v28, v26
    v_mov_b32 v29, v27
    s_nop 0
    v_permlane16_swap_b32 v26, v28
    v_permlane16_swap_b32 v27, v29
    v_add_f32 v26, v26, v28
    v_add_f32 v27, v27, v29
    v_mul_f32 v26, 0x{f2u(1.0/576):08x}, v26
    v_mul_f32 v27, 0x{f2u(1.0/576):08x}, v27
    v_fma_f32 v27, -v26, v26, v27
    v_max_f32 v27, 0, v27
    v_cvt_pk_bf16_f32 v26, v26, v27
    v_and_b32 v27, 0xffff0000, v26
    v_lshlrev_b32 v26, 16, v26
    v_add_f32 v27, 0x{f2u(1e-5):08x}, v27
    v_cvt_pk_bf16_f32 v27, v27, v27
    v_and_b32 v27, 0xffff0000, v27
    v_sqrt_f32 v27, v27
    s_nop 0
    v_cvt_pk_bf16_f32 v27, v27, v27
    v_and_b32 v27, 0xffff0000, v27
    v_rcp_f32 v27, v27
    ''')
    for r in range(22, 26):
        g(f'''
        v_lshlrev_b32 v28, 16, v{r}
        v_and_b32 v29, 0xffff0000, v{r}
        v_sub_f32 v28, v28, v26
        v_sub_f32 v29, v29, v26
        v_cvt_pk_bf16_f32 v29, v28, v29
        v_lshlrev_b32 v28, 16, v29
        v_and_b32 v29, 0xffff0000, v29
        v_mul_f32 v28, v28, v27
        v_mul_f32 v29, v29, v27
        v_cvt_pk_bf16_f32 v{r}, v28, v29
        ''')
    g(f'v_add_u32 v8, {lds_xn}, v1')
    g('ds_write_b128 v8, v[22:25]')


def alpha_addr(g, dst, base):
    g(f'''
    v_lshrrev_b32 v8, 2, v3
    v_bfe_u32 v9, v0, 1, 1
    v_lshl_add_u32 v9, {S_WAVE}, 1, v9
    v_lshlrev_b32 v{dst}, 1, v8
    v_xor_b32 v9, v9, v{dst}
    v_lshlrev_b32 v9, 4, v9
    v_lshl_add_u32 v9, v8, 8, v9
    v_and_b32 v8, 1, v0
    v_lshl_add_u32 v9, v8, 3, v9
    v_mul_u32_u24 v8, 1152, v2
    v_add3_u32 v{dst}, v8, v9, {base if isinstance(base, str) else 0}
    ''')
    if not isinstance(base, str) and base:
        g(f'v_add_u32 v{dst}, {base}, v{dst}')


def omega_addr(g, dst, base_sgpr):
    g(f'''
    v_lshrrev_b32 v8, 2, v3
    v_lshlrev_b32 v9, 7, v8
    v_lshrrev_b32 v8, 1, v8
    v_lshl_add_u32 v9, v8, 5, v9
    v_and_b32 v8, 3, v0
    v_lshl_add_u32 v9, v8, 3, v9
    v_mul_u32_u24 v8, 1088, v2
    v_add3_u32 v{dst}, v8, v9, {base_sgpr}
    v_xor_b32 v9, 32, v9
    v_add3_u32 v{dst+1}, v8, v9, {base_sgpr}
    ''')


def omega_reads(g, addr, dst):
    for t in range(4):
        a = addr + (t & 1)
        off = (t >> 1) * 64
        g(f'ds_read_b64_tr_b16 v[{dst+4*t}:{dst+4*t+1}], v{a} offset:{off}')
        g(f'ds_read_b64_tr_b16 v[{dst+4*t+2}:{dst+4*t+3}], v{a} offset:{off+512}')


def omega_dma(g, vaddr, m0_sgpr, soff_sgpr):
    g(f's_mov_b32 m0, {m0_sgpr}')
    g(f's_mov_b32 {S_OFF}, {soff_sgpr}')
    for u in range(4):
        g(f'buffer_load_dwordx4 v{vaddr}, {SRD_O}, {S_OFF} offen {g.nt} lds')
        if u < 3:
            g('s_addk_i32 m0, 1088')
            g(f's_addk_i32 {S_OFF}, 9216')


def gather_sum4(g, d):
    for r in range(8):
        g(f'v_add_f32_dpp v{d+r}, v{d+r}, v{d+r} quad_perm:[2,3,0,1] row_mask:0xf bank_mask:0xf')
    for r in range(8):
        g(f'v_add_f32_dpp v{d+r}, v{d+r}, v{d+r} row_ror:4 row_mask:0xf bank_mask:0xf')


def omega_finish(g, acc, vtag, vaddr, soff):
    g(f'''
    s_mov_b32 s56, 0xcccccccc
    s_mov_b32 s57, 0xcccccccc
    s_mov_b32 vcc_lo, 0xf0f0f0f0
    s_mov_b32 vcc_hi, 0xf0f0f0f0
    s_nop 3
    ''')
    for r in range(4):
        g(f'v_cndmask_b32 v{acc+r}, v{acc+r}, v{acc+4+r}, s[56:57]')
    for r in range(4):
        g(f'v_cndmask_b32 v{acc+8+r}, v{acc+8+r}, v{acc+12+r}, s[56:57]')
    for r in range(4):
        g(f'v_cndmask_b32 v{acc+r}, v{acc+r}, v{acc+8+r}, vcc')
    for r in range(4):
        g(f'v_bfi_b32 v{acc+r}, {S_MASK}, v{acc+r}, v{vtag}')
    g(f'''
    s_mov_b32 exec_lo, 0x00ff00ff
    s_mov_b32 exec_hi, 0x00ff00ff
    buffer_store_dwordx4 v[{acc}:{acc+3}], v{vaddr}, {SRD_WS}, {soff} offen sc1
    s_mov_b64 exec, -1
    ''')


def h4_addr(g, dst):
    g(f'''
    v_and_b32 v8, 1, v0
    v_bfe_u32 v9, v0, 1, 2
    v_lshlrev_b32 v8, 8, v8
    v_lshl_add_u32 v8, v9, 6, v8
    v_lshl_add_u32 v{dst}, v2, 4, v8
    ''')


def gather_addr(g, dst):
    g(f'''
    v_and_b32 v8, 1, v0
    v_bfe_u32 v9, v0, 1, 2
    v_lshlrev_b32 v8, 7, v8
    v_lshl_add_u32 v8, v9, 8, v8
    v_lshl_add_u32 v{dst}, v2, 5, v8
    ''')


def code_prefetch(g, label):
    g(f'''
    s_getpc_b64 {S_PC}
    v_lshlrev_b32 v8, 7, v0
    global_load_dword v30, v8, {S_PC}
    ''')


def gen(stamps=False, nt='nt', opts=None):
    g = G(stamps, nt, opts)
    o = g.o
    hdr = open('cdna_kernels/' + NAME + '.s.ref').read().split('\n')
    for line in hdr:
        if line.startswith('; @launch'):
            break
        g.L.append(line)
    g.L.append(f'; @launch grid=(256,1,1) block=(576,1,1) lds={LDS_BYTES}')
    g.L.append('.amdgcn_target "amdgcn-amd-amdhsa--gfx950"')
    g.L.append('.text')
    g.L.append(f'.globl {NAME}_kernel')
    g.L.append('.p2align 8')
    g.L.append(f'.type {NAME}_kernel,@function')
    g.L.append(f'{NAME}_kernel:')
    if stamps:
        for k in range(16):
            g(f's_mov_b32 s{60+2*k}, 0')
    g.stamp(0)
    g(f'''
    s_cmp_ge_u32 s2, 128
    s_cbranch_scc1 L_Y
    ''')
    g('L_X:')
    post = []
    post += srd(g, SRD_A, 16, 576 * 8192)
    post += srd(g, SRD_WS, 104, WS_SIZE)
    post += srd(g, SRD_X, 0, 2304)
    post += srd(g, SRD_B, 24, 512 * 8192)
    post += srd(g, SRD_C, 32, 512 * 8192)
    post += srd(g, SRD_O, 40, 4096 * 1152)
    post += srd(g, SRD_B2, 80, 1152)
    post += srd(g, SRD_OUT, 88, 2304)
    g(f'''
    v_lshrrev_b32 v1, 6, v0
    v_and_b32 v0, 63, v0
    v_readfirstlane_b32 {S_WAVE}, v1
    v_lshlrev_b32 v1, 4, v0
    v_lshrrev_b32 v2, 4, v0
    v_and_b32 v3, 15, v0
    s_cmp_eq_u32 {S_WAVE}, 8
    s_cbranch_scc0 L_X_nopf
    ''')
    code_prefetch(g, 'L_X')
    g('L_X_nopf:')
    for p in post:
        g(p)
    g(f'''
    s_and_b32 {S_H}, s2, 7
    s_lshl_b32 {S_H}, {S_H}, 2
    s_lshr_b32 {S_T0}, s2, 5
    s_add_u32 {S_H}, {S_H}, {S_T0}
    s_bfe_u32 {S_J}, s2, 0x20003
    s_lshl_b32 {S_CU}, {S_H}, 2
    s_add_u32 {S_CU}, {S_CU}, {S_J}
    v_lshlrev_b32 v8, 1, v2
    v_xor_b32 v8, v8, v3
    v_lshlrev_b32 v8, 4, v8
    v_lshl_add_u32 v4, v2, 13, v8
    s_mul_i32 {S_OFF}, {S_J}, {144*8192}
    s_lshl_b32 {S_T0}, {S_WAVE}, 17
    s_add_u32 {S_OFF}, {S_OFF}, {S_T0}
    s_lshl_b32 {S_T2}, {S_H}, 8
    s_add_u32 {S_OFF}, {S_OFF}, {S_T2}
    s_mul_i32 {S_T0}, {S_WAVE}, 4608
    s_mov_b32 m0, {S_T0}
    s_mul_i32 {S_T1}, {S_J}, 288
    s_cmp_eq_u32 {S_WAVE}, 8
    s_waitcnt lgkmcnt(0)
    s_load_dword {S_EP}, s[12:13], 0
    s_cbranch_scc0 L_X_nox
    ''')
    layernorm_loads(g, S_T1)
    g('L_X_nox:')
    g(f'''
    s_cmp_eq_u32 {S_WAVE}, 0
    s_cbranch_scc0 L_X_nocl
    v_mov_b32 v12, -1
    v_mov_b32 v13, -1
    v_mov_b32 v14, -1
    v_mov_b32 v15, -1
    v_lshlrev_b32 v8, 4, v3
    v_lshl_add_u32 v8, v2, 15, v8
    s_lshl_b32 {S_T0}, {S_CU}, 8
    s_add_u32 {S_T0}, {S_T0}, {WS_H2}
    s_mov_b32 exec_hi, 0
    buffer_store_dwordx4 v[12:15], v8, {SRD_WS}, {S_T0} offen sc1
    s_mov_b32 exec_hi, -1
    L_X_nocl:
    ''')
    for u in range(4):
        g(f'buffer_load_dwordx4 v4, {SRD_A}, {S_OFF} offen {nt} lds')
        if u < 3:
            g('s_addk_i32 m0, 1152')
            g(f's_add_u32 {S_OFF}, {S_OFF}, 32768')
    g.stamp(1)
    g(f'''
    s_mov_b32 {S_SPIN}, 0x100000
    s_mov_b32 {S_MASK}, 0xfffff000
    s_mov_b32 s48, 0x00030003
    s_mov_b32 s49, 0x00030003
    s_cmp_lt_u32 {S_WAVE}, 4
    s_cbranch_scc0 L_X_nouk
    ''')
    g(f'''
    v_lshlrev_b32 v8, 2, v2
    v_xor_b32 v8, v8, v3
    v_lshlrev_b32 v8, 4, v8
    v_lshl_add_u32 v5, v2, 13, v8
    s_lshl_b32 {S_OFF}, {S_J}, 20
    s_lshl_b32 {S_T0}, {S_WAVE}, 18
    s_add_u32 {S_OFF}, {S_OFF}, {S_T0}
    s_add_u32 {S_OFF}, {S_OFF}, {S_T2}
    s_mul_i32 {S_T0}, {S_WAVE}, 8320
    s_add_u32 m0, {S_T0}, {LX_WUK}
    v_mov_b32 v12, -1
    ''')
    for u in range(8):
        g(f'buffer_load_dwordx4 v5, {SRD_B}, {S_OFF} offen {nt} lds')
        if u < 7:
            g('s_addk_i32 m0, 1040')
            g(f's_add_u32 {S_OFF}, {S_OFF}, 32768')
    g(f'''
    v_mov_b32 v13, -1
    v_mov_b32 v14, -1
    v_mov_b32 v15, -1
    s_lshl_b32 {S_T0}, {S_CU}, 14
    s_lshl_b32 {S_T1}, {S_WAVE}, 12
    s_add_u32 {S_T0}, {S_T0}, {S_T1}
    s_add_u32 {S_T0}, {S_T0}, {WS_H3}
    s_lshl_b32 {S_T1}, {S_CU}, 9
    s_lshl_b32 {S_T3}, {S_WAVE}, 7
    s_add_u32 {S_T1}, {S_T1}, {S_T3}
    s_add_u32 {S_T1}, {S_T1}, {WS_ML}
    ''')
    for u in range(4):
        g(f'buffer_store_dwordx4 v[12:15], v1, {SRD_WS}, {S_T0} offen offset:{u*1024} sc1')
    g(f'''
    s_mov_b64 exec, 0xff
    buffer_store_dwordx4 v[12:15], v1, {SRD_WS}, {S_T1} offen sc1
    s_mov_b64 exec, -1
    ''')
    alpha_addr(g, 7, LX_WQ)
    g('s_waitcnt vmcnt(13)')
    g('s_branch L_X_b1')
    g('L_X_nouk:')
    g(f'''
    s_cmp_eq_u32 {S_WAVE}, 8
    s_cbranch_scc1 L_X_ln
    ''')
    alpha_addr(g, 7, LX_WQ)
    g('s_waitcnt vmcnt(0)')
    g('s_branch L_X_b1')
    g('L_X_ln:')
    g('s_waitcnt vmcnt(4)')
    layernorm_compute(g, LX_XN)
    g('s_waitcnt vmcnt(0)')
    g('L_X_b1:')
    g(f'''
    v_and_b32 v8, 1, v0
    v_lshlrev_b32 v9, 9, v8
    v_lshl_add_u32 v10, v2, 3, v9
    v_add_u32 v10, {LX_XN}, v10
    v_lshl_add_u32 v11, v2, 4, v9
    v_mov_b32 v34, 0
    v_mov_b32 v35, 0
    v_mov_b32 v54, 0
    v_mov_b32 v55, 0
    s_lshl_b32 {S_T0}, {S_CU}, 10
    s_lshl_b32 {S_T1}, {S_WAVE}, 6
    s_add_u32 {S_T0}, {S_T0}, {S_T1}
    s_add_u32 {S_T0}, {S_T0}, {WS_H1}
    s_waitcnt lgkmcnt(0)
    s_add_u32 {S_EP}, {S_EP}, 1
    s_and_b32 {S_TAG}, {S_EP}, 0xfff
    v_mov_b32 v6, {S_TAG}
    s_barrier
    ''')
    g.stamp(2)
    g(f'''
    s_cmp_eq_u32 {S_WAVE}, 8
    s_cbranch_scc1 L_X_b2
    ''')
    for s in range(4):
        g(f'ds_read_b64_tr_b16 v[{16+4*s}:{17+4*s}], v7 offset:{s*9216}')
        g(f'ds_read_b64_tr_b16 v[{18+4*s}:{19+4*s}], v7 offset:{s*9216+4608}')
        g(f'ds_read2_b64 v[{36+4*s}:{39+4*s}], v10 offset0:{8*s} offset1:{8*s+4}')
    g('ds_read_b64_tr_b16 v[32:33], v7 offset:36864')
    g('ds_read_b64 v[52:53], v10 offset:256')
    if stamps:
        g('s_waitcnt lgkmcnt(0)')
    for s in range(4):
        g(f's_waitcnt lgkmcnt({11-3*s})')
        c = '0' if s == 0 else 'v[12:15]'
        g(f'v_mfma_f32_16x16x32_bf16 v[12:15], v[{16+4*s}:{19+4*s}], v[{36+4*s}:{39+4*s}], {c}')
    g('s_waitcnt lgkmcnt(0)')
    g('v_mfma_f32_16x16x32_bf16 v[12:15], v[32:35], v[52:55], v[12:15]')
    g('s_nop 6')
    g(f's_mov_b64 exec, {S_EXC}')
    for r in range(4):
        g(f'v_bfi_b32 v{12+r}, {S_MASK}, v{12+r}, v6')
    g(f'buffer_store_dwordx4 v[12:15], v11, {SRD_WS}, {S_T0} offen sc1')
    g('s_mov_b64 exec, -1')
    g.stamp(3)
    g(f'''
    s_cmp_lt_u32 {S_WAVE}, 4
    s_cbranch_scc0 L_X_b2
    ''')
    g(f'''
    v_lshrrev_b32 v8, 2, v3
    v_mul_u32_u24 v8, 2080, v8
    v_and_b32 v9, 3, v0
    v_lshl_add_u32 v8, v9, 8, v8
    v_lshl_add_u32 v8, v2, 4, v8
    s_mul_i32 {S_T0}, {S_WAVE}, 8320
    s_add_u32 {S_T0}, {S_T0}, {LX_WUK}
    v_add_u32 v8, {S_T0}, v8
    v_lshlrev_b32 v9, 6, v9
    v_add_u32 v56, v8, v9
    v_xor_b32 v57, 64, v9
    v_add_u32 v57, v8, v57
    v_xor_b32 v58, 0x80, v9
    v_add_u32 v58, v8, v58
    v_xor_b32 v59, 0xc0, v9
    v_add_u32 v59, v8, v59
    s_lshl_b32 {S_T0}, {S_WAVE}, 9
    s_add_u32 {S_T0}, {S_T0}, {LX_QP}
    v_lshl_add_u32 v60, v0, 3, {S_T0}
    v_and_b32 v8, 1, v0
    v_lshlrev_b32 v9, 8, v8
    v_lshl_add_u32 v9, v2, 4, v9
    v_add_u32 v61, {S_T0}, v9
    v_lshlrev_b32 v8, 15, v8
    v_lshl_add_u32 v62, v2, 4, v8
    s_lshl_b32 {S_T0}, {S_H}, 12
    s_add_u32 {S_T0}, {S_T0}, {WS_H1}
    s_lshl_b32 {S_T1}, {S_CU}, 8
    s_lshl_b32 {S_T3}, {S_WAVE}, 6
    s_add_u32 {S_T1}, {S_T1}, {S_T3}
    s_add_u32 {S_T1}, {S_T1}, {WS_H2}
    s_waitcnt vmcnt(6)
    ''')
    for s in range(4):
        for t in range(2):
            g(f'ds_read_b128 v[{64+8*s+4*t}:{67+8*s+4*t}], v{56+s} offset:{t*1040}')
    lp = g.lab('h1')
    g(f'{lp}:')
    for p in range(4):
        g(f'buffer_load_dwordx4 v[{16+4*p}:{19+4*p}], v1, {SRD_WS}, {S_T0} offen offset:{p*1024} sc1')
    spin_check(g)
    g('s_waitcnt vmcnt(0)')
    tagged_check(g, range(16, 32), 8)
    g(f'''
    v_pk_add_f32 v[16:17], v[16:17], v[20:21]
    v_pk_add_f32 v[18:19], v[18:19], v[22:23]
    s_cbranch_vccnz {lp}
    ''')
    g.stamp(4)
    g(f'''
    v_pk_add_f32 v[24:25], v[24:25], v[28:29]
    v_pk_add_f32 v[26:27], v[26:27], v[30:31]
    v_pk_add_f32 v[16:17], v[16:17], v[24:25]
    v_pk_add_f32 v[18:19], v[18:19], v[26:27]
    v_cvt_pk_bf16_f32 v16, v16, v17
    v_cvt_pk_bf16_f32 v17, v18, v19
    ds_write_b64 v60, v[16:17]
    ''')
    for s in range(4):
        g(f'ds_read_b128 v[{36+4*s}:{39+4*s}], v61 offset:{s*64}')
    if stamps:
        g('s_waitcnt lgkmcnt(0)')
    for s in range(4):
        g(f's_waitcnt lgkmcnt({3-s})')
        for t in range(2):
            c = '0' if s == 0 else f'v[{20+4*t}:{23+4*t}]'
            g(f'v_mfma_f32_16x16x32_bf16 v[{20+4*t}:{23+4*t}], v[{64+8*s+4*t}:{67+8*s+4*t}], v[{36+4*s}:{39+4*s}], {c}')
    g(f'''
    s_nop 5
    s_mov_b64 exec, {S_EXC}
    v_cvt_pk_bf16_f32 v16, v20, v21
    v_cvt_pk_bf16_f32 v17, v22, v23
    v_cvt_pk_bf16_f32 v18, v24, v25
    v_cvt_pk_bf16_f32 v19, v26, v27
    buffer_store_dwordx4 v[16:19], v62, {SRD_WS}, {S_T1} offen sc1
    s_mov_b64 exec, -1
    ''')
    g.stamp(5)
    g('L_X_b2:')
    g(f'''
    v_lshrrev_b32 v8, 3, v0
    v_mul_u32_u24 v8, 1152, v8
    v_and_b32 v9, 7, v0
    v_and_b32 v5, 1, v2
    v_lshlrev_b32 v5, 1, v5
    v_xor_b32 v9, v9, v5
    v_lshl_add_u32 v5, v9, 4, v8
    s_lshl_b32 {S_OFF}, {S_J}, 20
    s_lshl_b32 {S_T0}, {S_WAVE}, 17
    s_add_u32 {S_OFF}, {S_OFF}, {S_T0}
    s_add_u32 {S_OFF}, {S_OFF}, {S_T2}
    s_mul_i32 {S_T0}, {S_WAVE}, 4608
    s_add_u32 m0, {S_T0}, {LX_WUV}
    s_mul_i32 {S_T3}, {S_WAVE}, 4352
    s_add_u32 {S_T3}, {S_T3}, {LX_WO}
    s_mul_i32 {S_T4}, {S_CU}, 36864
    s_lshl_b32 {S_T0}, {S_WAVE}, 7
    s_add_u32 {S_T4}, {S_T4}, {S_T0}
    s_cmp_eq_u32 {S_WAVE}, 8
    s_barrier
    s_cbranch_scc1 L_X_nouv
    ''')
    for u in range(4):
        g(f'buffer_load_dwordx4 v4, {SRD_C}, {S_OFF} offen {nt} lds')
        if u < 3:
            g('s_addk_i32 m0, 1152')
            g(f's_add_u32 {S_OFF}, {S_OFF}, 32768')
    g('L_X_nouv:')
    omega_dma(g, 5, S_T3, S_T4)
    g.stamp(6)
    g(f'v_add_u32 v7, {LX_WUV - LX_WQ}, v7')
    omega_addr(g, 56, S_T3)
    gather_addr(g, 58)
    h4_addr(g, 59)
    g(f'''
    s_waitcnt vmcnt(4)
    s_barrier
    s_cmp_eq_u32 {S_WAVE}, 8
    s_cbranch_scc1 L_X_nouv2
    ''')
    for s in range(4):
        g(f'ds_read_b64_tr_b16 v[{64+4*s}:{65+4*s}], v7 offset:{s*9216}')
        g(f'ds_read_b64_tr_b16 v[{66+4*s}:{67+4*s}], v7 offset:{s*9216+4608}')
    g('L_X_nouv2:')
    g('s_waitcnt vmcnt(0)')
    omega_reads(g, 56, 80)
    g.stamp(7)
    g(f'''
    v_and_b32 v8, 3, v0
    v_mul_u32_u24 v8, 272, v8
    v_lshl_add_u32 v8, v2, 4, v8
    v_add_u32 v60, {LX_CC}, v8
    v_and_b32 v8, 1, v0
    v_lshlrev_b32 v8, 7, v8
    v_lshl_add_u32 v61, v2, 4, v8
    s_cmp_lt_u32 {S_WAVE}, 4
    s_cbranch_scc0 L_X_b4
    ''')
    g(f'''
    s_and_b32 {S_B}, {S_WAVE}, 1
    s_lshr_b32 {S_HG}, {S_WAVE}, 1
    s_lshl_b32 {S_T0}, {S_CU}, 9
    s_lshl_b32 {S_T1}, {S_B}, 8
    s_add_u32 {S_T0}, {S_T0}, {S_T1}
    s_add_u32 {S_T0}, {S_T0}, {WS_ML}
    s_lshl_b32 {S_T1}, {S_HG}, 5
    v_lshl_add_u32 v62, v2, 6, {S_T1}
    v_xor_b32 v63, 32, v62
    s_lshl_b32 {S_T1}, {S_CU}, 14
    s_lshl_b32 {S_T3}, {S_B}, 13
    s_add_u32 {S_T1}, {S_T1}, {S_T3}
    s_lshl_b32 {S_T3}, {S_HG}, 10
    s_add_u32 {S_T1}, {S_T1}, {S_T3}
    s_add_u32 {S_T1}, {S_T1}, {WS_H3}
    v_lshlrev_b32 v8, 4, v3
    v_lshl_add_u32 v96, v2, 11, v8
    v_and_b32 v8, 1, v0
    v_lshlrev_b32 v8, 4, v8
    v_mov_b32 v9, 0xffff
    v_lshlrev_b32 v9, v8, v9
    v_bfe_u32 v8, v0, 1, 2
    v_cmp_eq_u32 vcc, 0, v8
    v_cmp_eq_u32 s[56:57], 1, v8
    s_nop 1
    v_cndmask_b32 v100, 0, v9, vcc
    v_cndmask_b32 v101, 0, v9, s[56:57]
    v_cmp_eq_u32 vcc, 2, v8
    v_cmp_eq_u32 s[56:57], 3, v8
    s_nop 1
    v_cndmask_b32 v102, 0, v9, vcc
    v_cndmask_b32 v103, 0, v9, s[56:57]
    s_mul_i32 {S_T3}, {S_WAVE}, 272
    s_add_u32 {S_T3}, {S_T3}, {LX_CC}
    v_lshlrev_b32 v8, 4, v3
    v_lshl_add_u32 v8, v2, 3, v8
    v_add_u32 v97, {S_T3}, v8
    ''')
    lp = g.lab('ml')
    g(f'''
    {lp}:
    buffer_load_dwordx4 v[16:19], v62, {SRD_WS}, {S_T0} offen sc1
    buffer_load_dwordx4 v[20:23], v62, {SRD_WS}, {S_T0} offen offset:16 sc1
    buffer_load_dwordx4 v[24:27], v63, {SRD_WS}, {S_T0} offen sc1
    buffer_load_dwordx4 v[28:31], v63, {SRD_WS}, {S_T0} offen offset:16 sc1
    ''')
    spin_check(g)
    g('s_waitcnt vmcnt(0)')
    g('v_max3_u32 v8, v16, v17, v18')
    for r in range(19, 31, 2):
        g(f'v_max3_u32 v8, v8, v{r}, v{r+1}')
    g('v_max_u32 v8, v8, v31')
    g('v_cmp_eq_u32 vcc, -1, v8')
    g(f'''
    v_max3_f32 v9, v16, v18, v20
    v_max3_f32 v9, v9, v22, v24
    s_cbranch_vccnz {lp}
    ''')
    g.stamp(8)
    def h3_loads():
        for u in range(4):
            g(f'buffer_load_dwordx4 v[{36+4*u}:{39+4*u}], v96, {SRD_WS}, {S_T1} offen offset:{u*256} sc1')
    g(f'''
    v_max3_f32 v9, v9, v26, v28
    v_max_f32 v9, v9, v30
    v_mov_b32 v8, v9
    s_nop 1
    v_permlane16_swap_b32 v8, v9
    v_max_f32 v9, v8, v9
    v_mov_b32 v8, v9
    s_nop 1
    v_permlane32_swap_b32 v8, v9
    v_max_f32 v9, v8, v9
    ''')
    for u in range(8):
        g(f'v_sub_f32 v{16+2*u}, v{16+2*u}, v9')
    for u in range(8):
        g(f'v_exp_f32 v{16+2*u}, v{16+2*u}')
    g('v_mul_f32 v8, v16, v17')
    for u in range(1, 8):
        g(f'v_fmac_f32 v8, v{16+2*u}, v{17+2*u}')
    g(f'''
    v_mov_b32 v9, v8
    s_nop 1
    v_permlane16_swap_b32 v8, v9
    v_add_f32 v9, v8, v9
    v_mov_b32 v8, v9
    s_nop 1
    v_permlane32_swap_b32 v8, v9
    v_add_f32 v9, v8, v9
    v_rcp_f32 v9, v9
    s_nop 0
    ''')
    for u in range(4):
        g(f'v_mul_f32 v8, v{16+2*u}, v9')
        g('v_cvt_pk_bf16_f32 v8, v8, v8')
        for t in range(4):
            g(f'v_and_b32 v{104+4*u+t}, v8, v{100+t}')
    lp = g.lab('h3')
    g(f'{lp}:')
    h3_loads()
    spin_check(g)
    for u in range(4):
        g(f's_waitcnt vmcnt({3-u})')
        c = '0' if u == 0 else 'v[12:15]'
        g(f'v_mfma_f32_16x16x32_bf16 v[12:15], v[{104+4*u}:{107+4*u}], v[{36+4*u}:{39+4*u}], {c}')
        if u == 0:
            g('v_max3_u32 v8, v36, v37, v38')
            g('v_max_u32 v8, v8, v39')
        else:
            g(f'v_max3_u32 v8, v8, v{36+4*u}, v{37+4*u}')
            g(f'v_max3_u32 v8, v8, v{38+4*u}, v{39+4*u}')
    g(f'''
    v_cmp_eq_u32 vcc, -1, v8
    s_nop 3
    s_cbranch_vccnz {lp}
    v_cvt_pk_bf16_f32 v12, v12, v13
    v_cvt_pk_bf16_f32 v13, v14, v15
    s_mov_b32 exec_hi, 0
    ds_write_b64 v97, v[12:13]
    s_mov_b32 exec_hi, -1
    ''')
    g.stamp(9)
    g('L_X_b4:')
    g(f'''
    s_lshr_b32 {S_T0}, {S_WAVE}, 1
    s_lshl_b32 {S_T1}, {S_H}, 2
    s_add_u32 {S_T0}, {S_T0}, {S_T1}
    s_lshl_b32 {S_T0}, {S_T0}, 10
    s_lshl_b32 {S_T1}, {S_J}, 8
    s_add_u32 {S_T0}, {S_T0}, {S_T1}
    s_and_b32 {S_T1}, {S_WAVE}, 1
    s_lshl_b32 {S_T1}, {S_T1}, 6
    s_add_u32 {S_T0}, {S_T0}, {S_T1}
    s_add_u32 {S_T0}, {S_T0}, {WS_H3P}
    s_lshl_b32 {S_T1}, {S_CU}, 10
    s_add_u32 {S_T1}, {S_T1}, {WS_H3P}
    s_mul_i32 {S_T3}, s2, 4608
    s_lshl_b32 {S_T4}, {S_WAVE}, 9
    s_add_u32 {S_T3}, {S_T3}, {S_T4}
    s_add_u32 {S_T3}, {S_T3}, {WS_H4}
    s_cmp_eq_u32 {S_WAVE}, 8
    s_waitcnt lgkmcnt(0)
    s_barrier
    s_cbranch_scc1 L_X_o2
    ''')
    for s in range(4):
        g(f'ds_read_b128 v[{36+4*s}:{39+4*s}], v60 offset:{s*64}')
    for s in range(4):
        g(f's_waitcnt lgkmcnt({3-s})')
        c = '0' if s == 0 else 'v[12:15]'
        g(f'v_mfma_f32_16x16x32_bf16 v[12:15], v[{64+4*s}:{67+4*s}], v[{36+4*s}:{39+4*s}], {c}')
    g('s_nop 7')
    for r in range(4):
        g(f'v_add_f32_dpp v{12+r}, v{12+r}, v{12+r} quad_perm:[2,3,0,1] row_mask:0xf bank_mask:0xf')
    g(f's_mov_b64 exec, {S_EXC}')
    for r in range(4):
        g(f'v_bfi_b32 v{12+r}, {S_MASK}, v{12+r}, v6')
    g(f'buffer_store_dwordx4 v[12:15], v61, {SRD_WS}, {S_T0} offen sc1')
    g('s_mov_b64 exec, -1')
    g.stamp(10)
    g('L_X_o2:')
    lp = g.lab('h3p')
    g(f'''
    {lp}:
    buffer_load_dwordx4 v[16:19], v58, {SRD_WS}, {S_T1} offen sc1
    buffer_load_dwordx4 v[20:23], v58, {SRD_WS}, {S_T1} offen offset:16 sc1
    ''')
    spin_check(g)
    g('s_waitcnt vmcnt(0)')
    tagged_check(g, range(16, 24), 8)
    g('s_nop 1')
    g(f's_cbranch_vccnz {lp}')
    g.stamp(11)
    gather_sum4(g, 16)
    for r in range(4):
        g(f'v_cvt_pk_bf16_f32 v{16+r}, v{16+2*r}, v{17+2*r}')
    g('s_nop 1')
    for t in range(4):
        g(f'v_mfma_f32_16x16x32_bf16 v[{36+4*t}:{39+4*t}], v[{80+4*t}:{83+4*t}], v[16:19], 0')
    omega_finish(g, 36, 6, 59, S_T3)
    g.stamp(12)
    g(f'''
    s_cmp_lt_u32 s2, 36
    s_cbranch_scc0 L_END
    s_cmp_eq_u32 {S_WAVE}, 8
    s_cbranch_scc1 L_END
    v_lshrrev_b32 v8, 3, v0
    v_mul_u32_u24 v8, 4608, v8
    v_and_b32 v9, 7, v0
    v_lshl_add_u32 v10, v9, 4, v8
    s_mul_i32 {S_T0}, {S_WAVE}, {32*4608}
    s_lshl_b32 {S_T1}, s2, 7
    s_add_u32 {S_T0}, {S_T0}, {S_T1}
    s_add_u32 {S_T0}, {S_T0}, {WS_H4}
    s_add_u32 {S_T1}, {S_T0}, {8*4608}
    s_add_u32 {S_T2}, {S_T0}, {16*4608}
    s_add_u32 {S_T3}, {S_T0}, {24*4608}
    s_lshr_b32 {S_T4}, s2, 2
    s_lshl_b32 {S_T4}, {S_T4}, 7
    s_and_b32 {S_T5}, s2, 1
    s_lshl_b32 {S_T5}, {S_T5}, 6
    s_add_u32 {S_T4}, {S_T4}, {S_T5}
    s_bfe_u32 {S_T5}, s2, 0x10001
    s_mul_i32 {S_T5}, {S_T5}, 1152
    s_add_u32 {S_T5}, {S_T5}, {S_T4}
    v_and_b32 v11, 31, v0
    v_lshlrev_b32 v56, 1, v11
    buffer_load_ushort v57, v56, {SRD_X}, {S_T5} offen
    buffer_load_ushort v58, v56, {SRD_B2}, {S_T4} offen
    v_and_b32 v8, 1, v2
    v_lshrrev_b32 v59, 1, v2
    v_lshl_add_u32 v8, v8, 1, v59
    v_lshl_add_u32 v8, v9, 2, v8
    v_lshlrev_b32 v8, 5, v8
    v_lshl_add_u32 v8, {S_WAVE}, 2, v8
    v_add_u32 v59, {LX_FIN}, v8
    v_lshrrev_b32 v8, 5, v0
    v_lshlrev_b32 v8, 4, v8
    v_lshl_add_u32 v8, v11, 5, v8
    v_add_u32 v60, {LX_FIN}, v8
    ''')
    lp = g.lab('h4')
    g(f'{lp}:')
    for u, sr in enumerate((S_T0, S_T1, S_T2, S_T3)):
        g(f'buffer_load_dwordx4 v[{16+4*u}:{19+4*u}], v10, {SRD_WS}, {sr} offen sc1')
    spin_check(g)
    g('s_waitcnt vmcnt(0)')
    tagged_check(g, range(16, 32), 8)
    g(f'''
    v_pk_add_f32 v[16:17], v[16:17], v[20:21]
    v_pk_add_f32 v[18:19], v[18:19], v[22:23]
    s_cbranch_vccnz {lp}
    ''')
    g.stamp(13)
    g(f'''
    v_pk_add_f32 v[24:25], v[24:25], v[28:29]
    v_pk_add_f32 v[26:27], v[26:27], v[30:31]
    v_pk_add_f32 v[16:17], v[16:17], v[24:25]
    v_pk_add_f32 v[18:19], v[18:19], v[26:27]
    s_nop 0
    v_permlane32_swap_b32 v16, v17
    v_permlane32_swap_b32 v18, v19
    v_add_f32 v16, v16, v17
    v_add_f32 v18, v18, v19
    s_nop 1
    v_permlane16_swap_b32 v16, v18
    v_add_f32 v16, v16, v18
    s_nop 1
    v_add_f32_dpp v16, v16, v16 row_ror:8 row_mask:0xf bank_mask:0xf
    ds_write_b32 v59, v16
    v_lshlrev_b32 v57, 16, v57
    v_lshlrev_b32 v58, 16, v58
    v_add_f32 v57, v57, v58
    s_cmp_eq_u32 {S_WAVE}, 0
    s_waitcnt lgkmcnt(0)
    s_barrier
    s_cbranch_scc0 L_END
    ds_read_b128 v[16:19], v60
    s_waitcnt lgkmcnt(0)
    v_pk_add_f32 v[16:17], v[16:17], v[18:19]
    v_add_f32 v16, v16, v17
    v_mov_b32 v17, v16
    s_nop 1
    v_permlane32_swap_b32 v16, v17
    v_add_f32 v16, v16, v17
    v_add_f32 v16, v16, v57
    v_cvt_pk_bf16_f32 v16, v16, v16
    s_mov_b32 exec_hi, 0
    buffer_store_short v16, v56, {SRD_OUT}, {S_T5} offen
    s_cmp_eq_u32 s2, 0
    s_cbranch_scc0 L_END
    v_mov_b32 v17, {S_EP}
    v_mov_b32 v18, 0
    buffer_store_dword v17, v18, {SRD_WS}, 0 offen
    s_branch L_END
    ''')

    g.L.append('.p2align 7')
    g('L_Y:')
    g(f'''
    s_cmp_ge_u32 s2, 256
    s_cbranch_scc1 L_EXIT
    ''')
    post = []
    post += srd(g, SRD_A, 8, 2 * 4096 * 1024)
    post += srd(g, SRD_WS, 104, WS_SIZE)
    post += srd(g, SRD_X, 0, 2304)
    post += srd(g, SRD_B, 56, 576 * 9216)
    post += srd(g, SRD_C, 64, 9216)
    post += srd(g, SRD_O, 72, 4608 * 1152)
    g(f'''
    v_lshrrev_b32 v1, 6, v0
    v_and_b32 v0, 63, v0
    v_readfirstlane_b32 {S_WAVE}, v1
    v_lshlrev_b32 v1, 4, v0
    v_lshrrev_b32 v2, 4, v0
    v_and_b32 v3, 15, v0
    s_cmp_eq_u32 {S_WAVE}, 8
    s_cbranch_scc0 L_Y_nopf
    ''')
    code_prefetch(g, 'L_Y')
    g('L_Y_nopf:')
    for p in post:
        g(p)
    g(f'''
    s_sub_u32 {S_Y}, s2, 128
    s_bfe_u32 {S_HG}, {S_Y}, 0x10003
    s_and_b32 {S_T0}, {S_Y}, 7
    s_lshl_b32 {S_T0}, {S_T0}, 3
    s_lshr_b32 {S_T1}, {S_Y}, 4
    s_add_u32 {S_SPLIT}, {S_T0}, {S_T1}
    s_lshr_b32 {S_B}, {S_SPLIT}, 5
    s_lshl_b32 {S_OFF}, {S_SPLIT}, 17
    s_lshl_b32 {S_T0}, {S_WAVE}, 13
    s_add_u32 {S_OFF}, {S_OFF}, {S_T0}
    s_lshl_b32 {S_T0}, {S_HG}, 16
    s_add_u32 {S_OFF}, {S_OFF}, {S_T0}
    s_mul_i32 {S_T0}, {S_WAVE}, 8448
    s_mov_b32 m0, {S_T0}
    s_mul_i32 {S_H}, {S_Y}, 21846
    s_lshr_b32 {S_H}, {S_H}, 16
    s_mul_i32 {S_J}, {S_H}, 3
    s_sub_u32 {S_J}, {S_Y}, {S_J}
    s_mul_i32 {S_T1}, {S_J}, 384
    s_mov_b32 {S_SPIN}, 0x100000
    s_mov_b32 {S_MASK}, 0xfffff000
    s_mov_b32 s48, 0x00030003
    s_mov_b32 s49, 0x00030003
    s_cmp_eq_u32 {S_WAVE}, 8
    s_waitcnt lgkmcnt(0)
    s_load_dword {S_EP}, s[12:13], 0
    s_cbranch_scc1 L_Y_ln
    ''')
    for half in range(2):
        for u in range(8):
            g(f'buffer_load_dwordx4 v1, {SRD_A}, {S_OFF} offen offset:{(u&3)*1024} {nt} lds')
            if u == 3:
                g('s_addk_i32 m0, 4128')
                g(f's_addk_i32 {S_OFF}, 4096')
            elif u == 7:
                if half == 0:
                    g(f's_add_u32 m0, {S_T0}, {64*1056}')
                    g(f's_xor_b32 {S_OFF}, {S_OFF}, 0x11000')
            else:
                g('s_addk_i32 m0, 32')
                g('s_nop 0')
    g.stamp(1)
    g(f'''
    s_cmp_lt_u32 {S_WAVE}, 4
    s_cbranch_scc0 L_Y_pvaddr
    v_mul_u32_u24 v8, 1056, v3
    v_lshl_add_u32 v8, v2, 4, v8
    s_mul_i32 {S_T0}, {S_WAVE}, 33792
    v_add_u32 v4, {S_T0}, v8
    v_add_u32 v5, {LY_Q}, v8
    s_branch L_Y_b1
    L_Y_pvaddr:
    v_lshrrev_b32 v8, 2, v0
    v_mul_u32_u24 v8, 1056, v8
    v_and_b32 v9, 3, v0
    v_lshl_add_u32 v8, v9, 3, v8
    s_lshl_b32 {S_T0}, {S_WAVE}, 8
    s_sub_u32 {S_T0}, {S_T0}, 1024
    v_add_u32 v4, {S_T0}, v8
    v_add_u32 v5, 67584, v4
    s_branch L_Y_b1
    L_Y_ln:
    ''')
    layernorm_loads(g, S_T1)
    g('s_waitcnt vmcnt(0)')
    layernorm_compute(g, LY_XN)
    g('L_Y_b1:')
    g(f'''
    s_waitcnt vmcnt(0) lgkmcnt(0)
    s_add_u32 {S_EP}, {S_EP}, 1
    s_and_b32 {S_TAG}, {S_EP}, 0xfff
    v_mov_b32 v6, {S_TAG}
    s_barrier
    ''')
    g.stamp(2)
    g(f'''
    s_cmp_eq_u32 {S_WAVE}, 8
    s_cbranch_scc1 L_Y_b2
    s_cmp_lt_u32 {S_WAVE}, 4
    s_cbranch_scc0 L_Y_pvread
    ''')
    for ks in range(16):
        for t in range(2):
            g(f'ds_read_b128 v[{40+8*ks+4*t}:{43+8*ks+4*t}], v4 offset:{t*16896+ks*64}')
    g('s_branch L_Y_gather')
    g('L_Y_pvread:')
    for ct in range(8):
        for s in range(4):
            a = 4 + (s >> 1)
            off = (s & 1) * 33792 + ct * 32
            g(f'ds_read_b64_tr_b16 v[{40+16*ct+4*s}:{41+16*ct+4*s}], v{a} offset:{off}')
            g(f'ds_read_b64_tr_b16 v[{42+16*ct+4*s}:{43+16*ct+4*s}], v{a} offset:{off+16896}')
    g('L_Y_gather:')
    g.stamp(3)
    g(f'''
    v_lshlrev_b32 v7, 10, v0
    s_lshl_b32 {S_T0}, {S_HG}, 16
    s_add_u32 {S_T0}, {S_T0}, {WS_H1}
    s_lshl_b32 {S_T1}, {S_B}, 15
    s_lshl_b32 {S_T2}, {S_HG}, 14
    s_add_u32 {S_T1}, {S_T1}, {S_T2}
    s_lshl_b32 {S_T2}, {S_WAVE}, 11
    s_add_u32 {S_T1}, {S_T1}, {S_T2}
    s_add_u32 {S_T1}, {S_T1}, {WS_H2}
    s_mul_i32 {S_T2}, {S_WAVE}, 2112
    s_add_u32 {S_T2}, {S_T2}, {LY_Q}
    v_add_u32 v10, {S_T2}, v1
    ''')
    lp = g.lab('sig')
    g(f'''
    {lp}:
    buffer_load_dwordx4 v[16:19], v7, {SRD_WS}, {S_T0} offen sc1
    ''')
    spin_check(g)
    g('s_waitcnt vmcnt(0)')
    tagged_check(g, range(16, 20), 8)
    g('s_nop 1')
    g(f's_cbranch_vccnz {lp}')
    g.stamp(4)
    lp = g.lab('h2')
    g(f'''
    {lp}:
    buffer_load_dwordx4 v[16:19], v1, {SRD_WS}, {S_T1} offen sc1
    buffer_load_dwordx4 v[20:23], v1, {SRD_WS}, {S_T1} offen offset:1024 sc1
    ''')
    spin_check(g)
    g(f'''
    s_waitcnt vmcnt(0)
    ds_write_b128 v10, v[16:19]
    ds_write_b128 v10, v[20:23] offset:1056
    v_max3_u32 v8, v16, v17, v18
    v_max3_u32 v8, v8, v19, v20
    v_max3_u32 v8, v8, v21, v22
    v_max_u32 v8, v8, v23
    v_cmp_eq_u32 vcc, -1, v8
    s_waitcnt lgkmcnt(0)
    s_cbranch_vccnz {lp}
    ''')
    g.stamp(5)
    g('L_Y_b2:')
    g(f'''
    s_waitcnt lgkmcnt(0)
    s_barrier
    s_cmp_lt_u32 {S_WAVE}, 4
    s_cbranch_scc0 L_Y_nqk
    ''')
    for ks in range(4):
        g(f'ds_read_b128 v[{16+4*ks}:{19+4*ks}], v5 offset:{ks*64}')
    g(f'''
    v_lshlrev_b32 v8, 4, v3
    v_add_u32 v11, {LY_MX}, v8
    v_lshl_add_u32 v10, {S_WAVE}, 2, v11
    s_lshl_b32 {S_T0}, {S_WAVE}, 10
    s_add_u32 {S_T0}, {S_T0}, {LY_P}
    v_add_u32 v12, {S_T0}, v1
    s_mov_b32 {S_T1}, 0x{f2u(SCALE):08x}
    ''')
    for ks in range(16):
        q = 16 + 4 * (ks & 3)
        g(f's_waitcnt lgkmcnt({min(3, 15-ks)})')
        for t in range(2):
            c = '0' if ks == 0 else f'v[{32+4*t}:{35+4*t}]'
            g(f'v_mfma_f32_16x16x32_bf16 v[{32+4*t}:{35+4*t}], v[{40+8*ks+4*t}:{43+8*ks+4*t}], v[{q}:{q+3}], {c}')
        if ks + 4 < 16:
            g(f'ds_read_b128 v[{q}:{q+3}], v5 offset:{(ks+4)*64}')
    g(f'''
    s_nop 6
    v_max3_f32 v8, v32, v33, v34
    v_max3_f32 v8, v8, v35, v36
    v_max3_f32 v8, v8, v37, v38
    v_max_f32 v8, v8, v39
    v_mov_b32 v9, v8
    s_nop 1
    v_permlane16_swap_b32 v8, v9
    v_max_f32 v8, v8, v9
    v_mov_b32 v9, v8
    s_nop 1
    v_permlane32_swap_b32 v8, v9
    v_max_f32 v8, v8, v9
    ds_write_b32 v10, v8
    s_waitcnt lgkmcnt(0)
    s_barrier
    ds_read_b128 v[16:19], v11
    s_waitcnt lgkmcnt(0)
    v_max3_f32 v8, v16, v17, v18
    v_max_f32 v8, v8, v19
    v_mul_f32 v14, {S_T1}, v8
    ''')
    for r in range(8):
        g(f'v_fma_f32 v{32+r}, v{32+r}, {S_T1}, -v14')
    for r in range(8):
        g(f'v_exp_f32 v{32+r}, v{32+r}')
    for r in range(4):
        g(f'v_cvt_pk_bf16_f32 v{16+r}, v{32+2*r}, v{33+2*r}')
    g(f'''
    ds_write_b128 v12, v[16:19]
    v_pk_add_f32 v[32:33], v[32:33], v[34:35]
    v_pk_add_f32 v[36:37], v[36:37], v[38:39]
    v_pk_add_f32 v[32:33], v[32:33], v[36:37]
    v_add_f32 v8, v32, v33
    v_mov_b32 v9, v8
    s_nop 1
    v_permlane16_swap_b32 v8, v9
    v_add_f32 v8, v8, v9
    v_mov_b32 v9, v8
    s_nop 1
    v_permlane32_swap_b32 v8, v9
    v_add_f32 v8, v8, v9
    ds_write_b32 v10, v8 offset:256
    s_waitcnt lgkmcnt(0)
    s_barrier
    ''')
    g.stamp(6)
    g(f'''
    s_cmp_eq_u32 {S_WAVE}, 0
    s_cbranch_scc0 L_Y_b4p
    ds_read_b128 v[16:19], v11 offset:256
    v_lshlrev_b32 v8, 11, v3
    v_lshl_add_u32 v8, v2, 9, v8
    s_lshl_b32 {S_T0}, {S_HG}, 15
    s_lshl_b32 {S_T1}, {S_SPLIT}, 3
    s_add_u32 {S_T0}, {S_T0}, {S_T1}
    s_add_u32 {S_T0}, {S_T0}, {WS_ML}
    s_waitcnt lgkmcnt(0)
    v_pk_add_f32 v[16:17], v[16:17], v[18:19]
    v_add_f32 v15, v16, v17
    buffer_store_dwordx2 v[14:15], v8, {SRD_WS}, {S_T0} offen sc1
    s_branch L_Y_b4p
    L_Y_nqk:
    ''')
    g(f'''
    v_lshlrev_b32 v8, 1, v2
    v_xor_b32 v8, v8, v3
    v_lshlrev_b32 v8, 4, v8
    v_mul_u32_u24 v9, 9216, v2
    v_add_u32 v7, v8, v9
    s_cmp_eq_u32 {S_WAVE}, 8
    s_cbranch_scc1 L_Y_w8
    s_cmp_lt_u32 {S_Y}, 108
    s_cbranch_scc0 L_Y_nof1a
    ''')
    def w1_dma():
        g(f'''
        s_mul_i32 {S_OFF}, {S_J}, {192*9216}
        s_mul_i32 {S_T0}, {S_WAVE}, {24*9216}
        s_add_u32 {S_OFF}, {S_OFF}, {S_T0}
        s_lshl_b32 {S_T0}, {S_H}, 8
        s_add_u32 {S_OFF}, {S_OFF}, {S_T0}
        s_mul_i32 {S_T0}, {S_WAVE}, {6*1152}
        s_add_u32 m0, {S_T0}, {LY_W1}
        s_nop 0
        ''')
        for u in range(6):
            g(f'buffer_load_dwordx4 v7, {SRD_B}, {S_OFF} offen {nt} lds')
            if u < 5:
                g('s_addk_i32 m0, 1152')
                g(f's_add_u32 {S_OFF}, {S_OFF}, 36864')
    w1_dma()
    g('L_Y_nof1a:')
    g(f'''
    v_add_u32 v12, {LY_P}, v1
    v_lshlrev_b32 v8, 16, v3
    v_lshl_add_u32 v13, v2, 4, v8
    s_lshl_b32 {S_T0}, {S_HG}, 20
    s_lshl_b32 {S_T1}, {S_WAVE}, 14
    s_add_u32 {S_T0}, {S_T0}, {S_T1}
    s_lshl_b32 {S_T1}, {S_SPLIT}, 8
    s_add_u32 {S_T0}, {S_T0}, {S_T1}
    s_add_u32 {S_T0}, {S_T0}, {WS_H3 - 4*16384}
    s_barrier
    s_barrier
    ''')
    for s in range(4):
        g(f'ds_read_b128 v[{16+4*s}:{19+4*s}], v12 offset:{s*1024}')
    def accreg(u):
        return 32 if u == 0 else 40 + 32 * (u - 1)
    def pack_store(u):
        a = accreg(u)
        p = 40 + 32 * u + 16
        for r in range(4):
            g(f'v_cvt_pk_bf16_f32 v{p+r}, v{a+2*r}, v{a+2*r+1}')
        g(f'buffer_store_dwordx4 v[{p}:{p+3}], v13, {SRD_WS}, {S_T0} offen offset:{u*64} sc1')
    for u in range(4):
        a = accreg(u)
        for s in range(4):
            if u == 0:
                g(f's_waitcnt lgkmcnt({3-s})')
            for t in range(2):
                ct = 2 * u + t
                c = '0' if s == 0 else f'v[{a+4*t}:{a+4*t+3}]'
                g(f'v_mfma_f32_16x16x32_bf16 v[{a+4*t}:{a+4*t+3}], v[{40+16*ct+4*s}:{43+16*ct+4*s}], v[{16+4*s}:{19+4*s}], {c}')
        if u > 0:
            pack_store(u - 1)
    g('s_nop 2')
    pack_store(3)
    g.stamp(7)
    g(f'''
    s_branch L_Y_b4p
    L_Y_w8:
    s_barrier
    s_barrier
    L_Y_b4p:
    ''')
    g(f'''
    v_lshlrev_b32 v8, 1, v2
    v_xor_b32 v8, v8, v3
    v_lshlrev_b32 v8, 4, v8
    v_mul_u32_u24 v9, 9216, v2
    v_add_u32 v7, v8, v9
    v_lshrrev_b32 v8, 3, v0
    v_mul_u32_u24 v8, 1152, v8
    v_and_b32 v9, 7, v0
    v_and_b32 v5, 1, v2
    v_lshlrev_b32 v5, 1, v5
    v_xor_b32 v9, v9, v5
    v_lshl_add_u32 v5, v9, 4, v8
    s_mul_i32 {S_T2}, {S_WAVE}, 4352
    s_add_u32 {S_T3}, {S_T2}, {LY_WOA}
    s_lshl_b32 {S_T0}, {S_Y}, 1
    s_sub_u32 {S_T0}, {S_T0}, 108
    s_cmp_lt_u32 {S_Y}, 108
    s_cselect_b32 {S_CU}, {S_Y}, {S_T0}
    s_mul_i32 {S_T4}, {S_CU}, 36864
    s_lshl_b32 {S_T0}, {S_WAVE}, 7
    s_add_u32 {S_T4}, {S_T4}, {S_T0}
    s_barrier
    s_cmp_lt_u32 {S_Y}, 108
    s_cbranch_scc0 L_Y_f2only
    s_cmp_lt_u32 {S_WAVE}, 4
    s_cbranch_scc0 L_Y_nof1b
    ''')
    w1_dma()
    g('L_Y_nof1b:')
    omega_dma(g, 5, S_T3, S_T4)
    g(f'''
    v_lshlrev_b32 v8, 4, v2
    s_lshl_b32 {S_T0}, {S_CU}, 6
    buffer_load_dwordx4 v[28:31], v8, {SRD_C}, {S_T0} offen
    ''')
    g.stamp(8)
    alpha_addr(g, 7, LY_W1)
    omega_addr(g, 56, S_T3)
    gather_addr(g, 58)
    h4_addr(g, 59)
    g(f'''
    v_and_b32 v8, 1, v0
    v_lshlrev_b32 v9, 9, v8
    v_lshl_add_u32 v10, v2, 3, v9
    v_add_u32 v10, {LY_XN}, v10
    v_lshlrev_b32 v8, 7, v8
    v_lshl_add_u32 v61, v2, 4, v8
    s_lshr_b32 {S_T0}, {S_WAVE}, 1
    s_lshl_b32 {S_T1}, {S_H}, 2
    s_add_u32 {S_T0}, {S_T0}, {S_T1}
    s_lshl_b32 {S_T0}, {S_T0}, 10
    s_lshl_b32 {S_T1}, {S_J}, 8
    s_add_u32 {S_T0}, {S_T0}, {S_T1}
    s_and_b32 {S_T1}, {S_WAVE}, 1
    s_lshl_b32 {S_T1}, {S_T1}, 6
    s_add_u32 {S_T0}, {S_T0}, {S_T1}
    s_add_u32 {S_T0}, {S_T0}, {WS_HF}
    s_cmp_eq_u32 {S_WAVE}, 8
    s_waitcnt vmcnt(5)
    s_barrier
    s_cbranch_scc1 L_Y_f2a
    ''')
    g.stamp(9)
    for s in range(6):
        g(f'ds_read_b64_tr_b16 v[{64+4*s}:{65+4*s}], v7 offset:{s*9216}')
        g(f'ds_read_b64_tr_b16 v[{66+4*s}:{67+4*s}], v7 offset:{s*9216+4608}')
        g(f'ds_read2_b64 v[{96+4*s}:{99+4*s}], v10 offset0:{8*s} offset1:{8*s+4}')
    if stamps:
        g('s_waitcnt lgkmcnt(0)')
    for s in range(6):
        g(f's_waitcnt lgkmcnt({15-3*s})')
        c = '0' if s == 0 else 'v[12:15]'
        g(f'v_mfma_f32_16x16x32_bf16 v[12:15], v[{64+4*s}:{67+4*s}], v[{96+4*s}:{99+4*s}], {c}')
    g('s_nop 6')
    g(f's_mov_b64 exec, {S_EXC}')
    for r in range(4):
        g(f'v_bfi_b32 v{12+r}, {S_MASK}, v{12+r}, v6')
    g(f'buffer_store_dwordx4 v[12:15], v61, {SRD_WS}, {S_T0} offen sc1')
    g('s_mov_b64 exec, -1')
    g.stamp(10)
    g('L_Y_f2a:')

    def f2_block(addr, wreg, biasreg, blk_sgpr_off, first):
        for r in range(4):
            g(f'v_lshlrev_b32 v{16+2*r}, 16, v{biasreg+r}')
            g(f'v_and_b32 v{17+2*r}, 0xffff0000, v{biasreg+r}')
        lp = g.lab('hf')
        g(f'''
        s_mov_b32 exec_lo, 0x3f3f3f3f
        s_mov_b32 exec_hi, 0x3f3f3f3f
        {lp}:
        buffer_load_dwordx4 v[16:19], v58, {SRD_WS}, {blk_sgpr_off} offen sc1
        buffer_load_dwordx4 v[20:23], v58, {SRD_WS}, {blk_sgpr_off} offen offset:16 sc1
        ''')
        spin_check(g)
        g('s_waitcnt vmcnt(0)')
        tagged_check(g, range(16, 24), 8)
        g('s_nop 1')
        g(f's_cbranch_vccnz {lp}')
        g('s_mov_b64 exec, -1')
        gather_sum4(g, 16)
        for r in range(8):
            g(f'v_max_f32 v{16+r}, 0, v{16+r}')
        for r in range(4):
            g(f'v_pk_mul_f32 v[{16+2*r}:{17+2*r}], v[{16+2*r}:{17+2*r}], v[{16+2*r}:{17+2*r}]')
        for r in range(4):
            g(f'v_cvt_pk_bf16_f32 v{16+r}, v{16+2*r}, v{17+2*r}')
        g('s_waitcnt lgkmcnt(0)')
        g('s_nop 0')
        for t in range(4):
            c = '0' if first else f'v[{36+4*t}:{39+4*t}]'
            g(f'v_mfma_f32_16x16x32_bf16 v[{36+4*t}:{39+4*t}], v[{wreg+4*t}:{wreg+4*t+3}], v[16:19], {c}')

    def h4_soff():
        g(f'''
        s_mul_i32 {S_T3}, s2, 4608
        s_lshl_b32 {S_T4}, {S_WAVE}, 9
        s_add_u32 {S_T3}, {S_T3}, {S_T4}
        s_add_u32 {S_T3}, {S_T3}, {WS_H4}
        ''')
    g(f'''
    s_lshl_b32 {S_T1}, {S_CU}, 10
    s_add_u32 {S_T1}, {S_T1}, {WS_HF}
    ''')
    h4_soff()
    g('s_waitcnt vmcnt(0)')
    omega_reads(g, 56, 80)
    g.stamp(11)
    f2_block(56, 80, 28, S_T1, True)
    g('s_branch L_Y_fin')
    g('L_Y_f2only:')
    gather_addr(g, 58)
    h4_addr(g, 59)
    g(f'''
    s_cmp_lt_u32 {S_Y}, 126
    s_cbranch_scc1 L_Y_f2two
    ''')
    h4_soff()
    for r in range(16):
        g(f'v_mov_b32 v{36+r}, 0')
    g('s_branch L_Y_fin')
    g('L_Y_f2two:')
    omega_dma(g, 5, S_T3, S_T4)
    g(f'''
    s_add_u32 {S_T4}, {S_T4}, 36864
    s_add_u32 {S_T2}, {S_T2}, {LY_WOB}
    ''')
    omega_dma(g, 5, S_T2, S_T4)
    g(f'''
    v_lshlrev_b32 v8, 4, v2
    s_lshl_b32 {S_T0}, {S_CU}, 6
    buffer_load_dwordx4 v[28:31], v8, {SRD_C}, {S_T0} offen
    buffer_load_dwordx4 v[32:35], v8, {SRD_C}, {S_T0} offen offset:64
    ''')
    omega_addr(g, 56, S_T3)
    omega_addr(g, 60, S_T2)
    g(f'''
    s_lshl_b32 {S_T1}, {S_CU}, 10
    s_add_u32 {S_T1}, {S_T1}, {WS_HF}
    s_add_u32 {S_T0}, {S_T1}, 1024
    ''')
    h4_soff()
    g('s_waitcnt vmcnt(0)')
    omega_reads(g, 56, 80)
    omega_reads(g, 60, 96)
    f2_block(56, 80, 28, S_T1, True)
    f2_block(60, 96, 32, S_T0, False)
    g('L_Y_fin:')
    omega_finish(g, 36, 6, 59, S_T3)
    g.stamp(12)
    g('L_END:')
    if stamps:
        g.stamp(15)
        g(f'''
        s_mov_b64 exec, 1
        s_mul_i32 {S_T0}, s2, 9
        s_add_u32 {S_T0}, {S_T0}, {S_WAVE}
        s_lshl_b32 {S_T0}, {S_T0}, 6
        s_add_u32 {S_T0}, {S_T0}, {WS_ST}
        v_mov_b32 v8, 0
        s_waitcnt lgkmcnt(0)
        ''')
        for k in range(16):
            g(f'v_mov_b32 v9, s{60+2*k}')
            g(f'buffer_store_dword v9, v8, {SRD_WS}, {S_T0} offen offset:{4*k}')
    g('L_EXIT:')
    g('s_endpgm')
    g.L.append('.fill 2048, 4, 0xbf810000')
    g.L.append('.section .rodata,"a"')
    g.L.append('.p2align 6')
    g.L.append(f'.amdhsa_kernel {NAME}_kernel')
    g.L.append('  .amdhsa_next_free_vgpr 168')
    g.L.append('  .amdhsa_next_free_sgpr 96')
    g.L.append('  .amdhsa_accum_offset 168')
    g.L.append('  .amdhsa_group_segment_fixed_size 0')
    g.L.append('  .amdhsa_kernarg_size 112')
    g.L.append('  .amdhsa_user_sgpr_count 2')
    g.L.append('  .amdhsa_user_sgpr_kernarg_segment_ptr 1')
    g.L.append('  .amdhsa_system_sgpr_workgroup_id_x 1')
    g.L.append('.end_amdhsa_kernel')
    return g.text()


if __name__ == '__main__':
    out = sys.argv[1]
    stamps = 'stamps' in sys.argv[2:]
    nt = '' if 'nont' in sys.argv[2:] else 'nt'
    open(out, 'w').write(gen(stamps, nt))
```

```python
import sys, math, struct

NAME = 'parallel_sum__compressed_kv_cla__dense_activation_squared_relu__decode'

WS_H1 = 0x10000
WS_H2 = 0x30000
WS_H3P = 0x40000
WS_HF = 0x60000
WS_ML = 0x90000
WS_SIG = 0xA0000
WS_H4 = 0x100000
WS_H3 = 0x300000
WS_ST = 0x600000
WS_SIZE = 0x800000

LX_WQ = 0
LX_WUK = 41472
LX_WUV = LX_WUK + 33280
LX_WO = LX_WUV + 36864
LX_XN = LX_WO + 39168
LX_QP = LX_XN + 1024
LX_CC = LX_QP + 1024
LX_FIN = LX_CC + 1280
LX_ACT = LX_FIN + 1024
LX_MLX = LX_ACT + 512
LX_END = LX_MLX + 64
LY_CKV = 0
LY_Q = 135168
LY_P = LY_Q + 16896
LY_MX = LY_P + 4096
LY_LX = LY_MX + 256
LY_XN = LY_LX + 256
LY_ACT = LY_XN + 1024
LY_END = LY_ACT + 512
LY_W1 = 0
LY_WOA = 55296
LY_WOB = 0
LDS_BYTES = max(LX_END, LY_END)

SCALE = (128 ** -0.5) * math.log2(math.e)


def f2u(x):
    return struct.unpack('<I', struct.pack('<f', x))[0]


class G:
    def __init__(self, stamps=False, nt='nt', opts=None):
        self.L = []
        self.stamps = stamps
        self.nt = nt
        self.o = opts or {}
        self.nlab = 0

    def __call__(self, s):
        for line in s.strip('\n').split('\n'):
            line = line.strip()
            if not line:
                continue
            if line.endswith(':'):
                self.L.append(line)
            else:
                self.L.append('    ' + line)

    def lab(self, p):
        self.nlab += 1
        return f'L_{p}_{self.nlab}'

    def stamp(self, k):
        if self.stamps:
            self(f's_memrealtime s[{60+2*k}:{61+2*k}]')

    def stwait(self):
        if self.stamps:
            self('s_waitcnt lgkmcnt(0)')

    def text(self):
        return '\n'.join(self.L) + '\n'


S_WAVE = 's3'
S_CU = 's4'
S_H = 's5'
S_J = 's6'
S_T0 = 's7'
SRD_A = 's[8:11]'
SRD_WS = 's[12:15]'
SRD_X = 's[16:19]'
SRD_B = 's[20:23]'
SRD_C = 's[24:27]'
SRD_O = 's[28:31]'
SRD_B2 = 's[32:35]'
SRD_OUT = 's[36:39]'
S_TAG = 's40'
S_EP = 's41'
S_SPIN = 's42'
S_MASK = 's43'
S_OFF = 's44'
S_T1 = 's45'
S_T2 = 's46'
S_T3 = 's47'
S_EXC = 's[48:49]'
S_B = 's50'
S_SPLIT = 's51'
S_HG = 's52'
S_Y = 's53'
S_PC = 's[54:55]'
S_T4 = 's58'
S_T5 = 's59'
DPPF = 'row_mask:0xf bank_mask:0xf'


def srd(g, name, karg_off, nbytes):
    n = int(name[2:name.index(':')])
    g(f's_load_dwordx2 s[{n}:{n+1}], s[0:1], {karg_off}')
    return [f's_mov_b32 s{n+2}, {nbytes}', f's_mov_b32 s{n+3}, 0x20000']


def spin_check(g):
    g(f's_sub_u32 {S_SPIN}, {S_SPIN}, 1')
    g('s_cbranch_scc1 L_END')


def tagged_check(g, regs, acc):
    for r in regs:
        g(f'v_xor_b32 v{r}, {S_TAG}, v{r}')
    rs = list(regs)
    g(f'v_or3_b32 v{acc}, v{rs[0]}, v{rs[1]}, v{rs[2]}')
    rs = rs[3:]
    while len(rs) >= 2:
        g(f'v_or3_b32 v{acc}, v{acc}, v{rs[0]}, v{rs[1]}')
        rs = rs[2:]
    if rs:
        g(f'v_or_b32 v{acc}, v{acc}, v{rs[0]}')
    g(f'v_and_b32 v{acc}, 0xfff, v{acc}')
    g(f'v_cmp_ne_u32 vcc, 0, v{acc}')


def gather32(g, vaddr, soff, vlds, lds_off=0, act=False, stamp=None):
    lp = g.lab('g32')
    if act:
        g('s_mov_b32 exec_hi, 0xffff')
    g(f'''
    {lp}:
    buffer_load_dwordx4 v[16:19], v{vaddr}, {SRD_WS}, {soff} offen sc1
    ''')
    spin_check(g)
    g('s_waitcnt vmcnt(0)')
    tagged_check(g, range(16, 20), 8)
    g('s_nop 1')
    g(f's_cbranch_vccnz {lp}')
    if act:
        g('s_mov_b32 exec_hi, -1')
    if stamp is not None:
        g.stamp(stamp)
    g(f'''
    v_permlane32_swap_b32 v16, v17
    v_permlane32_swap_b32 v18, v19
    v_add_f32 v16, v16, v17
    v_add_f32 v18, v18, v19
    s_nop 1
    v_permlane16_swap_b32 v16, v18
    v_add_f32 v16, v16, v18
    ''')
    if act:
        g('v_max_f32 v16, 0, v16')
        g('v_mul_f32 v16, v16, v16')
    g('v_cvt_pk_bf16_f32 v16, v16, v16')
    g(f'ds_write_b16 v{vlds}, v16 offset:{lds_off}')


def gather32_ldsaddr(g, dst, base, bstride):
    g(f'''
    v_and_b32 v8, 1, v2
    v_lshrrev_b32 v9, 1, v2
    v_lshl_add_u32 v8, v8, 1, v9
    v_and_b32 v9, 3, v0
    v_lshl_add_u32 v8, v9, 2, v8
    v_bfe_u32 v9, v0, 3, 1
    v_lshl_add_u32 v8, v9, 4, v8
    v_bfe_u32 v9, v0, 2, 1
    v_mul_u32_u24 v9, {bstride}, v9
    v_lshl_add_u32 v8, v8, 1, v9
    v_add_u32 v{dst}, {base}, v8
    ''')


def layernorm_loads(g, slice_off_sgpr):
    g(f'''
    v_lshrrev_b32 v8, 5, v0
    v_mul_u32_u24 v8, 1152, v8
    v_and_b32 v9, 31, v0
    v_lshl_add_u32 v8, v9, 4, v8
    v_cmp_gt_u32 vcc, 8, v9
    v_mov_b32 v9, 0x7fff0000
    s_nop 0
    v_cndmask_b32 v9, v9, v8, vcc
    s_waitcnt lgkmcnt(0)
    buffer_load_dwordx4 v[10:13], v8, {SRD_X}, 0 offen
    buffer_load_dwordx4 v[14:17], v8, {SRD_X}, 0 offen offset:512
    buffer_load_dwordx4 v[18:21], v9, {SRD_X}, 0 offen offset:1024
    buffer_load_dwordx4 v[22:25], v8, {SRD_X}, {slice_off_sgpr} offen
    ''')


def layernorm_compute(g, lds_xn):
    g(f's_mov_b32 {S_T1}, 0x3f803f80')
    g('v_mov_b32 v26, 0')
    g('v_mov_b32 v27, 0')
    for r in range(10, 22):
        g(f'v_dot2c_f32_bf16 v26, {S_T1}, v{r}')
        g(f'v_dot2c_f32_bf16 v27, v{r}, v{r}')
    g('s_nop 2')
    for k in (1, 2, 4, 8):
        g(f'v_add_f32_dpp v26, v26, v26 row_ror:{k} {DPPF}')
        g(f'v_add_f32_dpp v27, v27, v27 row_ror:{k} {DPPF}')
        g('s_nop 0')
    g(f'''
    v_mov_b32 v28, v26
    v_mov_b32 v29, v27
    s_nop 0
    v_permlane16_swap_b32 v26, v28
    v_permlane16_swap_b32 v27, v29
    v_add_f32 v26, v26, v28
    v_add_f32 v27, v27, v29
    v_mul_f32 v26, 0x{f2u(1.0/576):08x}, v26
    v_mul_f32 v27, 0x{f2u(1.0/576):08x}, v27
    v_fma_f32 v27, -v26, v26, v27
    v_max_f32 v27, 0, v27
    v_cvt_pk_bf16_f32 v26, v26, v27
    v_and_b32 v27, 0xffff0000, v26
    v_lshlrev_b32 v26, 16, v26
    v_add_f32 v27, 0x{f2u(1e-5):08x}, v27
    v_cvt_pk_bf16_f32 v27, v27, v27
    v_and_b32 v27, 0xffff0000, v27
    v_sqrt_f32 v27, v27
    s_nop 0
    v_cvt_pk_bf16_f32 v27, v27, v27
    v_and_b32 v27, 0xffff0000, v27
    v_rcp_f32 v27, v27
    ''')
    for r in range(22, 26):
        g(f'''
        v_lshlrev_b32 v28, 16, v{r}
        v_and_b32 v29, 0xffff0000, v{r}
        v_sub_f32 v28, v28, v26
        v_sub_f32 v29, v29, v26
        v_cvt_pk_bf16_f32 v29, v28, v29
        v_lshlrev_b32 v28, 16, v29
        v_and_b32 v29, 0xffff0000, v29
        v_mul_f32 v28, v28, v27
        v_mul_f32 v29, v29, v27
        v_cvt_pk_bf16_f32 v{r}, v28, v29
        ''')
    g(f'v_add_u32 v8, {lds_xn}, v1')
    g('ds_write_b128 v8, v[22:25]')


def zero_act(g, act):
    g(f'''
    v_lshlrev_b32 v8, 2, v0
    v_add_u32 v8, {act+256}, v8
    v_mov_b32 v9, 0
    ds_write_b32 v8, v9
    ''')


def alpha_addr(g, dst, base):
    g(f'''
    v_lshrrev_b32 v8, 2, v3
    v_bfe_u32 v9, v0, 1, 1
    v_lshl_add_u32 v9, {S_WAVE}, 1, v9
    v_lshlrev_b32 v{dst}, 1, v8
    v_xor_b32 v9, v9, v{dst}
    v_lshlrev_b32 v9, 4, v9
    v_lshl_add_u32 v9, v8, 8, v9
    v_and_b32 v8, 1, v0
    v_lshl_add_u32 v9, v8, 3, v9
    v_mul_u32_u24 v8, 1152, v2
    v_add_u32 v{dst}, v8, v9
    ''')
    if base:
        g(f'v_add_u32 v{dst}, {base}, v{dst}')


def omega_addr(g, dst, base_sgpr):
    g(f'''
    v_lshrrev_b32 v8, 2, v3
    v_lshlrev_b32 v9, 7, v8
    v_lshrrev_b32 v8, 1, v8
    v_lshl_add_u32 v9, v8, 5, v9
    v_and_b32 v8, 3, v0
    v_lshl_add_u32 v9, v8, 3, v9
    v_mul_u32_u24 v8, 1088, v2
    v_add3_u32 v{dst}, v8, v9, {base_sgpr}
    v_xor_b32 v9, 32, v9
    v_add3_u32 v{dst+1}, v8, v9, {base_sgpr}
    ''')


def omega_reads(g, addr, dst):
    for t in range(4):
        a = addr + (t & 1)
        off = (t >> 1) * 64
        g(f'ds_read_b64_tr_b16 v[{dst+4*t}:{dst+4*t+1}], v{a} offset:{off}')
        g(f'ds_read_b64_tr_b16 v[{dst+4*t+2}:{dst+4*t+3}], v{a} offset:{off+512}')


def omega_voff(g, dst):
    g(f'''
    v_lshrrev_b32 v8, 3, v0
    v_mul_u32_u24 v8, 1152, v8
    v_and_b32 v9, 7, v0
    v_and_b32 v{dst}, 1, v2
    v_lshlrev_b32 v{dst}, 1, v{dst}
    v_xor_b32 v9, v9, v{dst}
    v_lshl_add_u32 v{dst}, v9, 4, v8
    ''')


def omega_dma(g, vaddr, m0_sgpr, soff_sgpr):
    g(f's_mov_b32 m0, {m0_sgpr}')
    g(f's_mov_b32 {S_OFF}, {soff_sgpr}')
    for u in range(4):
        g(f'buffer_load_dwordx4 v{vaddr}, {SRD_O}, {S_OFF} offen {g.nt} lds')
        if u < 3:
            g('s_addk_i32 m0, 1088')
            g(f's_addk_i32 {S_OFF}, 9216')


def act_addrs(g, dst, act):
    g(f'''
    v_and_b32 v8, 1, v0
    v_lshlrev_b32 v8, 6, v8
    v_lshl_add_u32 v8, v2, 4, v8
    v_add_u32 v8, {act}, v8
    v_mov_b32 v9, {act+256}
    ''')
    for t in range(4):
        m = (3 << (2 * t)) * 0x00010001
        g(f's_mov_b32 vcc_lo, 0x{m:08x}')
        g(f's_mov_b32 vcc_hi, 0x{m:08x}')
        g(f'v_cndmask_b32 v{dst+t}, v9, v8, vcc')


def omega_compute(g, aaddr, wregs, vtag, vaddr, soff):
    n = len(wregs)
    for k in range(n):
        for t in range(4):
            g(f'ds_read_b128 v[{20+16*k+4*t}:{23+16*k+4*t}], v{aaddr+t} offset:{128*k}')
    g.stwait()
    for k in range(n):
        for t in range(4):
            g(f's_waitcnt lgkmcnt({4*n-1-4*k-t})')
            c = '0' if (k == 0 and t == 0) else 'v[12:15]'
            g(f'v_mfma_f32_16x16x32_bf16 v[12:15], v[{wregs[k]+4*t}:{wregs[k]+4*t+3}], v[{20+16*k+4*t}:{23+16*k+4*t}], {c}')
    g('s_nop 5')


def omega_store(g, vtag, vaddr, soff):
    g(f'''
    s_mov_b32 exec_lo, 0x00ff00ff
    s_mov_b32 exec_hi, 0x00ff00ff
    ''')
    for r in range(4):
        g(f'v_bfi_b32 v{12+r}, {S_MASK}, v{12+r}, v{vtag}')
    g(f'''
    buffer_store_dwordx4 v[12:15], v{vaddr}, {SRD_WS}, {soff} offen sc1
    s_mov_b64 exec, -1
    ''')


def h4_addr(g, dst):
    g(f'''
    v_and_b32 v8, 1, v0
    v_bfe_u32 v9, v0, 1, 2
    v_lshlrev_b32 v8, 8, v8
    v_lshl_add_u32 v8, v9, 6, v8
    v_lshl_add_u32 v{dst}, v2, 4, v8
    ''')


def h4_soff(g):
    g(f'''
    s_mul_i32 {S_T3}, s2, 4608
    s_lshl_b32 {S_T4}, {S_WAVE}, 9
    s_add_u32 {S_T3}, {S_T3}, {S_T4}
    s_add_u32 {S_T3}, {S_T3}, {WS_H4}
    ''')


def block_soff(g, dst, base):
    g(f'''
    s_lshr_b32 {dst}, {S_WAVE}, 1
    s_lshl_b32 {S_T5}, {S_H}, 2
    s_add_u32 {dst}, {dst}, {S_T5}
    s_lshl_b32 {dst}, {dst}, 10
    s_lshl_b32 {S_T5}, {S_J}, 8
    s_add_u32 {dst}, {dst}, {S_T5}
    s_and_b32 {S_T5}, {S_WAVE}, 1
    s_lshl_b32 {S_T5}, {S_T5}, 7
    s_add_u32 {dst}, {dst}, {S_T5}
    s_add_u32 {dst}, {dst}, {base}
    ''')


def code_prefetch(g):
    g(f'''
    s_getpc_b64 {S_PC}
    v_lshlrev_b32 v8, 7, v0
    global_load_dword v30, v8, {S_PC}
    ''')


def lane_consts(g):
    g(f'''
    v_lshrrev_b32 v1, 6, v0
    v_and_b32 v0, 63, v0
    v_readfirstlane_b32 {S_WAVE}, v1
    v_lshlrev_b32 v1, 4, v0
    v_lshrrev_b32 v2, 4, v0
    v_and_b32 v3, 15, v0
    ''')


def misc_consts(g):
    g(f'''
    s_mov_b32 {S_SPIN}, 0x100000
    s_mov_b32 {S_MASK}, 0xfffff000
    s_mov_b32 s48, 0x00030003
    s_mov_b32 s49, 0x00030003
    ''')


def make_tag(g):
    g(f'''
    s_add_u32 {S_EP}, {S_EP}, 1
    s_and_b32 {S_TAG}, {S_EP}, 0xfff
    v_mov_b32 v6, {S_TAG}
    ''')


def gen(stamps=False, nt='nt', opts=None):
    g = G(stamps, nt, opts)
    o = g.o
    hdr = open('cdna_kernels/' + NAME + '.s.ref').read().split('\n')
    for line in hdr:
        if line.startswith('; @launch'):
            break
        g.L.append(line)
    g.L.append(f'; @launch grid=(256,1,1) block=(576,1,1) lds={LDS_BYTES}')
    g.L.append('.amdgcn_target "amdgcn-amd-amdhsa--gfx950"')
    g.L.append('.text')
    g.L.append(f'.globl {NAME}_kernel')
    g.L.append('.p2align 8')
    g.L.append(f'.type {NAME}_kernel,@function')
    g.L.append(f'{NAME}_kernel:')
    g.stamp(0)
    if stamps:
        for k in range(1, 16):
            g(f's_mov_b32 s{60+2*k}, 0')
    g(f'''
    s_cmp_ge_u32 s2, 128
    s_cbranch_scc1 L_Y
    ''')
    post = []
    post += srd(g, SRD_A, 16, 576 * 8192)
    post += srd(g, SRD_WS, 104, WS_SIZE)
    post += srd(g, SRD_X, 0, 2304)
    post += srd(g, SRD_B, 24, 512 * 8192)
    post += srd(g, SRD_C, 32, 512 * 8192)
    post += srd(g, SRD_O, 40, 4096 * 1152)
    post += srd(g, SRD_B2, 80, 1152)
    post += srd(g, SRD_OUT, 88, 2304)
    lane_consts(g)
    g(f'''
    s_cmp_eq_u32 {S_WAVE}, 8
    s_cbranch_scc0 L_X_nopf
    ''')
    code_prefetch(g)
    g('L_X_nopf:')
    for p in post:
        g(p)
    g(f'''
    s_and_b32 {S_H}, s2, 7
    s_lshl_b32 {S_H}, {S_H}, 2
    s_lshr_b32 {S_T0}, s2, 5
    s_add_u32 {S_H}, {S_H}, {S_T0}
    s_bfe_u32 {S_J}, s2, 0x20003
    s_lshl_b32 {S_CU}, {S_H}, 2
    s_add_u32 {S_CU}, {S_CU}, {S_J}
    v_lshlrev_b32 v8, 1, v2
    v_xor_b32 v8, v8, v3
    v_lshlrev_b32 v8, 4, v8
    v_lshl_add_u32 v4, v2, 13, v8
    s_lshl_b32 {S_T3}, {S_WAVE}, 17
    s_lshl_b32 {S_T2}, {S_H}, 8
    s_add_u32 {S_T2}, {S_T2}, {S_T3}
    s_mul_i32 {S_OFF}, {S_J}, {144*8192}
    s_add_u32 {S_OFF}, {S_OFF}, {S_T2}
    s_mul_i32 {S_T0}, {S_WAVE}, 4608
    s_mov_b32 m0, {S_T0}
    s_cmp_eq_u32 {S_WAVE}, 8
    s_cbranch_scc1 L_X_w8
    s_waitcnt lgkmcnt(0)
    ''')
    def wq_dma():
        for u in range(4):
            g(f'buffer_load_dwordx4 v4, {SRD_A}, {S_OFF} offen {nt} lds')
            if u < 3:
                g('s_addk_i32 m0, 1152')
                g(f's_add_u32 {S_OFF}, {S_OFF}, 32768')
    wq_dma()
    g.stamp(1)
    g(f'''
    s_load_dword {S_EP}, s[12:13], 0
    v_mov_b32 v12, -1
    v_mov_b32 v13, -1
    v_mov_b32 v14, -1
    v_mov_b32 v15, -1
    s_lshl_b32 {S_T0}, {S_CU}, 14
    s_lshl_b32 {S_T1}, {S_WAVE}, 11
    s_add_u32 {S_T0}, {S_T0}, {S_T1}
    s_add_u32 {S_T0}, {S_T0}, {WS_H3}
    buffer_store_dwordx4 v[12:15], v1, {SRD_WS}, {S_T0} offen sc1
    buffer_store_dwordx4 v[12:15], v1, {SRD_WS}, {S_T0} offen offset:1024 sc1
    v_lshlrev_b32 v8, 2, v2
    v_xor_b32 v8, v8, v3
    v_lshlrev_b32 v8, 4, v8
    v_lshl_add_u32 v5, v2, 13, v8
    s_lshl_b32 {S_T0}, {S_J}, 20
    s_add_u32 {S_T2}, {S_T2}, {S_T0}
    s_mov_b32 {S_OFF}, {S_T2}
    s_mul_i32 {S_T0}, {S_WAVE}, 4160
    s_add_u32 m0, {S_T0}, {LX_WUK}
    ''')
    if o.get('xb0'):
        g('s_barrier')
    else:
        g('s_nop 0')
    nuk = o.get('nuk', 4)
    def wuk_dma(a, b):
        for u in range(a, b):
            g(f'buffer_load_dwordx4 v5, {SRD_B}, {S_OFF} offen {nt} lds')
            if u < 3:
                g('s_addk_i32 m0, 1040')
                g(f's_add_u32 {S_OFF}, {S_OFF}, 32768')
    wuk_dma(0, nuk)
    alpha_addr(g, 7, LX_WQ)
    misc_consts(g)
    g(f'''
    v_and_b32 v8, 1, v0
    v_lshlrev_b32 v9, 9, v8
    v_lshl_add_u32 v10, v2, 3, v9
    v_add_u32 v10, {LX_XN}, v10
    v_lshlrev_b32 v9, 6, v8
    v_lshl_add_u32 v11, v2, 4, v9
    v_mov_b32 v34, 0
    v_mov_b32 v35, 0
    v_mov_b32 v54, 0
    v_mov_b32 v55, 0
    s_lshl_b32 {S_T0}, {S_CU}, 10
    s_lshl_b32 {S_T1}, {S_WAVE}, 7
    s_add_u32 {S_T0}, {S_T0}, {S_T1}
    s_add_u32 {S_T0}, {S_T0}, {WS_H1}
    s_waitcnt lgkmcnt(0)
    ''')
    make_tag(g)
    g(f's_waitcnt vmcnt({nuk})')
    g('s_barrier')
    g.stamp(2)
    for s in range(4):
        g(f'ds_read_b64_tr_b16 v[{16+4*s}:{17+4*s}], v7 offset:{s*9216}')
        g(f'ds_read_b64_tr_b16 v[{18+4*s}:{19+4*s}], v7 offset:{s*9216+4608}')
        g(f'ds_read2_b64 v[{36+4*s}:{39+4*s}], v10 offset0:{8*s} offset1:{8*s+4}')
    g('ds_read_b64_tr_b16 v[32:33], v7 offset:36864')
    g('ds_read_b64 v[52:53], v10 offset:256')
    g.stwait()
    for s in range(5):
        g(f's_waitcnt lgkmcnt({max(11-3*s, 0)})')
        c = '0' if s == 0 else 'v[12:15]'
        g(f'v_mfma_f32_16x16x32_bf16 v[12:15], v[{16+4*s}:{19+4*s}], v[{36+4*s}:{39+4*s}], {c}')
    g('s_nop 6')
    g(f's_mov_b64 exec, {S_EXC}')
    for r in range(4):
        g(f'v_bfi_b32 v{12+r}, {S_MASK}, v{12+r}, v6')
    g(f'buffer_store_dwordx4 v[12:15], v11, {SRD_WS}, {S_T0} offen sc1')
    g('s_mov_b64 exec, -1')
    g.stamp(3)
    wuk_dma(nuk, 4)
    wuk_wait = 1 if nuk == 4 else 0
    g(f'''
    s_cmp_lt_u32 {S_WAVE}, 4
    s_cbranch_scc0 L_X_h1
    ''')
    g(f'''
    v_lshrrev_b32 v8, 2, v3
    v_mul_u32_u24 v8, 2080, v8
    v_and_b32 v9, 3, v0
    v_lshl_add_u32 v8, v9, 8, v8
    v_lshl_add_u32 v8, v2, 4, v8
    s_mul_i32 {S_T0}, {S_WAVE}, 8320
    s_add_u32 {S_T0}, {S_T0}, {LX_WUK}
    v_add_u32 v8, {S_T0}, v8
    v_lshlrev_b32 v9, 6, v9
    v_add_u32 v56, v8, v9
    v_xor_b32 v57, 64, v9
    v_add_u32 v57, v8, v57
    v_xor_b32 v58, 0x80, v9
    v_add_u32 v58, v8, v58
    v_xor_b32 v59, 0xc0, v9
    v_add_u32 v59, v8, v59
    v_and_b32 v8, 1, v0
    v_mul_u32_u24 v9, 272, v8
    v_lshl_add_u32 v9, v2, 4, v9
    v_add_u32 v61, {LX_QP}, v9
    v_lshlrev_b32 v8, 15, v8
    v_lshl_add_u32 v62, v2, 4, v8
    s_lshl_b32 {S_T1}, {S_CU}, 8
    s_lshl_b32 {S_T3}, {S_WAVE}, 6
    s_add_u32 {S_T1}, {S_T1}, {S_T3}
    s_add_u32 {S_T1}, {S_T1}, {WS_H2}
    s_waitcnt vmcnt({wuk_wait})
    s_barrier
    ''')
    for s in range(4):
        for t in range(2):
            g(f'ds_read_b128 v[{64+8*s+4*t}:{67+8*s+4*t}], v{56+s} offset:{t*1040}')
    g.stwait()
    g('s_barrier')
    for s in range(4):
        g(f'ds_read_b128 v[{36+4*s}:{39+4*s}], v61 offset:{s*64}')
    for s in range(4):
        g(f's_waitcnt lgkmcnt({3-s})')
        for t in range(2):
            c = '0' if s == 0 else f'v[{20+4*t}:{23+4*t}]'
            g(f'v_mfma_f32_16x16x32_bf16 v[{20+4*t}:{23+4*t}], v[{64+8*s+4*t}:{67+8*s+4*t}], v[{36+4*s}:{39+4*s}], {c}')
    g(f'''
    s_nop 5
    s_mov_b64 exec, {S_EXC}
    v_cvt_pk_bf16_f32 v16, v20, v21
    v_cvt_pk_bf16_f32 v17, v22, v23
    v_cvt_pk_bf16_f32 v18, v24, v25
    v_cvt_pk_bf16_f32 v19, v26, v27
    buffer_store_dwordx4 v[16:19], v62, {SRD_WS}, {S_T1} offen sc1
    s_mov_b64 exec, -1
    ''')
    g.stamp(5)
    g('s_branch L_X_b2')
    g('L_X_h1:')
    gather32_ldsaddr(g, 60, LX_QP - 256, 272)
    g(f'''
    v_lshl_add_u32 v60, {S_WAVE}, 6, v60
    v_lshlrev_b32 v8, 4, v3
    v_lshl_add_u32 v61, v2, 10, v8
    s_lshl_b32 {S_T0}, {S_H}, 12
    s_lshl_b32 {S_T1}, {S_WAVE}, 8
    s_add_u32 {S_T0}, {S_T0}, {S_T1}
    s_add_u32 {S_T0}, {S_T0}, {WS_H1 - 1024}
    s_waitcnt vmcnt({wuk_wait})
    s_barrier
    ''')
    gather32(g, 61, S_T0, 60, stamp=4)
    g(f'''
    s_waitcnt lgkmcnt(0)
    s_barrier
    s_branch L_X_b2
    ''')
    g('L_X_w8:')
    g(f's_mul_i32 {S_T1}, {S_J}, 288')
    layernorm_loads(g, S_T1)
    g(f'''
    s_load_dword {S_EP}, s[12:13], 0
    v_mov_b32 v32, -1
    v_mov_b32 v33, -1
    v_mov_b32 v34, -1
    v_mov_b32 v35, -1
    v_lshlrev_b32 v8, 4, v3
    v_lshl_add_u32 v8, v2, 15, v8
    s_lshl_b32 {S_T0}, {S_CU}, 8
    s_add_u32 {S_T0}, {S_T0}, {WS_H2}
    s_mov_b32 exec_hi, 0
    buffer_store_dwordx4 v[32:35], v8, {SRD_WS}, {S_T0} offen sc1
    s_mov_b32 exec_hi, -1
    ''')
    wq_dma()
    g.stamp(1)
    if o.get('xb0'):
        g('s_barrier')
    misc_consts(g)
    zero_act(g, LX_ACT)
    g('s_waitcnt vmcnt(5)')
    g.stamp(13)
    layernorm_compute(g, LX_XN)
    g.stamp(14)
    g('s_waitcnt lgkmcnt(0)')
    make_tag(g)
    g(f'''
    v_mov_b32 v32, v6
    v_mov_b32 v33, v6
    v_mov_b32 v34, v6
    v_mov_b32 v35, v6
    s_lshl_b32 {S_T0}, {S_CU}, 4
    s_add_u32 {S_T0}, {S_T0}, {WS_SIG}
    s_waitcnt vmcnt(0)
    s_mov_b64 exec, 1
    buffer_store_dwordx4 v[32:35], v1, {SRD_WS}, {S_T0} offen sc1
    s_mov_b64 exec, -1
    s_barrier
    s_barrier
    s_barrier
    ''')
    g('L_X_b2:')
    omega_voff(g, 5)
    g(f'''
    s_mov_b32 {S_OFF}, {S_T2}
    s_mul_i32 {S_T0}, {S_WAVE}, 4608
    s_add_u32 m0, {S_T0}, {LX_WUV}
    s_mul_i32 {S_T3}, {S_WAVE}, 4352
    s_add_u32 {S_T3}, {S_T3}, {LX_WO}
    s_mul_i32 {S_T4}, {S_CU}, 36864
    s_lshl_b32 {S_T0}, {S_WAVE}, 7
    s_add_u32 {S_T4}, {S_T4}, {S_T0}
    s_cmp_eq_u32 {S_WAVE}, 8
    s_barrier
    s_cbranch_scc1 L_X_nouv
    ''')
    opace = o.get('opace', 0)
    for u in range(4):
        g(f'buffer_load_dwordx4 v4, {SRD_C}, {S_OFF} offen {nt} lds')
        if u < opace:
            g('s_waitcnt vmcnt(0)')
        if u < 3:
            g('s_addk_i32 m0, 1152')
            g(f's_add_u32 {S_OFF}, {S_OFF}, 32768')
    g('L_X_nouv:')
    omega_dma(g, 5, S_T3, S_T4)
    g.stamp(6)
    g(f'v_add_u32 v7, {LX_WUV - LX_WQ}, v7')
    omega_addr(g, 56, S_T3)
    h4_addr(g, 59)
    act_addrs(g, 120, LX_ACT)
    h4_soff(g)
    g(f'''
    s_cmp_eq_u32 {S_WAVE}, 8
    s_waitcnt vmcnt(4)
    s_barrier
    s_cbranch_scc1 L_X_w8b
    ''')
    for s in range(4):
        g(f'ds_read_b64_tr_b16 v[{64+4*s}:{65+4*s}], v7 offset:{s*9216}')
        g(f'ds_read_b64_tr_b16 v[{66+4*s}:{67+4*s}], v7 offset:{s*9216+4608}')
    block_soff(g, S_T4, WS_H3P)
    g(f'''
    v_and_b32 v8, 3, v0
    v_mul_u32_u24 v9, 272, v8
    v_lshl_add_u32 v9, v2, 4, v9
    v_add_u32 v60, {LX_CC}, v9
    v_lshlrev_b32 v8, 3, v8
    v_add_u32 v61, {LX_MLX}, v8
    s_waitcnt vmcnt(0)
    ''')
    omega_reads(g, 56, 80)
    g.stamp(7)
    g(f'''
    s_cmp_lt_u32 {S_WAVE}, 4
    s_cbranch_scc0 L_X_b4
    ''')
    g(f'''
    s_and_b32 {S_B}, {S_WAVE}, 1
    s_lshr_b32 {S_HG}, {S_WAVE}, 1
    s_lshl_b32 {S_T0}, {S_B}, 1
    s_add_u32 {S_B}, {S_T0}, {S_HG}
    s_lshl_b32 {S_B}, {S_B}, 12
    s_lshr_b32 {S_T0}, {S_H}, 4
    s_lshl_b32 {S_T0}, {S_T0}, 14
    s_and_b32 {S_T1}, {S_H}, 15
    s_lshl_b32 {S_T1}, {S_T1}, 4
    s_add_u32 {S_T0}, {S_T0}, {S_T1}
    s_add_u32 {S_T0}, {S_T0}, {S_B}
    s_add_u32 {S_T0}, {S_T0}, {WS_ML}
    v_and_b32 v8, 3, v0
    v_lshl_add_u32 v8, v2, 2, v8
    v_lshlrev_b32 v62, 8, v8
    s_lshl_b32 {S_T1}, {S_CU}, 14
    s_add_u32 {S_T1}, {S_T1}, {S_B}
    s_add_u32 {S_T1}, {S_T1}, {WS_H3}
    v_lshlrev_b32 v8, 4, v3
    v_lshl_add_u32 v96, v2, 10, v8
    v_and_b32 v8, 1, v0
    v_lshlrev_b32 v8, 4, v8
    v_mov_b32 v9, 0xffff
    v_lshlrev_b32 v9, v8, v9
    ''')
    for t in range(4):
        m = (3 << (2 * t)) * 0x01010101
        g(f's_mov_b32 vcc_lo, 0x{m:08x}')
        g(f's_mov_b32 vcc_hi, 0x{m:08x}')
        g(f'v_cndmask_b32 v{100+t}, 0, v9, vcc')
    g(f'''
    s_mul_i32 {S_T5}, {S_WAVE}, 272
    s_add_u32 {S_T5}, {S_T5}, {LX_CC}
    v_lshlrev_b32 v8, 4, v3
    v_lshl_add_u32 v8, v2, 3, v8
    v_add_u32 v97, {S_T5}, v8
    s_lshl_b32 {S_T5}, {S_WAVE}, 3
    s_add_u32 {S_T5}, {S_T5}, {LX_MLX}
    v_mov_b32 v98, {S_T5}
    ''')
    lp = g.lab('ml')
    g(f'''
    {lp}:
    buffer_load_dwordx4 v[16:19], v62, {SRD_WS}, {S_T0} offen sc1
    ''')
    spin_check(g)
    g(f'''
    s_waitcnt vmcnt(0)
    v_xor_b32 v18, {S_EP}, v18
    v_xor_b32 v19, {S_EP}, v19
    v_or_b32 v8, v18, v19
    v_cmp_ne_u32 vcc, 0, v8
    v_max_f32_dpp v20, v16, v16 quad_perm:[1,0,3,2] {DPPF}
    s_nop 0
    s_cbranch_vccnz {lp}
    ''')
    g.stamp(8)
    def h3_loads():
        for u in range(4):
            g(f'buffer_load_dwordx4 v[{36+4*u}:{39+4*u}], v96, {SRD_WS}, {S_T1} offen offset:{u*256} sc1')
    h3_loads()
    g(f'''
    v_max_f32_dpp v20, v20, v20 quad_perm:[2,3,0,1] {DPPF}
    v_mov_b32 v8, v20
    s_nop 1
    v_permlane16_swap_b32 v8, v20
    v_max_f32 v20, v8, v20
    v_mov_b32 v8, v20
    s_nop 1
    v_permlane32_swap_b32 v8, v20
    v_max_f32 v20, v8, v20
    v_sub_f32 v16, v16, v20
    v_exp_f32 v16, v16
    s_nop 0
    v_cvt_pk_bf16_f32 v22, v16, v16
    v_mul_f32 v21, v16, v17
    s_nop 0
    ''')
    for u in range(4):
        for t in range(4):
            g(f'v_and_b32_dpp v{104+4*u+t}, v22, v{100+t} quad_perm:[{u},{u},{u},{u}] {DPPF}')
        if u == 0:
            g(f'v_add_f32_dpp v21, v21, v21 quad_perm:[1,0,3,2] {DPPF}')
        if u == 1:
            g(f'v_add_f32_dpp v21, v21, v21 quad_perm:[2,3,0,1] {DPPF}')
            g('v_mov_b32 v8, v21')
        if u == 2:
            g('v_permlane16_swap_b32 v8, v21')
            g('v_add_f32 v21, v8, v21')
            g('v_mov_b32 v8, v21')
        if u == 3:
            g('v_permlane32_swap_b32 v8, v21')
            g('v_add_f32 v21, v8, v21')
    g('ds_write_b64 v98, v[20:21]')
    lp = g.lab('h3')
    lp2 = g.lab('h3in')
    g(f's_branch {lp2}')
    g(f'{lp}:')
    h3_loads()
    spin_check(g)
    g(f'{lp2}:')
    for u in range(4):
        g(f's_waitcnt vmcnt({3-u})')
        c = '0' if u == 0 else 'v[12:15]'
        g(f'v_mfma_f32_16x16x32_bf16 v[12:15], v[{104+4*u}:{107+4*u}], v[{36+4*u}:{39+4*u}], {c}')
        if u == 0:
            g('v_max3_u32 v8, v36, v37, v38')
            g('v_max_u32 v8, v8, v39')
        else:
            g(f'v_max3_u32 v8, v8, v{36+4*u}, v{37+4*u}')
            g(f'v_max3_u32 v8, v8, v{38+4*u}, v{39+4*u}')
    g(f'''
    v_cmp_eq_u32 vcc, -1, v8
    s_nop 3
    s_cbranch_vccnz {lp}
    v_cvt_pk_bf16_f32 v12, v12, v13
    v_cvt_pk_bf16_f32 v13, v14, v15
    s_mov_b32 exec_hi, 0
    ds_write_b64 v97, v[12:13]
    s_mov_b32 exec_hi, -1
    ''')
    g.stamp(9)
    g('L_X_b4:')
    g(f'''
    s_waitcnt lgkmcnt(0)
    s_barrier
    ds_read_b64 v[16:17], v61
    ''')
    for s in range(4):
        g(f'ds_read_b128 v[{36+4*s}:{39+4*s}], v60 offset:{s*64}')
    mf = lambda s: f'v_mfma_f32_16x16x32_bf16 v[12:15], v[{64+4*s}:{67+4*s}], v[{36+4*s}:{39+4*s}], ' + ('0' if s == 0 else 'v[12:15]')
    g(f'''
    s_waitcnt lgkmcnt(3)
    {mf(0)}
    v_max_f32_dpp v18, v16, v16 quad_perm:[2,3,0,1] {DPPF}
    s_waitcnt lgkmcnt(2)
    {mf(1)}
    v_sub_f32 v16, v16, v18
    v_exp_f32 v16, v16
    s_waitcnt lgkmcnt(1)
    {mf(2)}
    v_mul_f32 v17, v16, v17
    s_waitcnt lgkmcnt(0)
    {mf(3)}
    v_add_f32_dpp v17, v17, v17 quad_perm:[2,3,0,1] {DPPF}
    v_rcp_f32 v17, v17
    s_nop 0
    v_mul_f32 v16, v16, v17
    s_nop 3
    ''')
    for r in range(4):
        g(f'v_mul_f32 v{12+r}, v{12+r}, v16')
    for r in range(4):
        g(f'v_add_f32_dpp v{12+r}, v{12+r}, v{12+r} quad_perm:[2,3,0,1] {DPPF}')
    g(f's_mov_b64 exec, {S_EXC}')
    for r in range(4):
        g(f'v_bfi_b32 v{12+r}, {S_MASK}, v{12+r}, v6')
    g(f'buffer_store_dwordx4 v[12:15], v11, {SRD_WS}, {S_T4} offen sc1')
    g('s_mov_b64 exec, -1')
    g.stamp(10)
    g('s_branch L_X_o2')
    g('L_X_w8b:')
    gather32_ldsaddr(g, 60, LX_ACT, 64)
    g(f'''
    s_lshl_b32 {S_T1}, {S_CU}, 10
    s_add_u32 {S_T1}, {S_T1}, {WS_H3P}
    s_waitcnt vmcnt(0)
    ''')
    omega_reads(g, 56, 80)
    g('s_barrier')
    gather32(g, 1, S_T1, 60, stamp=11)
    g('s_waitcnt lgkmcnt(0)')
    g('L_X_o2:')
    g('s_barrier')
    omega_compute(g, 120, [80], 6, 59, S_T3)
    omega_store(g, 6, 59, S_T3)
    g.stamp(12)
    g(f'''
    s_cmp_lt_u32 s2, 36
    s_cbranch_scc0 L_END
    s_cmp_eq_u32 {S_WAVE}, 8
    s_cbranch_scc1 L_END
    v_lshrrev_b32 v8, 3, v0
    v_mul_u32_u24 v8, 4608, v8
    v_and_b32 v9, 7, v0
    v_lshl_add_u32 v10, v9, 4, v8
    s_mul_i32 {S_T0}, {S_WAVE}, {32*4608}
    s_lshl_b32 {S_T1}, s2, 7
    s_add_u32 {S_T0}, {S_T0}, {S_T1}
    s_add_u32 {S_T0}, {S_T0}, {WS_H4}
    s_add_u32 {S_T1}, {S_T0}, {8*4608}
    s_add_u32 {S_T2}, {S_T0}, {16*4608}
    s_add_u32 {S_T3}, {S_T0}, {24*4608}
    s_lshr_b32 {S_T4}, s2, 2
    s_lshl_b32 {S_T4}, {S_T4}, 7
    s_and_b32 {S_T5}, s2, 1
    s_lshl_b32 {S_T5}, {S_T5}, 6
    s_add_u32 {S_T4}, {S_T4}, {S_T5}
    s_bfe_u32 {S_T5}, s2, 0x10001
    s_mul_i32 {S_T5}, {S_T5}, 1152
    s_add_u32 {S_T5}, {S_T5}, {S_T4}
    v_and_b32 v11, 31, v0
    v_lshlrev_b32 v56, 1, v11
    buffer_load_ushort v57, v56, {SRD_X}, {S_T5} offen
    buffer_load_ushort v58, v56, {SRD_B2}, {S_T4} offen
    v_and_b32 v8, 1, v2
    v_lshrrev_b32 v59, 1, v2
    v_lshl_add_u32 v8, v8, 1, v59
    v_lshl_add_u32 v8, v9, 2, v8
    v_lshlrev_b32 v8, 5, v8
    v_lshl_add_u32 v8, {S_WAVE}, 2, v8
    v_add_u32 v59, {LX_FIN}, v8
    v_lshrrev_b32 v8, 5, v0
    v_lshlrev_b32 v8, 4, v8
    v_lshl_add_u32 v8, v11, 5, v8
    v_add_u32 v60, {LX_FIN}, v8
    ''')
    lp = g.lab('h4')
    g(f'{lp}:')
    for u, sr in enumerate((S_T0, S_T1, S_T2, S_T3)):
        g(f'buffer_load_dwordx4 v[{16+4*u}:{19+4*u}], v10, {SRD_WS}, {sr} offen sc1')
    spin_check(g)
    g('s_waitcnt vmcnt(0)')
    tagged_check(g, range(16, 32), 8)
    g(f'''
    v_pk_add_f32 v[16:17], v[16:17], v[20:21]
    v_pk_add_f32 v[18:19], v[18:19], v[22:23]
    s_cbranch_vccnz {lp}
    ''')
    g.stamp(13)
    g(f'''
    v_pk_add_f32 v[24:25], v[24:25], v[28:29]
    v_pk_add_f32 v[26:27], v[26:27], v[30:31]
    v_pk_add_f32 v[16:17], v[16:17], v[24:25]
    v_pk_add_f32 v[18:19], v[18:19], v[26:27]
    s_nop 0
    v_permlane32_swap_b32 v16, v17
    v_permlane32_swap_b32 v18, v19
    v_add_f32 v16, v16, v17
    v_add_f32 v18, v18, v19
    s_nop 1
    v_permlane16_swap_b32 v16, v18
    v_add_f32 v16, v16, v18
    s_nop 1
    v_add_f32_dpp v16, v16, v16 row_ror:8 {DPPF}
    ds_write_b32 v59, v16
    v_lshlrev_b32 v57, 16, v57
    v_lshlrev_b32 v58, 16, v58
    v_add_f32 v57, v57, v58
    s_cmp_eq_u32 {S_WAVE}, 0
    s_waitcnt lgkmcnt(0)
    s_barrier
    s_cbranch_scc0 L_END
    ds_read_b128 v[16:19], v60
    s_waitcnt lgkmcnt(0)
    v_pk_add_f32 v[16:17], v[16:17], v[18:19]
    v_add_f32 v16, v16, v17
    v_mov_b32 v17, v16
    s_nop 1
    v_permlane32_swap_b32 v16, v17
    v_add_f32 v16, v16, v17
    v_add_f32 v16, v16, v57
    v_cvt_pk_bf16_f32 v16, v16, v16
    s_mov_b32 exec_hi, 0
    buffer_store_short v16, v56, {SRD_OUT}, {S_T5} offen
    s_cmp_eq_u32 s2, 0
    s_cbranch_scc0 L_END
    v_mov_b32 v17, {S_EP}
    v_mov_b32 v18, 0
    buffer_store_dword v17, v18, {SRD_WS}, 0 offen
    s_branch L_END
    ''')

    g.L.append('.p2align 7')
    g('L_Y:')
    g(f'''
    s_cmp_ge_u32 s2, 256
    s_cbranch_scc1 L_EXIT
    ''')
    post = []
    post += srd(g, SRD_A, 8, 2 * 4096 * 1024)
    post += srd(g, SRD_WS, 104, WS_SIZE)
    post += srd(g, SRD_X, 0, 2304)
    post += srd(g, SRD_B, 56, 576 * 9216)
    post += srd(g, SRD_C, 64, 9216)
    post += srd(g, SRD_O, 72, 4608 * 1152)
    lane_consts(g)
    g(f'''
    s_cmp_eq_u32 {S_WAVE}, 8
    s_cbranch_scc0 L_Y_nopf
    ''')
    code_prefetch(g)
    g('L_Y_nopf:')
    for p in post:
        g(p)
    rot = o.get('rot', 1)
    g(f'''
    s_sub_u32 {S_Y}, s2, 128
    s_bfe_u32 {S_HG}, {S_Y}, 0x10003
    s_and_b32 {S_T0}, {S_Y}, 7
    s_lshl_b32 {S_T0}, {S_T0}, 3
    s_lshr_b32 {S_T1}, {S_Y}, 4
    s_add_u32 {S_SPLIT}, {S_T0}, {S_T1}
    s_lshr_b32 {S_B}, {S_SPLIT}, 5
    s_lshl_b32 {S_OFF}, {S_SPLIT}, 17
    s_lshl_b32 {S_T0}, {S_WAVE}, 13
    s_add_u32 {S_OFF}, {S_OFF}, {S_T0}
    s_lshl_b32 {S_T0}, {S_HG}, 16
    ''')
    if rot:
        g(f's_add_u32 {S_OFF}, {S_OFF}, {S_T0}')
    g(f'''
    s_mul_i32 {S_T0}, {S_WAVE}, 8448
    s_mov_b32 m0, {S_T0}
    s_mul_i32 {S_H}, {S_Y}, 21846
    s_lshr_b32 {S_H}, {S_H}, 16
    s_mul_i32 {S_J}, {S_H}, 3
    s_sub_u32 {S_J}, {S_Y}, {S_J}
    ''')
    misc_consts(g)
    g(f'''
    s_cmp_eq_u32 {S_WAVE}, 8
    s_cbranch_scc1 L_Y_ln
    s_waitcnt lgkmcnt(0)
    s_load_dword {S_EP}, s[12:13], 0
    ''')
    ypace = o.get('ypace', 0)
    for half in range(2):
        for u in range(8):
            g(f'buffer_load_dwordx4 v1, {SRD_A}, {S_OFF} offen offset:{(u&3)*1024} {nt} lds')
            if half == 0 and u < ypace:
                g('s_waitcnt vmcnt(0)')
            if u == 3:
                g('s_addk_i32 m0, 4128')
                g(f's_addk_i32 {S_OFF}, 4096')
            elif u == 7:
                if half == 0:
                    g(f's_add_u32 m0, {S_T0}, {64*1056}')
                    g(f's_xor_b32 {S_OFF}, {S_OFF}, 0x11000')
            else:
                g('s_addk_i32 m0, 32')
                g('s_nop 0')
    g.stamp(1)
    g(f'''
    s_lshl_b32 {S_T1}, {S_B}, 15
    s_lshl_b32 {S_T2}, {S_HG}, 14
    s_add_u32 {S_T1}, {S_T1}, {S_T2}
    s_lshl_b32 {S_T2}, {S_WAVE}, 11
    s_add_u32 {S_T1}, {S_T1}, {S_T2}
    s_add_u32 {S_T1}, {S_T1}, {WS_H2}
    s_mul_i32 {S_T2}, {S_WAVE}, 2112
    s_add_u32 {S_T2}, {S_T2}, {LY_Q}
    v_add_u32 v10, {S_T2}, v1
    s_waitcnt lgkmcnt(0)
    ''')
    make_tag(g)
    g(f'''
    s_cmp_lt_u32 {S_WAVE}, 4
    s_cbranch_scc0 L_Y_pvaddr
    v_mul_u32_u24 v8, 1056, v3
    v_lshl_add_u32 v8, v2, 4, v8
    s_mul_i32 {S_T0}, {S_WAVE}, 33792
    v_add_u32 v4, {S_T0}, v8
    v_add_u32 v5, {LY_Q}, v8
    s_waitcnt vmcnt(0)
    s_barrier
    ''')
    g.stamp(2)
    for ks in range(16):
        for t in range(2):
            g(f'ds_read_b128 v[{40+8*ks+4*t}:{43+8*ks+4*t}], v4 offset:{t*16896+ks*64}')
    g(f'''
    s_branch L_Y_gather
    L_Y_pvaddr:
    v_lshrrev_b32 v8, 2, v0
    v_mul_u32_u24 v8, 1056, v8
    v_and_b32 v9, 3, v0
    v_lshl_add_u32 v8, v9, 3, v8
    s_lshl_b32 {S_T0}, {S_WAVE}, 8
    s_sub_u32 {S_T0}, {S_T0}, 1024
    v_add_u32 v4, {S_T0}, v8
    v_add_u32 v5, 67584, v4
    s_waitcnt vmcnt(0)
    s_barrier
    ''')
    g.stamp(2)
    for ct in range(8):
        for s in range(4):
            a = 4 + (s >> 1)
            off = (s & 1) * 33792 + ct * 32
            g(f'ds_read_b64_tr_b16 v[{40+16*ct+4*s}:{41+16*ct+4*s}], v{a} offset:{off}')
            g(f'ds_read_b64_tr_b16 v[{42+16*ct+4*s}:{43+16*ct+4*s}], v{a} offset:{off+16896}')
    g('L_Y_gather:')
    g.stamp(3)
    lp = g.lab('h2')
    g(f'''
    {lp}:
    buffer_load_dwordx4 v[16:19], v1, {SRD_WS}, {S_T1} offen sc1
    buffer_load_dwordx4 v[20:23], v1, {SRD_WS}, {S_T1} offen offset:1024 sc1
    ''')
    spin_check(g)
    g(f'''
    s_waitcnt vmcnt(0)
    ds_write_b128 v10, v[16:19]
    ds_write_b128 v10, v[20:23] offset:1056
    v_max3_u32 v8, v16, v17, v18
    v_max3_u32 v8, v8, v19, v20
    v_max3_u32 v8, v8, v21, v22
    v_max_u32 v8, v8, v23
    v_cmp_eq_u32 vcc, -1, v8
    s_cmp_lt_u32 {S_WAVE}, 4
    s_waitcnt lgkmcnt(0)
    s_cbranch_vccnz {lp}
    ''')
    g.stamp(5)
    g.stwait()
    g(f'''
    s_barrier
    s_cbranch_scc0 L_Y_nqk
    ''')
    for ks in range(4):
        g(f'ds_read_b128 v[{16+4*ks}:{19+4*ks}], v5 offset:{ks*64}')
    g(f'''
    v_lshlrev_b32 v13, 4, v3
    v_add_u32 v11, {LY_MX}, v13
    v_lshl_add_u32 v10, {S_WAVE}, 2, v11
    s_lshl_b32 {S_T0}, {S_WAVE}, 10
    s_add_u32 {S_T0}, {S_T0}, {LY_P}
    v_add_u32 v12, {S_T0}, v1
    s_mov_b32 {S_T1}, 0x{f2u(SCALE):08x}
    ''')
    for ks in range(16):
        q = 16 + 4 * (ks & 3)
        g(f's_waitcnt lgkmcnt({min(3, 15-ks)})')
        for t in range(2):
            c = '0' if ks == 0 else f'v[{32+4*t}:{35+4*t}]'
            g(f'v_mfma_f32_16x16x32_bf16 v[{32+4*t}:{35+4*t}], v[{40+8*ks+4*t}:{43+8*ks+4*t}], v[{q}:{q+3}], {c}')
        if ks + 4 < 16:
            g(f'ds_read_b128 v[{q}:{q+3}], v5 offset:{(ks+4)*64}')
    g(f'''
    s_nop 6
    v_max3_f32 v8, v32, v33, v34
    v_max3_f32 v8, v8, v35, v36
    v_max3_f32 v8, v8, v37, v38
    v_max_f32 v8, v8, v39
    v_mov_b32 v9, v8
    s_nop 1
    v_permlane16_swap_b32 v8, v9
    v_max_f32 v8, v8, v9
    v_mov_b32 v9, v8
    s_nop 1
    v_permlane32_swap_b32 v8, v9
    v_max_f32 v8, v8, v9
    ds_write_b32 v10, v8
    s_waitcnt lgkmcnt(0)
    s_barrier
    ds_read_b128 v[16:19], v11
    s_waitcnt lgkmcnt(0)
    v_max3_f32 v8, v16, v17, v18
    v_max_f32 v8, v8, v19
    v_mul_f32 v24, {S_T1}, v8
    ''')
    for r in range(8):
        g(f'v_fma_f32 v{32+r}, v{32+r}, {S_T1}, -v24')
    for r in range(8):
        g(f'v_exp_f32 v{32+r}, v{32+r}')
    for r in range(4):
        g(f'v_cvt_pk_bf16_f32 v{16+r}, v{32+2*r}, v{33+2*r}')
    g(f'''
    ds_write_b128 v12, v[16:19]
    v_pk_add_f32 v[32:33], v[32:33], v[34:35]
    v_pk_add_f32 v[36:37], v[36:37], v[38:39]
    v_pk_add_f32 v[32:33], v[32:33], v[36:37]
    v_add_f32 v8, v32, v33
    v_mov_b32 v9, v8
    s_nop 1
    v_permlane16_swap_b32 v8, v9
    v_add_f32 v8, v8, v9
    v_mov_b32 v9, v8
    s_nop 1
    v_permlane32_swap_b32 v8, v9
    v_add_f32 v8, v8, v9
    ds_write_b32 v10, v8 offset:256
    s_waitcnt lgkmcnt(0)
    s_barrier
    ''')
    g.stamp(6)
    g(f'''
    s_cmp_eq_u32 {S_WAVE}, 0
    s_cbranch_scc0 L_Y_b4p
    ds_read_b128 v[16:19], v11 offset:256
    s_lshl_b32 {S_T0}, {S_HG}, 14
    s_lshl_b32 {S_T1}, {S_SPLIT}, 8
    s_add_u32 {S_T0}, {S_T0}, {S_T1}
    s_add_u32 {S_T0}, {S_T0}, {WS_ML}
    v_mov_b32 v26, {S_EP}
    v_mov_b32 v27, {S_EP}
    s_mov_b64 exec, 0xffff
    s_waitcnt lgkmcnt(0)
    v_pk_add_f32 v[16:17], v[16:17], v[18:19]
    v_add_f32 v25, v16, v17
    buffer_store_dwordx4 v[24:27], v13, {SRD_WS}, {S_T0} offen sc1
    s_mov_b64 exec, -1
    s_branch L_Y_b4p
    L_Y_nqk:
    ''')
    def w1_voff():
        g(f'''
        v_lshlrev_b32 v8, 1, v2
        v_xor_b32 v8, v8, v3
        v_lshlrev_b32 v8, 4, v8
        v_mul_u32_u24 v9, 9216, v2
        v_add_u32 v7, v8, v9
        ''')
    def w1_dma():
        g(f'''
        s_mul_i32 {S_OFF}, {S_J}, {192*9216}
        s_mul_i32 {S_T0}, {S_WAVE}, {24*9216}
        s_add_u32 {S_OFF}, {S_OFF}, {S_T0}
        s_lshl_b32 {S_T0}, {S_H}, 8
        s_add_u32 {S_OFF}, {S_OFF}, {S_T0}
        s_mul_i32 {S_T0}, {S_WAVE}, {6*1152}
        s_add_u32 m0, {S_T0}, {LY_W1}
        s_nop 0
        ''')
        for u in range(6):
            g(f'buffer_load_dwordx4 v7, {SRD_B}, {S_OFF} offen {nt} lds')
            if u < 5:
                g('s_addk_i32 m0, 1152')
                g(f's_add_u32 {S_OFF}, {S_OFF}, 36864')
    fearly = o.get('fearly', 1)
    if o.get('nof'):
        fearly = 0
    if fearly:
        w1_voff()
        g(f'''
        s_cmp_lt_u32 {S_Y}, 108
        s_cbranch_scc0 L_Y_nof1a
        ''')
        w1_dma()
        g('L_Y_nof1a:')
    g(f'''
    v_add_u32 v12, {LY_P}, v1
    v_lshlrev_b32 v8, 16, v3
    v_lshl_add_u32 v13, v2, 4, v8
    s_lshl_b32 {S_T0}, {S_HG}, 20
    s_lshl_b32 {S_T1}, {S_WAVE}, 14
    s_add_u32 {S_T0}, {S_T0}, {S_T1}
    s_lshl_b32 {S_T1}, {S_SPLIT}, 8
    s_add_u32 {S_T0}, {S_T0}, {S_T1}
    s_add_u32 {S_T0}, {S_T0}, {WS_H3 - 4*16384}
    s_barrier
    s_barrier
    ''')
    for s in range(4):
        g(f'ds_read_b128 v[{16+4*s}:{19+4*s}], v12 offset:{s*1024}')
    def accreg(u):
        return 32 if u == 0 else 40 + 32 * (u - 1)
    def pack_store(u):
        a = accreg(u)
        p = 40 + 32 * u + 16
        for r in range(4):
            g(f'v_cvt_pk_bf16_f32 v{p+r}, v{a+2*r}, v{a+2*r+1}')
        g(f'buffer_store_dwordx4 v[{p}:{p+3}], v13, {SRD_WS}, {S_T0} offen offset:{u*64} sc1')
    for u in range(4):
        a = accreg(u)
        for s in range(4):
            if u == 0:
                g(f's_waitcnt lgkmcnt({3-s})')
            for t in range(2):
                ct = 2 * u + t
                c = '0' if s == 0 else f'v[{a+4*t}:{a+4*t+3}]'
                g(f'v_mfma_f32_16x16x32_bf16 v[{a+4*t}:{a+4*t+3}], v[{40+16*ct+4*s}:{43+16*ct+4*s}], v[{16+4*s}:{19+4*s}], {c}')
        if u > 0:
            pack_store(u - 1)
    g('s_nop 2')
    pack_store(3)
    g.stamp(7)
    g('s_branch L_Y_b4p')
    g('L_Y_ln:')
    g(f's_mul_i32 {S_T1}, {S_J}, 384')
    layernorm_loads(g, S_T1)
    g(f's_load_dword {S_EP}, s[12:13], 0')
    zero_act(g, LY_ACT)
    g('s_waitcnt vmcnt(0)')
    layernorm_compute(g, LY_XN)
    g(f'''
    s_lshl_b32 {S_T0}, {S_HG}, 10
    s_add_u32 {S_T0}, {S_T0}, {WS_SIG}
    s_waitcnt lgkmcnt(0)
    ''')
    make_tag(g)
    lp = g.lab('sig')
    g(f'''
    {lp}:
    buffer_load_dwordx4 v[16:19], v1, {SRD_WS}, {S_T0} offen sc1
    ''')
    spin_check(g)
    g('s_waitcnt vmcnt(0)')
    tagged_check(g, range(16, 20), 8)
    g('s_nop 1')
    g(f's_cbranch_vccnz {lp}')
    g.stamp(4)
    g(f'''
    s_barrier
    s_barrier
    s_barrier
    s_barrier
    L_Y_b4p:
    ''')
    if o.get('nof'):
        g(f's_mov_b32 {S_Y}, 127')
    w1_voff()
    omega_voff(g, 5)
    g(f'''
    s_mul_i32 {S_T2}, {S_WAVE}, 4352
    s_add_u32 {S_T3}, {S_T2}, {LY_WOA}
    s_lshl_b32 {S_T0}, {S_Y}, 1
    s_sub_u32 {S_T0}, {S_T0}, 108
    s_cmp_lt_u32 {S_Y}, 108
    s_cselect_b32 {S_CU}, {S_Y}, {S_T0}
    s_mul_i32 {S_T4}, {S_CU}, 36864
    s_lshl_b32 {S_T0}, {S_WAVE}, 7
    s_add_u32 {S_T4}, {S_T4}, {S_T0}
    s_barrier
    s_cmp_lt_u32 {S_Y}, 108
    s_cbranch_scc0 L_Y_f2only
    s_cmp_lt_u32 {S_WAVE}, {4 if fearly else 8}
    s_cbranch_scc0 L_Y_nof1b
    ''')
    w1_dma()
    g('L_Y_nof1b:')
    if o.get('yb6'):
        g('s_barrier')
    omega_dma(g, 5, S_T3, S_T4)
    g.stamp(8)
    omega_addr(g, 56, S_T3)
    h4_addr(g, 59)
    act_addrs(g, 120, LY_ACT)
    h4_soff(g)
    def bias_load(dst, off):
        g(f'buffer_load_dwordx2 v[{dst}:{dst+1}], v62, {SRD_C}, {S_T0} offen offset:{off}')
    def bias_addr():
        g(f'''
        v_and_b32 v8, 3, v0
        v_bfe_u32 v9, v0, 3, 1
        v_lshlrev_b32 v8, 3, v8
        v_lshl_add_u32 v62, v9, 5, v8
        s_lshl_b32 {S_T0}, {S_CU}, 6
        s_lshl_b32 {S_T1}, {S_CU}, 10
        s_add_u32 {S_T1}, {S_T1}, {WS_HF}
        ''')
    def bias_unpack(src):
        g(f'''
        v_lshlrev_b32 v16, 16, v{src}
        v_and_b32 v17, 0xffff0000, v{src}
        v_lshlrev_b32 v18, 16, v{src+1}
        v_and_b32 v19, 0xffff0000, v{src+1}
        ''')
    g(f'''
    s_cmp_eq_u32 {S_WAVE}, 8
    s_cbranch_scc1 L_Y_w8c
    ''')
    alpha_addr(g, 7, LY_W1)
    block_soff(g, S_T0, WS_HF)
    g(f'''
    v_and_b32 v8, 1, v0
    v_lshlrev_b32 v9, 9, v8
    v_lshl_add_u32 v10, v2, 3, v9
    v_add_u32 v10, {LY_XN}, v10
    v_lshlrev_b32 v8, 6, v8
    v_lshl_add_u32 v61, v2, 4, v8
    s_waitcnt vmcnt(4)
    s_barrier
    ''')
    g.stamp(9)
    for s in range(6):
        g(f'ds_read_b64_tr_b16 v[{64+4*s}:{65+4*s}], v7 offset:{s*9216}')
        g(f'ds_read_b64_tr_b16 v[{66+4*s}:{67+4*s}], v7 offset:{s*9216+4608}')
        g(f'ds_read2_b64 v[{96+4*s}:{99+4*s}], v10 offset0:{8*s} offset1:{8*s+4}')
    g.stwait()
    for s in range(6):
        g(f's_waitcnt lgkmcnt({15-3*s})')
        c = '0' if s == 0 else 'v[12:15]'
        g(f'v_mfma_f32_16x16x32_bf16 v[12:15], v[{64+4*s}:{67+4*s}], v[{96+4*s}:{99+4*s}], {c}')
    g('s_nop 6')
    g(f's_mov_b64 exec, {S_EXC}')
    for r in range(4):
        g(f'v_bfi_b32 v{12+r}, {S_MASK}, v{12+r}, v6')
    g(f'buffer_store_dwordx4 v[12:15], v61, {SRD_WS}, {S_T0} offen sc1')
    g('s_mov_b64 exec, -1')
    g.stamp(10)
    g('s_waitcnt vmcnt(1)')
    omega_reads(g, 56, 80)
    g('s_branch L_Y_f2c')
    g('L_Y_w8c:')
    bias_addr()
    bias_load(28, 0)
    gather32_ldsaddr(g, 60, LY_ACT, 64)
    g('s_barrier')
    g('s_waitcnt vmcnt(0)')
    omega_reads(g, 56, 80)
    bias_unpack(28)
    gather32(g, 1, S_T1, 60, act=True, stamp=11)
    g('s_waitcnt lgkmcnt(0)')
    g('L_Y_f2c:')
    g('s_barrier')
    omega_compute(g, 120, [80], 6, 59, S_T3)
    g('s_branch L_Y_fin')
    g('L_Y_f2only:')
    h4_addr(g, 59)
    g(f'''
    s_cmp_lt_u32 {S_Y}, 126
    s_cbranch_scc1 L_Y_f2two
    ''')
    h4_soff(g)
    for r in range(4):
        g(f'v_mov_b32 v{12+r}, 0')
    g('s_branch L_Y_fin')
    g('L_Y_f2two:')
    omega_dma(g, 5, S_T3, S_T4)
    g(f'''
    s_add_u32 {S_T4}, {S_T4}, 36864
    s_add_u32 {S_T2}, {S_T2}, {LY_WOB}
    ''')
    omega_dma(g, 5, S_T2, S_T4)
    g.stamp(8)
    omega_addr(g, 56, S_T3)
    omega_addr(g, 64, S_T2)
    act_addrs(g, 120, LY_ACT)
    h4_soff(g)
    g(f'''
    s_cmp_lt_u32 {S_WAVE}, 7
    s_cbranch_scc1 L_Y_f2w
    s_sub_u32 {S_T5}, 8, {S_WAVE}
    s_add_u32 {S_CU}, {S_CU}, {S_T5}
    ''')
    bias_addr()
    bias_load(28, 0)
    gather32_ldsaddr(g, 60, LY_ACT, 64)
    g(f'v_lshl_add_u32 v60, {S_T5}, 7, v60')
    g('s_waitcnt vmcnt(0)')
    bias_unpack(28)
    gather32(g, 1, S_T1, 60, act=True, stamp=11)
    g('L_Y_f2w:')
    g('s_waitcnt vmcnt(0)')
    omega_reads(g, 56, 80)
    omega_reads(g, 64, 96)
    g('s_waitcnt lgkmcnt(0)')
    g('s_barrier')
    omega_compute(g, 120, [80, 96], 6, 59, S_T3)
    g('L_Y_fin:')
    omega_store(g, 6, 59, S_T3)
    g.stamp(12)
    g('L_END:')
    if stamps:
        g.stamp(15)
        g(f'''
        s_mov_b64 exec, 1
        s_mul_i32 {S_T0}, s2, 9
        s_add_u32 {S_T0}, {S_T0}, {S_WAVE}
        s_lshl_b32 {S_T0}, {S_T0}, 6
        s_add_u32 {S_T0}, {S_T0}, {WS_ST}
        v_mov_b32 v8, 0
        s_waitcnt lgkmcnt(0)
        ''')
        for k in range(16):
            g(f'v_mov_b32 v9, s{60+2*k}')
            g(f'buffer_store_dword v9, v8, {SRD_WS}, {S_T0} offen offset:{4*k}')
    g('L_EXIT:')
    g('s_endpgm')
    g.L.append('.fill 2048, 4, 0xbf810000')
    g.L.append('.section .rodata,"a"')
    g.L.append('.p2align 6')
    g.L.append(f'.amdhsa_kernel {NAME}_kernel')
    g.L.append('  .amdhsa_next_free_vgpr 168')
    g.L.append('  .amdhsa_next_free_sgpr 96')
    g.L.append('  .amdhsa_accum_offset 168')
    g.L.append('  .amdhsa_group_segment_fixed_size 0')
    g.L.append('  .amdhsa_kernarg_size 112')
    g.L.append('  .amdhsa_user_sgpr_count 2')
    g.L.append('  .amdhsa_user_sgpr_kernarg_segment_ptr 1')
    g.L.append('  .amdhsa_system_sgpr_workgroup_id_x 1')
    g.L.append('.end_amdhsa_kernel')
    return g.text()


def parse_opts(args):
    o = {}
    for a in args:
        if '=' in a:
            k, v = a.split('=')
            o[k] = int(v)
    return o


if __name__ == '__main__':
    out = sys.argv[1]
    stamps = 'stamps' in sys.argv[2:]
    nt = '' if 'nont' in sys.argv[2:] else 'nt'
    open(out, 'w').write(gen(stamps, nt, parse_opts(sys.argv[2:])))
```

```python
import sys, math, struct

NAME = 'parallel_sum__compressed_kv_cla__dense_activation_squared_relu__decode'

WS_H1 = 0x10000
WS_H2 = 0x30000
WS_H3P = 0x40000
WS_HF = 0x60000
WS_M = 0x90000
WS_L = 0x94000
WS_F2 = 0xA0000
WS_H4 = 0x100000
WS_H3 = 0x300000
WS_ST = 0x600000
WS_SIZE = 0x800000

LX_WQ = 0
LX_WUK = 41472
LX_WUV = LX_WUK + 33280
LX_W1 = 0
LX_WO = 0
LX_XN = LX_WUV + 36864
LX_QP = LX_XN + 2048
LX_CC = LX_QP + 1024
LX_FIN = LX_CC + 1280
LX_ACT = LX_FIN + 1536
LX_END = LX_ACT + 256
LY_CKV = 0
LY_Q = 135168
LY_P = LY_Q + 16896
LY_MX = LY_P + 4096
LY_LX = LY_MX + 256
LY_ACT = LY_LX + 256
LY_END = LY_ACT + 256
LY_WOA = 0
LY_WOB = 36864
LDS_BYTES = max(LX_END, LY_END)

SCALE = (128 ** -0.5) * math.log2(math.e)


def f2u(x):
    return struct.unpack('<I', struct.pack('<f', x))[0]


class G:
    def __init__(self, stamps=False, nt='nt', opts=None):
        self.L = []
        self.stamps = stamps
        self.nt = nt
        self.o = opts or {}
        self.nlab = 0

    def __call__(self, s):
        for line in s.strip('\n').split('\n'):
            line = line.strip()
            if not line:
                continue
            if line.endswith(':'):
                self.L.append(line)
            else:
                self.L.append('    ' + line)

    def lab(self, p):
        self.nlab += 1
        return f'L_{p}_{self.nlab}'

    def stamp(self, k):
        if self.stamps:
            self(f's_memrealtime s[{64+2*k}:{65+2*k}]')

    def stwait(self):
        if self.stamps:
            self('s_waitcnt lgkmcnt(0)')

    def text(self):
        return '\n'.join(self.L) + '\n'


S_WAVE = 's3'
S_CU = 's4'
S_H = 's5'
S_J = 's6'
S_T0 = 's7'
SRD_A = 's[8:11]'
SRD_WS = 's[12:15]'
SRD_X = 's[16:19]'
SRD_B = 's[20:23]'
SRD_C = 's[24:27]'
SRD_O = 's[28:31]'
SRD_B2 = 's[32:35]'
SRD_OUT = 's[36:39]'
S_TAG = 's40'
S_EP = 's41'
S_SPIN = 's42'
S_MASK = 's43'
S_OFF = 's44'
S_T1 = 's45'
S_T2 = 's46'
S_T3 = 's47'
S_EXC = 's[48:49]'
S_B = 's50'
S_SPLIT = 's51'
S_HG = 's52'
S_Y = 's53'
S_PC = 's[54:55]'
S_TAG2 = 's56'
S_MASK2 = 's57'
S_T4 = 's58'
S_T5 = 's59'
SRD_W1 = 's[60:63]'
S_CG = 's96'
S_RS = 's97'
S_CMP = 's[98:99]'
DPPF = 'row_mask:0xf bank_mask:0xf'
MF = 'v_mfma_f32_16x16x32_bf16'


def R(a, n=4):
    return f'v[{a}:{a+n-1}]'


def srd(g, name, karg_off, nbytes):
    n = int(name[2:name.index(':')])
    g(f's_load_dwordx2 s[{n}:{n+1}], s[0:1], {karg_off}')
    return [f's_mov_b32 s{n+2}, {nbytes}', f's_mov_b32 s{n+3}, s11']


def spin_check(g):
    g(f's_sub_u32 {S_SPIN}, {S_SPIN}, 1')
    g('s_cbranch_scc1 L_END')


def or_chain(g, acc, rs, first):
    rs = list(rs)
    if first:
        g(f'v_or3_b32 v{acc}, v{rs[0]}, v{rs[1]}, v{rs[2]}')
        rs = rs[3:]
    while len(rs) >= 2:
        g(f'v_or3_b32 v{acc}, v{acc}, v{rs[0]}, v{rs[1]}')
        rs = rs[2:]
    if rs:
        g(f'v_or_b32 v{acc}, v{acc}, v{rs[0]}')


def tagged_check(g, regs, acc):
    for r in regs:
        g(f'v_xor_b32 v{r}, {S_TAG}, v{r}')
    or_chain(g, acc, regs, True)
    g(f'v_and_b32 v{acc}, 0xfff, v{acc}')
    g(f'v_cmp_ne_u32 vcc, 0, v{acc}')


def gather32(g, vaddr, soff, vlds, lds_off=0, act=False, stamp=None):
    lp = g.lab('g32')
    if act:
        g('s_mov_b32 exec_hi, 0xffff')
    g(f'''
    {lp}:
    buffer_load_dwordx4 v[16:19], v{vaddr}, {SRD_WS}, {soff} offen sc1
    ''')
    spin_check(g)
    g('s_waitcnt vmcnt(0)')
    tagged_check(g, range(16, 20), 8)
    if act:
        g('s_nop 1')
        g(f's_cbranch_vccnz {lp}')
        g('s_mov_b32 exec_hi, -1')
        g('v_permlane32_swap_b32 v16, v17')
        g('v_permlane32_swap_b32 v18, v19')
    else:
        g('v_permlane32_swap_b32 v16, v17')
        g('v_permlane32_swap_b32 v18, v19')
        g(f's_cbranch_vccnz {lp}')
    if stamp is not None:
        g.stamp(stamp)
    g(f'''
    v_add_f32 v16, v16, v17
    v_add_f32 v18, v18, v19
    s_nop 1
    v_permlane16_swap_b32 v16, v18
    v_add_f32 v16, v16, v18
    ''')
    if act:
        g('v_max_f32 v16, 0, v16')
        g('v_mul_f32 v16, v16, v16')
    g('v_cvt_pk_bf16_f32 v16, v16, v16')
    g(f'ds_write_b16 v{vlds}, v16 offset:{lds_off}')


def gather32_ldsaddr(g, dst, base, bstride):
    g(f'''
    v_and_b32 v8, 1, v2
    v_lshl_add_u32 v8, v3, 1, v8
    v_lshrrev_b32 v9, 1, v2
    v_mul_u32_u24 v9, {bstride}, v9
    v_lshl_add_u32 v8, v8, 1, v9
    v_add_u32 v{dst}, {base}, v8
    ''')


def layernorm_loads(g, off_q, off_f):
    g(f'''
    v_lshrrev_b32 v8, 5, v0
    v_mul_u32_u24 v8, 1152, v8
    v_and_b32 v9, 31, v0
    v_lshl_add_u32 v8, v9, 4, v8
    v_cmp_gt_u32 vcc, 8, v9
    v_mov_b32 v9, 0x7fff0000
    s_nop 0
    v_cndmask_b32 v9, v9, v8, vcc
    s_waitcnt lgkmcnt(0)
    buffer_load_dwordx4 v[10:13], v8, {SRD_X}, 0 offen
    buffer_load_dwordx4 v[14:17], v8, {SRD_X}, 0 offen offset:512
    buffer_load_dwordx4 v[18:21], v9, {SRD_X}, 0 offen offset:1024
    buffer_load_dwordx4 v[22:25], v8, {SRD_X}, {off_q} offen
    buffer_load_dwordx4 v[128:131], v8, {SRD_X}, {off_f} offen
    ''')


def layernorm_stats(g):
    g(f's_mov_b32 {S_T1}, 0x3f803f80')
    g('v_mov_b32 v26, 0')
    g('v_mov_b32 v27, 0')
    for r in range(10, 22):
        g(f'v_dot2c_f32_bf16 v26, {S_T1}, v{r}')
        g(f'v_dot2c_f32_bf16 v27, v{r}, v{r}')
    g('s_nop 2')
    for k in (1, 2, 4, 8):
        g(f'v_add_f32_dpp v26, v26, v26 row_ror:{k} {DPPF}')
        g(f'v_add_f32_dpp v27, v27, v27 row_ror:{k} {DPPF}')
        g('s_nop 0')
    g(f'''
    v_mov_b32 v28, v26
    v_mov_b32 v29, v27
    s_nop 0
    v_permlane16_swap_b32 v26, v28
    v_permlane16_swap_b32 v27, v29
    v_add_f32 v26, v26, v28
    v_add_f32 v27, v27, v29
    v_mul_f32 v26, 0x{f2u(1.0/576):08x}, v26
    v_mul_f32 v27, 0x{f2u(1.0/576):08x}, v27
    v_fma_f32 v27, -v26, v26, v27
    v_max_f32 v27, 0, v27
    v_cvt_pk_bf16_f32 v26, v26, v27
    v_and_b32 v27, 0xffff0000, v26
    v_lshlrev_b32 v132, 16, v26
    v_add_f32 v27, 0x{f2u(1e-5):08x}, v27
    v_cvt_pk_bf16_f32 v27, v27, v27
    v_and_b32 v27, 0xffff0000, v27
    v_sqrt_f32 v27, v27
    s_nop 0
    v_cvt_pk_bf16_f32 v27, v27, v27
    v_and_b32 v27, 0xffff0000, v27
    v_rcp_f32 v133, v27
    ''')


def layernorm_addr(g):
    g(f'''
    v_lshrrev_b32 v8, 2, v0
    v_lshlrev_b32 v8, 6, v8
    v_and_b32 v9, 1, v0
    v_lshl_add_u32 v8, v9, 5, v8
    v_bfe_u32 v9, v0, 1, 1
    v_lshl_add_u32 v8, v9, 3, v8
    v_add_u32 v134, {LX_XN}, v8
    ''')


def layernorm_slice(g, r0, off8):
    for r in range(r0, r0 + 4):
        g(f'''
        v_lshlrev_b32 v28, 16, v{r}
        v_and_b32 v29, 0xffff0000, v{r}
        v_sub_f32 v28, v28, v132
        v_sub_f32 v29, v29, v132
        v_cvt_pk_bf16_f32 v29, v28, v29
        v_lshlrev_b32 v28, 16, v29
        v_and_b32 v29, 0xffff0000, v29
        v_mul_f32 v28, v28, v133
        v_mul_f32 v29, v29, v133
        v_cvt_pk_bf16_f32 v{r}, v28, v29
        ''')
    g(f'ds_write2_b64 v134, v[{r0}:{r0+1}], v[{r0+2}:{r0+3}] offset0:{off8} offset1:{off8+2}')


def alpha_addr(g, dst, tile_sgpr):
    g(f'''
    v_lshrrev_b32 v8, 2, v3
    v_bfe_u32 v9, v0, 1, 1
    v_lshl_add_u32 v9, {tile_sgpr}, 1, v9
    v_lshlrev_b32 v{dst}, 1, v8
    v_xor_b32 v9, v9, v{dst}
    v_lshlrev_b32 v9, 4, v9
    v_lshl_add_u32 v9, v8, 8, v9
    v_and_b32 v8, 1, v0
    v_lshl_add_u32 v9, v8, 3, v9
    v_mul_u32_u24 v8, 1152, v2
    v_add_u32 v{dst}, v8, v9
    ''')


def omega_src(g, dst, n, first_sgpr):
    g(f'''
    v_lshrrev_b32 v8, 3, v0
    v_lshl_add_u32 v8, {first_sgpr}, 3, v8
    v_mul_u32_u24 v8, 57, v8
    ''')
    for k in range(n):
        g(f'''
        v_bfe_u32 v9, v8, 10, 1
        v_bfe_u32 v{dst+k}, v8, 12, 1
        v_lshl_add_u32 v9, v{dst+k}, 1, v9
        v_lshlrev_b32 v9, 5, v9
        v_xor_b32 v{dst+k}, v9, v1
        ''')
        if k < n - 1:
            g('v_add_u32 v8, 456, v8')


def omega_addr(g, dst):
    g(f'''
    v_lshrrev_b32 v8, 2, v3
    v_lshl_add_u32 v9, v2, 3, v8
    v_mul_u32_u24 v9, 1152, v9
    v_lshl_add_u32 v9, {S_WAVE}, 7, v9
    v_and_b32 v{dst}, 3, v0
    v_lshl_add_u32 v9, v{dst}, 3, v9
    v_lshrrev_b32 v8, 1, v8
    v_and_b32 v{dst}, 1, v2
    v_lshl_add_u32 v8, v{dst}, 1, v8
    v_lshl_add_u32 v{dst}, v8, 5, v9
    v_xor_b32 v{dst+1}, 32, v{dst}
    v_xor_b32 v{dst+2}, 64, v{dst}
    v_xor_b32 v{dst+3}, 0x60, v{dst}
    ''')


def omega_reads(g, addr, dst, base):
    for t in range(4):
        g(f'ds_read_b64_tr_b16 {R(dst+4*t,2)}, v{addr+t} offset:{base}')
        g(f'ds_read_b64_tr_b16 {R(dst+4*t+2,2)}, v{addr+t} offset:{base+4608}')


def act_addr(g, dst, act):
    g(f'''
    v_and_b32 v8, 1, v0
    v_lshlrev_b32 v8, 6, v8
    v_lshl_add_u32 v8, v2, 4, v8
    v_add_u32 v{dst}, {act}, v8
    ''')


def omega_finish(g, aaddr, wregs, vaddr, soff):
    n = len(wregs)
    for k in range(n):
        g(f'ds_read_b128 {R(20+4*k)}, v{aaddr} offset:{128*k}')
    g(f'''
    s_mov_b32 s98, 0xffff0000
    s_mov_b32 s99, 0xffff0000
    s_mov_b32 vcc_lo, 0
    s_mov_b32 vcc_hi, -1
    ''')
    g.stwait()
    for k in range(n):
        g(f's_waitcnt lgkmcnt({n-1-k})')
        for t in range(4):
            c = '0' if k == 0 else R(36 + 4 * t)
            g(f'{MF} {R(36+4*t)}, {R(20+4*k)}, {R(wregs[k]+4*t)}, {c}')
    g(f'''
    s_nop 5
    v_cndmask_b32 v36, v36, v40, {S_CMP}
    v_cndmask_b32 v37, v37, v41, {S_CMP}
    v_cndmask_b32 v44, v44, v48, {S_CMP}
    v_cndmask_b32 v45, v45, v49, {S_CMP}
    v_cndmask_b32 v36, v36, v44, vcc
    v_cndmask_b32 v37, v37, v45, vcc
    v_bfi_b32 v36, {S_MASK}, v36, v6
    v_bfi_b32 v37, {S_MASK}, v37, v6
    buffer_store_dwordx2 v[36:37], v{vaddr}, {SRD_WS}, {soff} offen sc1
    ''')


def h4_soff(g, prod):
    g(f'''
    s_mul_i32 {S_T3}, {prod}, 4608
    s_lshl_b32 {S_T4}, {S_WAVE}, 9
    s_add_u32 {S_T3}, {S_T3}, {S_T4}
    s_add_u32 {S_T3}, {S_T3}, {WS_H4}
    ''')


def lane_consts(g):
    g(f'''
    v_lshrrev_b32 v1, 6, v0
    v_and_b32 v0, 63, v0
    v_readfirstlane_b32 {S_WAVE}, v1
    v_lshlrev_b32 v1, 4, v0
    v_lshrrev_b32 v2, 4, v0
    v_and_b32 v3, 15, v0
    ''')


def misc_consts(g):
    g(f'''
    s_mov_b32 {S_SPIN}, 0x100000
    s_mov_b32 {S_MASK}, 0xfffff000
    s_mov_b32 {S_MASK2}, 0xfffefffe
    ''')


def make_tag(g):
    g(f'''
    s_add_u32 {S_EP}, {S_EP}, 1
    s_and_b32 {S_TAG}, {S_EP}, 0xfff
    s_andn2_b32 {S_TAG2}, {S_EP}, {S_MASK2}
    v_mov_b32 v6, {S_EP}
    ''')


def bias_prep(g, blk):
    g(f'''
    v_lshlrev_b32 v62, 2, v3
    s_lshl_b32 {S_T0}, {blk}, 6
    s_lshl_b32 {S_T1}, {blk}, 10
    s_add_u32 {S_T1}, {S_T1}, {WS_HF}
    buffer_load_dword v28, v62, {SRD_C}, {S_T0} offen
    ''')


def bias_unpack(g):
    g(f'''
    v_lshlrev_b32 v16, 16, v28
    v_lshlrev_b32 v17, 16, v28
    v_and_b32 v18, 0xffff0000, v28
    v_and_b32 v19, 0xffff0000, v28
    ''')


def gen(stamps=False, nt='nt', opts=None):
    g = G(stamps, nt, opts)
    o = g.o
    hdr = open('cdna_kernels/' + NAME + '.s.ref').read().split('\n')
    for line in hdr:
        if line.startswith('; @launch'):
            break
        g.L.append(line)
    g.L.append(f'; @launch grid=(256,1,1) block=(576,1,1) lds={LDS_BYTES}')
    g.L.append('.amdgcn_target "amdgcn-amd-amdhsa--gfx950"')
    g.L.append('.text')
    g.L.append(f'.globl {NAME}_kernel')
    g.L.append('.p2align 12')
    g.L.append(f'.type {NAME}_kernel,@function')
    g.L.append(f'{NAME}_kernel:')
    g.stamp(0)
    if o.get('hold'):
        g('s_memrealtime s[92:93]')

    def clear_stamps():
        if stamps:
            for k in range(2, 16):
                g(f's_mov_b32 s{64+2*k}, 0')
    g(f'''
    s_load_dwordx2 s[16:17], s[0:1], 0
    s_load_dwordx2 s[12:13], s[0:1], 104
    s_cmp_ge_u32 s2, 256
    s_cbranch_scc1 L_EXIT
    s_getpc_b64 {S_PC}
    s_bfe_u32 s3, s2, 0x30003
    s_mul_i32 s3, s3, 1536
    v_lshl_add_u32 v8, v0, 7, s3
    v_cmp_gt_u32 vcc, 12, v0
    s_and_saveexec_b64 s[4:5], vcc
    s_cbranch_execz L_nopf
    global_load_dword v30, v8, {S_PC} offset:1024
    L_nopf:
    s_mov_b64 exec, -1
    ''')
    lane_consts(g)
    g(f'''
    s_mov_b32 s11, 0x20000
    s_mov_b32 s15, s11
    s_mov_b32 s14, {WS_SIZE}
    s_cmp_ge_u32 s2, 128
    s_cbranch_scc1 L_Y
    ''')
    g(f'''
    s_load_dwordx2 s[8:9], s[0:1], 16
    s_load_dwordx2 s[20:21], s[0:1], 24
    s_mov_b32 s10, {576*8192}
    s_mov_b32 s19, s11
    s_movk_i32 s18, 2304
    s_and_b32 {S_H}, s2, 7
    s_lshr_b32 {S_T0}, s2, 5
    s_lshl2_add_u32 {S_H}, {S_H}, {S_T0}
    s_bfe_u32 {S_J}, s2, 0x20003
    s_lshl2_add_u32 {S_CU}, {S_H}, {S_J}
    v_lshlrev_b32 v8, 1, v2
    v_xor_b32 v8, v8, v3
    v_lshlrev_b32 v135, 4, v8
    v_lshl_add_u32 v4, v2, 13, v135
    s_lshl_b32 {S_T3}, {S_WAVE}, 17
    s_lshl_b32 {S_T2}, {S_H}, 8
    s_add_u32 {S_T2}, {S_T2}, {S_T3}
    s_mul_i32 {S_OFF}, {S_J}, {144*8192}
    s_add_u32 {S_OFF}, {S_OFF}, {S_T2}
    s_mul_i32 m0, {S_WAVE}, 4608
    s_mov_b32 {S_T3}, 32768
    s_mul_i32 {S_CG}, s2, 21846
    s_lshr_b32 {S_CG}, {S_CG}, 16
    s_mul_i32 {S_RS}, {S_CG}, 3
    s_sub_u32 {S_RS}, s2, {S_RS}
    s_cmp_eq_u32 {S_WAVE}, 0
    s_cbranch_scc0 L_X_nox
    s_mul_i32 {S_T1}, {S_J}, 288
    s_mul_i32 {S_T0}, {S_RS}, 384
    ''')
    layernorm_loads(g, S_T1, S_T0)
    g('L_X_nox:')
    g('s_waitcnt lgkmcnt(0)')
    for u in range(4):
        g(f'buffer_load_dwordx4 v4, {SRD_A}, {S_OFF} offen {nt} lds')
        if u < 3:
            g('s_addk_i32 m0, 1152')
            g(f's_add_u32 {S_OFF}, {S_OFF}, {S_T3}')
    g(f'''
    s_mov_b32 s22, {512*8192}
    s_mov_b32 s23, s11
    v_lshlrev_b32 v8, 2, v2
    v_xor_b32 v8, v8, v3
    v_lshlrev_b32 v8, 4, v8
    v_lshl_add_u32 v5, v2, 13, v8
    s_lshl_b32 {S_T0}, {S_J}, 20
    s_add_u32 {S_OFF}, {S_T2}, {S_T0}
    s_sub_u32 {S_OFF}, {S_OFF}, 0x20000
    s_mul_i32 {S_T0}, {S_WAVE}, 4160
    s_add_u32 m0, {S_T0}, {LX_WUK - 4160}
    s_cmp_eq_u32 {S_WAVE}, 0
    s_barrier
    s_cbranch_scc1 L_X2
    ''')
    for u in range(4):
        g(f'buffer_load_dwordx4 v5, {SRD_B}, {S_OFF} offen {nt} lds')
        if u < 3:
            g('s_addk_i32 m0, 1040')
            g(f's_add_u32 {S_OFF}, {S_OFF}, {S_T3}')
    g('s_branch L_X2')
    g('L_Y:')
    rot = o.get('rot', 1)
    g(f'''
    s_load_dwordx2 s[8:9], s[0:1], 8
    s_mov_b32 s10, {2*4096*1024}
    s_sub_u32 {S_Y}, s2, 128
    s_bfe_u32 {S_HG}, s2, 0x10003
    s_and_b32 {S_T0}, s2, 7
    s_lshr_b32 {S_T1}, {S_Y}, 4
    s_lshl3_add_u32 {S_SPLIT}, {S_T0}, {S_T1}
    s_lshl_b32 {S_OFF}, {S_SPLIT}, 17
    s_lshl_b32 {S_T0}, {S_WAVE}, 14
    s_add_u32 {S_OFF}, {S_OFF}, {S_T0}
    ''')
    if rot:
        g(f's_lshl_b32 {S_T0}, {S_HG}, 16')
        g(f's_add_u32 {S_OFF}, {S_OFF}, {S_T0}')
    g(f'''
    s_mul_i32 m0, {S_WAVE}, 33792
    s_cmp_lt_u32 {S_WAVE}, 4
    s_cbranch_scc0 L_Y2
    s_waitcnt lgkmcnt(0)
    ''')
    ypace = o.get('ypace', 2)
    ystep = o.get('ystep', 1)
    ydepth = o.get('ydepth', 0)
    cnt = 'nt' if o.get('cnt') else ''
    n = 0
    for k in range(8):
        for u in range(4):
            g(f'buffer_load_dwordx4 v1, {SRD_A}, {S_OFF} offen offset:{u*1024} {cnt} lds')
            n += 1
            w = (n % ystep == 0) and (n // ystep <= ypace)
            if u < 3:
                g('s_addk_i32 m0, 32')
                g(f's_waitcnt vmcnt({ydepth})' if w else 's_nop 0')
        if k < 7:
            g('s_addk_i32 m0, 4128')
            if k == 3:
                g(f's_xor_b32 {S_OFF}, {S_OFF}, 0x13000')
                if o.get('yb0', 1):
                    g('s_barrier')
            else:
                g(f's_addk_i32 {S_OFF}, 4096')
            if w:
                g(f's_waitcnt vmcnt({ydepth})')
    if o.get('yb0b', 1):
        g('s_barrier')
    g('s_branch L_Y2')

    g('L_X2:')
    g.stamp(1)
    clear_stamps()
    post = []
    g(f's_load_dword {S_EP}, s[12:13], 0')
    post += srd(g, SRD_C, 32, 512 * 8192)
    post += srd(g, SRD_W1, 56, 576 * 9216)
    post += srd(g, SRD_O, 72, 4608 * 1152)
    post += srd(g, SRD_B2, 80, 1152)
    post += srd(g, SRD_OUT, 88, 2304)
    for p in post:
        g(p)
    misc_consts(g)
    g(f'''
    v_lshlrev_b32 v136, 3, v0
    s_cmp_eq_u32 {S_WAVE}, 8
    s_cbranch_scc1 L_X_w8
    s_cmp_eq_u32 {S_WAVE}, 0
    s_cbranch_scc0 L_X_noln
    ''')
    layernorm_addr(g)
    g('s_waitcnt vmcnt(4)')
    g.stamp(13)
    layernorm_stats(g)
    layernorm_slice(g, 22, 0)
    g.stamp(14)
    layernorm_slice(g, 128, 128)
    g('s_waitcnt vmcnt(0)')
    g('L_X_noln:')
    alpha_addr(g, 7, S_WAVE)
    g(f'''
    v_and_b32 v8, 1, v0
    v_lshlrev_b32 v9, 9, v8
    v_lshl_add_u32 v10, v2, 4, v9
    v_add_u32 v10, {LX_XN}, v10
    v_mov_b32 v34, 0
    v_mov_b32 v35, 0
    s_lshl3_add_u32 {S_T0}, {S_CU}, {S_WAVE}
    s_lshl_b32 {S_T0}, {S_T0}, 7
    s_add_u32 {S_T0}, {S_T0}, {WS_H1}
    s_waitcnt lgkmcnt(0)
    ''')
    make_tag(g)
    g('s_waitcnt vmcnt(4)')
    g('s_barrier')
    g.stamp(2)
    for s in range(5):
        g(f'ds_read_b128 {R(36+4*s)}, v10 offset:{64*s}')
        g(f'ds_read_b64_tr_b16 {R(16+4*s,2)}, v7 offset:{s*9216}')
        if s < 4:
            g(f'ds_read_b64_tr_b16 {R(18+4*s,2)}, v7 offset:{s*9216+4608}')
    g.stwait()
    for s in range(5):
        g(f's_waitcnt lgkmcnt({max(11-3*s, 0)})')
        c = '0' if s == 0 else R(12)
        g(f'{MF} {R(12)}, {R(36+4*s)}, {R(16+4*s)}, {c}')
    g(f'''
    s_nop 6
    s_mov_b64 exec, 0xffff
    v_bfi_b32 v12, {S_MASK}, v12, v6
    v_bfi_b32 v13, {S_MASK}, v13, v6
    buffer_store_dwordx2 v[12:13], v136, {SRD_WS}, {S_T0} offen sc1
    s_mov_b64 exec, -1
    ''')
    g.stamp(3)
    g(f'''
    s_cmp_lt_u32 {S_WAVE}, 4
    s_cbranch_scc0 L_X_h1
    s_cmp_lt_u32 {S_WAVE}, 2
    s_cbranch_scc0 L_X_q2idle
    ''')
    g(f'''
    v_lshrrev_b32 v8, 2, v3
    v_mul_u32_u24 v8, 2080, v8
    v_and_b32 v9, 3, v0
    v_lshl_add_u32 v8, v9, 8, v8
    v_lshl_add_u32 v8, v2, 4, v8
    s_mul_i32 {S_T0}, {S_WAVE}, 16640
    s_add_u32 {S_T0}, {S_T0}, {LX_WUK}
    v_add_u32 v8, {S_T0}, v8
    v_lshlrev_b32 v9, 6, v9
    v_add_u32 v56, v8, v9
    v_xor_b32 v57, 64, v9
    v_add_u32 v57, v8, v57
    v_xor_b32 v58, 0x80, v9
    v_add_u32 v58, v8, v58
    v_xor_b32 v59, 0xc0, v9
    v_add_u32 v59, v8, v59
    v_and_b32 v8, 1, v0
    v_mul_u32_u24 v9, 272, v8
    v_lshl_add_u32 v9, v2, 4, v9
    v_add_u32 v61, {LX_QP}, v9
    v_lshlrev_b32 v8, 15, v8
    v_lshl_add_u32 v62, v2, 4, v8
    v_bfe_u32 v8, v0, 1, 1
    v_lshl_add_u32 v62, v8, 6, v62
    s_lshl1_add_u32 {S_T1}, {S_CU}, {S_WAVE}
    s_lshl_b32 {S_T1}, {S_T1}, 7
    s_add_u32 {S_T1}, {S_T1}, {WS_H2}
    s_mov_b32 s48, 0x00030003
    s_mov_b32 s49, 0x00030003
    s_waitcnt vmcnt(1)
    s_barrier
    ''')
    areg = lambda s, t: 64 + 16 * s + 4 * t
    for s in range(4):
        for t in range(4):
            g(f'ds_read_b128 {R(areg(s,t))}, v{56+s} offset:{(t&1)*1040 + (t>>1)*8320}')
    g.stwait()
    g('s_barrier')
    for s in range(4):
        g(f'ds_read_b128 {R(36+4*s)}, v61 offset:{s*64}')
    for s in range(4):
        g(f's_waitcnt lgkmcnt({3-s})')
        for t in range(4):
            c = '0' if s == 0 else R(20 + 4 * t)
            g(f'{MF} {R(20+4*t)}, {R(areg(s,t))}, {R(36+4*s)}, {c}')
    g(f'''
    s_nop 3
    s_mov_b64 exec, {S_EXC}
    v_cvt_pk_bf16_f32 v16, v20, v21
    v_cvt_pk_bf16_f32 v17, v22, v23
    v_cvt_pk_bf16_f32 v18, v24, v25
    v_cvt_pk_bf16_f32 v19, v26, v27
    s_lshl_b64 exec, exec, 2
    v_cvt_pk_bf16_f32 v16, v28, v29
    v_cvt_pk_bf16_f32 v17, v30, v31
    v_cvt_pk_bf16_f32 v18, v32, v33
    v_cvt_pk_bf16_f32 v19, v34, v35
    s_or_b64 exec, exec, {S_EXC}
    ''')
    for r in range(4):
        g(f'v_bfi_b32 v{16+r}, {S_MASK2}, v{16+r}, v6')
    g(f'''
    buffer_store_dwordx4 v[16:19], v62, {SRD_WS}, {S_T1} offen sc1
    s_mov_b64 exec, -1
    ''')
    g.stamp(5)
    g(f'''
    s_branch L_X_b2
    L_X_q2idle:
    s_waitcnt vmcnt(1)
    s_barrier
    s_barrier
    s_branch L_X_b2
    ''')
    g('L_X_h1:')
    gather32_ldsaddr(g, 60, LX_QP - 256, 272)
    g(f'''
    v_lshl_add_u32 v60, {S_WAVE}, 6, v60
    v_lshlrev_b32 v8, 4, v3
    v_lshl_add_u32 v61, v2, 10, v8
    s_lshl4_add_u32 {S_T0}, {S_H}, {S_WAVE}
    s_lshl_b32 {S_T0}, {S_T0}, 8
    s_add_u32 {S_T0}, {S_T0}, {WS_H1 - 1024}
    s_waitcnt vmcnt(1)
    s_barrier
    ''')
    gather32(g, 61, S_T0, 60, stamp=4)
    g(f'''
    s_waitcnt lgkmcnt(0)
    s_barrier
    s_branch L_X_b2
    ''')
    g('L_X_w8:')
    g('s_waitcnt lgkmcnt(0)')
    make_tag(g)
    f2pos = o.get('f2pos', 1)
    fl = f'''
    s_mov_b64 exec, 0xff
    buffer_store_dwordx4 v[32:35], v1, {SRD_WS}, {S_T0} offen sc1
    s_mov_b64 exec, -1
    '''
    g(f'''
    v_mov_b32 v32, v6
    v_mov_b32 v33, v6
    v_mov_b32 v34, v6
    v_mov_b32 v35, v6
    s_lshl_b32 {S_T0}, {S_CU}, 7
    s_add_u32 {S_T0}, {S_T0}, {WS_F2}
    s_waitcnt vmcnt(4)
    s_barrier
    s_waitcnt vmcnt(0)
    s_barrier
    ''')
    if f2pos == 1:
        g(fl)
    g('s_barrier')
    if f2pos == 2:
        g(fl)
    g('L_X_b2:')
    g(f'''
    v_lshl_add_u32 v4, v2, 17, v135
    s_lshl_b32 {S_OFF}, {S_J}, 20
    s_lshl_b32 {S_T0}, {S_H}, 8
    s_add_u32 {S_OFF}, {S_OFF}, {S_T0}
    s_lshr_b32 {S_T0}, {S_WAVE}, 1
    s_lshl_b32 {S_T0}, {S_T0}, 15
    s_add_u32 {S_OFF}, {S_OFF}, {S_T0}
    s_and_b32 {S_T0}, {S_WAVE}, 1
    s_lshl_b32 {S_T0}, {S_T0}, 19
    s_add_u32 {S_OFF}, {S_OFF}, {S_T0}
    s_mul_i32 {S_T0}, {S_WAVE}, 4608
    s_add_u32 m0, {S_T0}, {LX_WUV}
    s_cmp_eq_u32 {S_WAVE}, 8
    s_barrier
    s_cbranch_scc1 L_X_nouv
    ''')
    opace = o.get('opace', 0)
    for u in range(4):
        g(f'buffer_load_dwordx4 v4, {SRD_C}, {S_OFF} offen {nt} lds')
        if u < opace:
            g('s_waitcnt vmcnt(0)')
        if u < 3:
            g('s_addk_i32 m0, 1152')
            g(f's_addk_i32 {S_OFF}, 8192')
    g('L_X_nouv:')
    g(f'''
    s_cmp_lt_u32 s2, 108
    s_cbranch_scc0 L_X_nof1
    s_cmp_eq_u32 {S_WAVE}, 8
    s_cbranch_scc1 L_X_b3
    v_mul_u32_u24 v9, 9216, v2
    v_add_u32 v5, v135, v9
    s_lshl3_add_u32 {S_OFF}, {S_RS}, {S_WAVE}
    s_mul_i32 {S_OFF}, {S_OFF}, {24*9216}
    s_lshl_b32 {S_T0}, {S_CG}, 8
    s_add_u32 {S_OFF}, {S_OFF}, {S_T0}
    s_mul_i32 m0, {S_WAVE}, {6*1152}
    s_mov_b32 {S_T3}, 36864
    ''')
    for u in range(6):
        g(f'buffer_load_dwordx4 v5, {SRD_W1}, {S_OFF} offen {nt} lds')
        if u < 5:
            g('s_addk_i32 m0, 1152')
            g(f's_add_u32 {S_OFF}, {S_OFF}, {S_T3}')
    g('s_branch L_X_b3')
    g('L_X_nof1:')
    g(f'''
    s_cmp_lt_u32 s2, 124
    s_cbranch_scc0 L_X_b3
    s_lshl_b32 {S_T0}, {S_WAVE}, 2
    ''')
    omega_src(g, 16, 4, S_T0)
    g(f'''
    s_lshl_b32 m0, {S_WAVE}, 12
    s_add_u32 {S_T0}, s2, 20
    s_mul_i32 {S_OFF}, {S_T0}, 36864
    s_add_u32 {S_OFF}, {S_OFF}, m0
    ''')
    for u in range(4):
        g(f'buffer_load_dwordx4 v{16+u}, {SRD_O}, {S_OFF} offen offset:{u*1024} {nt} lds')
    g('L_X_b3:')
    g.stamp(6)
    g(f'''
    s_lshr_b32 {S_T4}, {S_WAVE}, 1
    s_lshl2_add_u32 {S_T4}, {S_H}, {S_T4}
    s_lshl2_add_u32 {S_T4}, {S_T4}, {S_J}
    s_and_b32 {S_T5}, {S_WAVE}, 1
    s_lshl1_add_u32 {S_T4}, {S_T4}, {S_T5}
    s_lshl_b32 {S_T4}, {S_T4}, 7
    s_add_u32 {S_T4}, {S_T4}, {WS_H3P}
    v_add_u32 v11, {LX_WUV}, v7
    v_and_b32 v8, 3, v0
    v_mul_u32_u24 v9, 272, v8
    v_lshl_add_u32 v9, v2, 4, v9
    v_add_u32 v60, {LX_CC}, v9
    s_cmp_lt_u32 {S_WAVE}, 4
    s_cbranch_scc0 L_X_ngat
    ''')
    g(f'''
    s_and_b32 {S_B}, {S_WAVE}, 1
    s_lshr_b32 {S_HG}, {S_WAVE}, 1
    s_lshr_b32 {S_T0}, {S_H}, 4
    s_lshl1_add_u32 {S_T0}, {S_T0}, {S_B}
    s_lshl_b32 {S_T0}, {S_T0}, 12
    s_and_b32 {S_T1}, {S_H}, 15
    s_lshl3_add_u32 {S_T0}, {S_T1}, {S_T0}
    s_add_u32 {S_T2}, {S_T0}, {WS_L}
    s_add_u32 {S_T0}, {S_T0}, {WS_M}
    v_lshl_add_u32 v8, v2, 2, v8
    v_bfe_u32 v9, v0, 2, 1
    v_xor_b32 v9, {S_HG}, v9
    v_lshl_add_u32 v8, v9, 4, v8
    v_lshlrev_b32 v62, 7, v8
    s_lshl1_add_u32 {S_B}, {S_B}, {S_HG}
    s_lshl2_add_u32 {S_T1}, {S_CU}, {S_B}
    s_lshl_b32 {S_T1}, {S_T1}, 12
    s_add_u32 {S_T1}, {S_T1}, {WS_H3}
    v_lshlrev_b32 v8, 4, v3
    v_lshl_add_u32 v96, v2, 10, v8
    v_lshl_add_u32 v8, v2, 3, v8
    s_mul_i32 {S_T5}, {S_WAVE}, 272
    s_add_u32 {S_T5}, {S_T5}, {LX_CC}
    v_add_u32 v97, {S_T5}, v8
    v_and_b32 v8, 1, v0
    v_lshlrev_b32 v8, 4, v8
    v_mov_b32 v9, 0xffff
    v_lshlrev_b32 v9, v8, v9
    ''')
    for t in range(4):
        m = (3 << (2 * t)) * 0x01010101
        g(f's_mov_b32 vcc_lo, 0x{m:08x}')
        g(f's_mov_b32 vcc_hi, 0x{m:08x}')
        g(f'v_cndmask_b32 v{100+t}, 0, v9, vcc')
    g('s_waitcnt vmcnt(0)')
    g('s_barrier')
    g.stamp(7)

    def wuv_reads():
        for s in range(4):
            g(f'ds_read_b64_tr_b16 {R(64+4*s,2)}, v11 offset:{s*9216}')
            g(f'ds_read_b64_tr_b16 {R(66+4*s,2)}, v11 offset:{s*9216+4608}')
    lp = g.lab('m')
    lp1 = g.lab('min')
    g(f'buffer_load_dwordx2 v[16:17], v62, {SRD_WS}, {S_T0} offen sc1')
    wuv_reads()
    g(f'''
    s_branch {lp1}
    {lp}:
    buffer_load_dwordx2 v[16:17], v62, {SRD_WS}, {S_T0} offen sc1
    ''')
    spin_check(g)
    g(f'''
    {lp1}:
    s_waitcnt vmcnt(0)
    v_cmp_ne_u32 vcc, {S_EP}, v17
    v_max_f32_dpp v20, v16, v16 quad_perm:[1,0,3,2] {DPPF}
    s_nop 0
    s_cbranch_vccnz {lp}
    ''')
    g.stamp(8)

    def h3_loads():
        g(f'buffer_load_dwordx2 v[18:19], v62, {SRD_WS}, {S_T2} offen sc1')
        for u in range(4):
            g(f'buffer_load_dwordx4 {R(36+4*u)}, v96, {SRD_WS}, {S_T1} offen offset:{u*256} sc1')
    h3late = o.get('h3late', 0)
    if not h3late:
        h3_loads()
    g(f'''
    v_max_f32_dpp v20, v20, v20 quad_perm:[2,3,0,1] {DPPF}
    s_nop 1
    v_max_f32_dpp v20, v20, v20 row_ror:4 {DPPF}
    v_mov_b32 v8, v20
    s_nop 1
    v_permlane16_swap_b32 v8, v20
    v_max_f32 v20, v8, v20
    v_mov_b32 v8, v20
    s_nop 1
    v_permlane32_swap_b32 v8, v20
    v_max_f32 v20, v8, v20
    v_sub_f32 v16, v16, v20
    v_exp_f32 v16, v16
    s_nop 0
    v_cvt_pk_bf16_f32 v22, v16, v16
    s_nop 1
    v_mov_b32_dpp v22, v22 row_ror:4 row_mask:0xf bank_mask:0xa
    s_nop 1
    ''')
    for u in range(4):
        for t in range(4):
            g(f'v_and_b32_dpp v{104+4*u+t}, v22, v{100+t} quad_perm:[{u},{u},{u},{u}] {DPPF}')
    lp = g.lab('h3')
    lp2 = g.lab('h3in')
    if not h3late:
        g(f's_branch {lp2}')
    g(f'{lp}:')
    h3_loads()
    spin_check(g)
    g(f'''
    {lp2}:
    s_waitcnt vmcnt(4)
    v_mul_f32 v21, v16, v18
    v_cmp_ne_u32 {S_CMP}, {S_EP}, v19
    s_nop 0
    v_add_f32_dpp v21, v21, v21 quad_perm:[1,0,3,2] {DPPF}
    s_nop 1
    v_add_f32_dpp v21, v21, v21 quad_perm:[2,3,0,1] {DPPF}
    ''')
    extra = [
        [f'v_add_f32_dpp v21, v21, v21 row_ror:4 {DPPF}', 'v_mov_b32 v9, v21'],
        ['v_permlane16_swap_b32 v9, v21', 'v_add_f32 v21, v9, v21', 'v_mov_b32 v9, v21'],
        ['v_permlane32_swap_b32 v9, v21', 'v_add_f32 v21, v9, v21', 'v_rcp_f32 v21, v21'],
        []]
    for u in range(4):
        g(f's_waitcnt vmcnt({3-u})')
        for r in range(4):
            g(f'v_xor_b32 v{36+4*u+r}, {S_TAG2}, v{36+4*u+r}')
        or_chain(g, 8, range(36 + 4 * u, 40 + 4 * u), u == 0)
        c = '0' if u == 0 else R(12)
        g(f'{MF} {R(12)}, {R(104+4*u)}, {R(36+4*u)}, {c}')
        for e in extra[u]:
            g(e)
    g(f'''
    v_and_b32 v8, 0x10001, v8
    v_cmp_ne_u32 vcc, 0, v8
    s_nop 3
    s_or_b64 vcc, vcc, {S_CMP}
    s_cbranch_scc1 {lp}
    v_mul_f32 v12, v12, v21
    v_mul_f32 v13, v13, v21
    v_mul_f32 v14, v14, v21
    v_mul_f32 v15, v15, v21
    v_cvt_pk_bf16_f32 v12, v12, v13
    v_cvt_pk_bf16_f32 v13, v14, v15
    s_mov_b32 exec_hi, 0
    ds_write_b64 v97, v[12:13]
    s_mov_b32 exec_hi, -1
    ''')
    g.stamp(9)
    g('s_branch L_X_b4')
    g('L_X_ngat:')
    g(f'''
    s_cmp_eq_u32 {S_WAVE}, 8
    s_cbranch_scc1 L_X_w8b
    s_lshl_b32 {S_T0}, {S_WAVE}, 1
    s_sub_u32 {S_T0}, {S_T0}, 8
    ''')
    alpha_addr(g, 56, S_T0)
    for s in range(6):
        g(f'ds_read_b128 {R(140+4*s)}, v10 offset:{1024+64*s}')
    g(f'''
    v_xor_b32 v57, 32, v56
    s_lshl2_add_u32 {S_T2}, {S_CG}, {S_WAVE}
    s_lshl2_add_u32 {S_T2}, {S_T2}, {S_RS}
    s_lshl_b32 {S_T2}, {S_T2}, 8
    s_add_u32 {S_T2}, {S_T2}, {WS_HF - 4096}
    s_cmp_lt_u32 s2, 108
    s_waitcnt vmcnt(0)
    s_barrier
    s_cbranch_scc0 L_X_nof1c
    ''')
    for s in range(6):
        for t in range(2):
            g(f'ds_read_b64_tr_b16 {R(80+8*s+4*t,2)}, v{56+t} offset:{s*9216}')
            g(f'ds_read_b64_tr_b16 {R(82+8*s+4*t,2)}, v{56+t} offset:{s*9216+4608}')
    g.stwait()
    for s in range(6):
        g(f's_waitcnt lgkmcnt({min(15, 20-4*s)})')
        for t in range(2):
            c = '0' if s == 0 else R(12 + 4 * t)
            g(f'{MF} {R(12+4*t)}, {R(140+4*s)}, {R(80+8*s+4*t)}, {c}')
    g(f'''
    s_mov_b32 vcc_lo, 0xffff0000
    s_mov_b32 vcc_hi, 0
    s_nop 4
    s_mov_b32 exec_hi, 0
    v_cndmask_b32 v12, v12, v16, vcc
    v_cndmask_b32 v13, v13, v17, vcc
    v_bfi_b32 v12, {S_MASK}, v12, v6
    v_bfi_b32 v13, {S_MASK}, v13, v6
    buffer_store_dwordx2 v[12:13], v136, {SRD_WS}, {S_T2} offen sc1
    s_mov_b32 exec_hi, -1
    ''')
    g.stamp(11)
    g('L_X_nof1c:')
    wuv_reads()
    g('L_X_b4:')
    g('s_waitcnt lgkmcnt(0)')
    g('s_barrier')
    for s in range(4):
        g(f'ds_read_b128 {R(36+4*s)}, v60 offset:{s*64}')
    for s in range(4):
        g(f's_waitcnt lgkmcnt({3-s})')
        c = '0' if s == 0 else R(12)
        g(f'{MF} {R(12)}, {R(36+4*s)}, {R(64+4*s)}, {c}')
    g(f'''
    s_nop 6
    s_mov_b64 exec, 0xffff
    v_pk_add_f32 v[12:13], v[12:13], v[14:15]
    v_bfi_b32 v12, {S_MASK}, v12, v6
    v_bfi_b32 v13, {S_MASK}, v13, v6
    buffer_store_dwordx2 v[12:13], v136, {SRD_WS}, {S_T4} offen sc1
    s_mov_b64 exec, -1
    ''')
    g.stamp(10)
    g(f'''
    s_branch L_X_post
    L_X_w8b:
    s_waitcnt vmcnt(0)
    s_barrier
    s_barrier
    L_X_post:
    s_cmp_lt_u32 s2, 36
    s_cbranch_scc1 L_X_final
    s_sub_u32 {S_T0}, s2, 108
    s_cmp_lt_u32 {S_T0}, 16
    s_cbranch_scc0 L_END
    ''')
    g(f'''
    s_load_dwordx2 s[24:25], s[0:1], 64
    s_movk_i32 s26, 9216
    s_add_u32 {S_CU}, s2, 20
    ''')
    omega_addr(g, 56)
    omega_reads(g, 56, 80, LX_WO)
    act_addr(g, 61, LX_ACT)
    h4_soff(g, S_CU)
    g(f'''
    s_cmp_eq_u32 {S_WAVE}, 8
    s_cbranch_scc0 L_X_f2w
    s_waitcnt lgkmcnt(0)
    ''')
    bias_prep(g, S_CU)
    gather32_ldsaddr(g, 60, LX_ACT, 64)
    g('s_waitcnt vmcnt(0)')
    bias_unpack(g)
    gather32(g, 1, S_T1, 60, act=True)
    g('L_X_f2w:')
    g('s_waitcnt lgkmcnt(0)')
    g('s_barrier')
    omega_finish(g, 61, [80], 136, S_T3)
    g.stamp(12)
    g('s_branch L_END')
    g('L_X_final:')
    g(f'''
    v_lshrrev_b32 v8, 3, v0
    v_mul_u32_u24 v8, 4608, v8
    v_and_b32 v9, 7, v0
    v_lshl_add_u32 v10, v9, 4, v8
    s_mul_i32 {S_T0}, {S_WAVE}, {16*4608}
    s_lshl_b32 {S_T1}, s2, 7
    s_add_u32 {S_T0}, {S_T0}, {S_T1}
    s_add_u32 {S_T0}, {S_T0}, {WS_H4}
    s_add_u32 {S_T1}, {S_T0}, {8*4608}
    s_lshl_b32 {S_T4}, s2, 5
    v_lshlrev_b32 v55, 1, v3
    v_and_b32 v8, 1, v2
    v_mul_u32_u24 v56, 1152, v8
    v_add_u32 v56, v56, v55
    buffer_load_ushort v57, v56, {SRD_X}, {S_T4} offen
    buffer_load_ushort v58, v55, {SRD_B2}, {S_T4} offen
    v_lshl_add_u32 v8, v9, 1, v8
    v_lshrrev_b32 v59, 1, v2
    v_lshl_add_u32 v8, v59, 4, v8
    v_mul_u32_u24 v8, 48, v8
    v_lshl_add_u32 v8, {S_WAVE}, 2, v8
    v_and_b32 v11, 31, v0
    v_mul_u32_u24 v11, 48, v11
    v_add_u32 v61, {LX_FIN}, v11
    v_lshl_add_u32 v60, v59, 4, v61
    v_add_u32 v59, {LX_FIN}, v8
    ''')
    lp = g.lab('h4')
    g(f'{lp}:')
    for u, sr in enumerate((S_T0, S_T1)):
        g(f'buffer_load_dwordx4 {R(16+4*u)}, v10, {SRD_WS}, {sr} offen sc1')
    spin_check(g)
    g('s_waitcnt vmcnt(0)')
    tagged_check(g, range(16, 24), 8)
    g(f'''
    v_pk_add_f32 v[16:17], v[16:17], v[20:21]
    v_pk_add_f32 v[18:19], v[18:19], v[22:23]
    s_cbranch_vccnz {lp}
    ''')
    g.stamp(13)
    g(f'''
    v_permlane32_swap_b32 v16, v17
    v_permlane32_swap_b32 v18, v19
    v_add_f32 v16, v16, v17
    v_add_f32 v18, v18, v19
    v_lshlrev_b32 v57, 16, v57
    v_lshlrev_b32 v58, 16, v58
    v_permlane16_swap_b32 v16, v18
    v_add_f32 v16, v16, v18
    v_add_f32 v57, v57, v58
    s_cmp_eq_u32 {S_WAVE}, 0
    v_add_f32_dpp v16, v16, v16 row_ror:8 {DPPF}
    ds_write_b32 v59, v16
    s_waitcnt lgkmcnt(0)
    s_barrier
    s_cbranch_scc0 L_END
    ds_read_b128 v[16:19], v60
    ds_read_b32 v20, v61 offset:32
    s_waitcnt lgkmcnt(1)
    v_pk_add_f32 v[16:17], v[16:17], v[18:19]
    v_add_f32 v16, v16, v17
    v_mov_b32 v17, v16
    s_waitcnt lgkmcnt(0)
    v_add_f32 v57, v57, v20
    v_permlane32_swap_b32 v16, v17
    v_add_f32 v16, v16, v17
    v_add_f32 v16, v16, v57
    v_cvt_pk_bf16_f32 v16, v16, v16
    s_mov_b32 exec_hi, 0
    buffer_store_short v16, v56, {SRD_OUT}, {S_T4} offen
    ''')
    if o.get('hold'):
        g(f'''
        s_and_b32 s94, s2, 7
        s_lshr_b32 s94, {o.get('holdm', 1)}, s94
        s_and_b32 s94, s94, 1
        s_cbranch_scc0 L_nohold
        L_hold:
        s_memrealtime s[94:95]
        s_waitcnt lgkmcnt(0)
        s_sub_u32 s94, s94, s92
        s_cmp_lt_u32 s94, {o['hold']}
        s_cbranch_scc1 L_hold
        L_nohold:
        ''')
    g(f'''
    s_cmp_eq_u32 s2, 0
    s_cbranch_scc0 L_END
    v_mov_b32 v17, {S_EP}
    v_mov_b32 v18, 0
    buffer_store_dword v17, v18, {SRD_WS}, 0 offen
    s_branch L_END
    ''')

    g('L_Y2:')
    g.stamp(1)
    clear_stamps()
    post = []
    post += srd(g, SRD_B, 40, 4096 * 1152)
    post += srd(g, SRD_C, 64, 9216)
    post += srd(g, SRD_O, 72, 4608 * 1152)
    for p in post:
        g(p)
    g(f'''
    s_lshr_b32 {S_B}, {S_SPLIT}, 5
    s_and_b32 {S_T0}, s2, 7
    s_lshr_b32 {S_T1}, {S_Y}, 3
    s_lshl4_add_u32 {S_CU}, {S_T0}, {S_T1}
    ''')
    misc_consts(g)
    g(f'''
    s_waitcnt lgkmcnt(0)
    s_load_dword {S_EP}, s[12:13], 0
    s_cmp_lt_u32 {S_WAVE}, 4
    s_cbranch_scc0 L_Y_nqk
    ''')
    g(f'''
    v_mul_u32_u24 v8, 1056, v3
    v_lshl_add_u32 v8, v2, 4, v8
    s_mul_i32 {S_T0}, {S_WAVE}, 33792
    v_add_u32 v4, {S_T0}, v8
    v_add_u32 v5, {LY_Q}, v8
    v_lshlrev_b32 v13, 4, v3
    v_add_u32 v11, {LY_MX}, v13
    v_lshl_add_u32 v10, {S_WAVE}, 2, v11
    s_lshl_b32 {S_T0}, {S_WAVE}, 10
    s_add_u32 {S_T0}, {S_T0}, {LY_P}
    v_add_u32 v12, {S_T0}, v1
    s_lshl1_add_u32 {S_T2}, {S_B}, {S_HG}
    s_lshl2_add_u32 {S_T2}, {S_T2}, {S_WAVE}
    s_lshl_b32 {S_T2}, {S_T2}, 12
    s_add_u32 {S_T2}, {S_T2}, {WS_H2}
    s_mul_i32 {S_T0}, {S_WAVE}, 4224
    s_add_u32 {S_T0}, {S_T0}, {LY_Q}
    v_add_u32 v14, {S_T0}, v1
    s_mov_b32 {S_T1}, 0x{f2u(SCALE):08x}
    s_waitcnt lgkmcnt(0)
    ''')
    make_tag(g)

    def kreads(t):
        for ks in range(16):
            g(f'ds_read_b128 {R(40+8*ks+4*t)}, v4 offset:{t*16896+ks*64}')
    g('s_waitcnt vmcnt(16)')
    kreads(0)
    g('s_waitcnt vmcnt(0)')
    g.stamp(2)
    g('s_barrier')
    g.stamp(4)

    def h2_loads():
        for u in range(4):
            g(f'buffer_load_dwordx4 {R(16+4*u)}, v1, {SRD_WS}, {S_T2} offen offset:{u*1024} sc1')
    lp = g.lab('h2')
    lp2 = g.lab('h2in')
    h2_loads()
    kreads(1)
    g(f's_branch {lp2}')
    g(f'{lp}:')
    h2_loads()
    spin_check(g)
    g(f'{lp2}:')
    for u in range(4):
        g(f's_waitcnt vmcnt({3-u})')
        for r in range(4):
            g(f'v_xor_b32 v{16+4*u+r}, {S_TAG2}, v{16+4*u+r}')
        g(f'ds_write_b128 v14, {R(16+4*u)} offset:{u*1056}')
        or_chain(g, 8, range(16 + 4 * u, 20 + 4 * u), u == 0)
    g(f'''
    v_and_b32 v8, 0x10001, v8
    v_cmp_ne_u32 vcc, 0, v8
    s_waitcnt lgkmcnt(0)
    s_nop 0
    s_cbranch_vccnz {lp}
    ''')
    g.stamp(5)
    g.stwait()
    g('s_barrier')
    for ks in range(4):
        g(f'ds_read_b128 {R(16+4*ks)}, v5 offset:{ks*64}')
    for ks in range(16):
        q = 16 + 4 * (ks & 3)
        g(f's_waitcnt lgkmcnt({min(3, 15-ks)})')
        for t in range(2):
            c = '0' if ks == 0 else R(32 + 4 * t)
            g(f'{MF} {R(32+4*t)}, {R(40+8*ks+4*t)}, {R(q)}, {c}')
        if ks + 4 < 16:
            g(f'ds_read_b128 {R(q)}, v5 offset:{(ks+4)*64}')
    g(f'''
    s_nop 6
    v_max3_f32 v8, v32, v33, v34
    v_max3_f32 v8, v8, v35, v36
    v_max3_f32 v8, v8, v37, v38
    v_max_f32 v9, v8, v39
    v_max_f32 v8, v8, v39
    s_nop 1
    v_permlane16_swap_b32 v8, v9
    v_max_f32 v15, v8, v9
    v_max_f32 v8, v8, v9
    s_nop 1
    v_permlane32_swap_b32 v8, v15
    v_max_f32 v8, v8, v15
    ds_write_b32 v10, v8
    s_waitcnt lgkmcnt(0)
    s_barrier
    ds_read_b128 v[16:19], v11
    s_waitcnt lgkmcnt(0)
    v_max3_f32 v8, v16, v17, v18
    v_max_f32 v8, v8, v19
    v_mul_f32 v24, {S_T1}, v8
    ''')
    for r in range(8):
        g(f'v_fma_f32 v{32+r}, v{32+r}, {S_T1}, -v24')
    for r in range(8):
        g(f'v_exp_f32 v{32+r}, v{32+r}')
    for r in range(4):
        g(f'v_cvt_pk_bf16_f32 v{16+r}, v{32+2*r}, v{33+2*r}')
    g(f'''
    ds_write_b128 v12, v[16:19]
    v_pk_add_f32 v[32:33], v[32:33], v[34:35]
    v_pk_add_f32 v[36:37], v[36:37], v[38:39]
    v_pk_add_f32 v[32:33], v[32:33], v[36:37]
    v_add_f32 v8, v32, v33
    v_add_f32 v9, v32, v33
    s_nop 1
    v_permlane16_swap_b32 v8, v9
    v_add_f32 v15, v8, v9
    v_add_f32 v8, v8, v9
    s_nop 1
    v_permlane32_swap_b32 v8, v15
    v_add_f32 v8, v8, v15
    ds_write_b32 v10, v8 offset:256
    s_waitcnt lgkmcnt(0)
    s_barrier
    ''')
    g.stamp(6)
    g('s_branch L_Y_b5')
    g('L_Y_nqk:')
    nw2 = o.get('nw2', 8)
    g(f'''
    s_lshl_b32 {S_T0}, {S_WAVE}, 3
    s_sub_u32 {S_T0}, {S_T0}, 32
    ''')
    omega_src(g, 24, 8, S_T0)
    g(f'''
    s_lshl_b32 {S_T4}, {S_T0}, 10
    s_mul_i32 {S_T5}, {S_Y}, 36864
    s_add_u32 {S_T5}, {S_T5}, {S_T4}
    s_cmp_eq_u32 {S_WAVE}, 8
    s_cbranch_scc1 L_Y_w8
    v_lshrrev_b32 v8, 2, v0
    v_mul_u32_u24 v8, 1056, v8
    v_and_b32 v9, 3, v0
    v_lshl_add_u32 v8, v9, 3, v8
    s_lshl_b32 {S_T0}, {S_WAVE}, 8
    s_sub_u32 {S_T0}, {S_T0}, 1024
    v_add_u32 v4, {S_T0}, v8
    v_add_u32 v5, 67584, v4
    v_add_u32 v12, {LY_P}, v1
    v_lshlrev_b32 v8, 4, v3
    v_lshl_add_u32 v13, v2, 18, v8
    s_lshl_b32 {S_T0}, {S_HG}, 20
    s_lshl_b32 {S_T3}, {S_WAVE}, 14
    s_add_u32 {S_T0}, {S_T0}, {S_T3}
    s_lshl_b32 {S_T3}, {S_SPLIT}, 8
    s_add_u32 {S_T0}, {S_T0}, {S_T3}
    s_add_u32 {S_T0}, {S_T0}, {WS_H3 - 4*16384}
    s_waitcnt lgkmcnt(0)
    ''')
    make_tag(g)
    for k in range(o.get('yb0', 1) + o.get('yb0b', 1)):
        g('s_barrier')
    g('s_barrier')
    for ct in range(8):
        for s in range(4):
            a = 4 + (s >> 1)
            off = (s & 1) * 33792 + ct * 32
            g(f'ds_read_b64_tr_b16 {R(40+16*ct+4*s,2)}, v{a} offset:{off}')
            g(f'ds_read_b64_tr_b16 {R(42+16*ct+4*s,2)}, v{a} offset:{off+16896}')
    g.stamp(3)

    def w2_dma(a, b):
        for u in range(a, b):
            if u == a or u == 4:
                g(f's_add_u32 m0, {S_T4}, {LY_WOA + (u>>2)*4096}')
                g(f's_add_u32 {S_OFF}, {S_T5}, {(u>>2)*4096}')
            g(f'buffer_load_dwordx4 v{24+u}, {SRD_O}, {S_OFF} offen offset:{(u&3)*1024} {nt} lds')
    g('s_waitcnt lgkmcnt(0)')
    g('s_barrier')
    w2_dma(0, nw2)
    if nw2 < 8:
        for u in range(nw2, 8):
            pass
    g('s_barrier')
    g('s_setprio 2')
    g('s_barrier')
    PR = 16
    for s in range(4):
        g(f'ds_read_b128 {R(PR+4*s)}, v12 offset:{s*1024}')

    def accreg(u):
        return 32 if u == 0 else 40 + 32 * (u - 1)
    PK = 56

    def pack(u):
        a = accreg(u)
        for r in range(4):
            g(f'v_cvt_pk_bf16_f32 v{PK+4*r+u}, v{a+r}, v{a+4+r}')
        for r in range(4):
            g(f'v_bfi_b32 v{PK+4*r+u}, {S_MASK2}, v{PK+4*r+u}, v6')
    for u in range(4):
        a = accreg(u)
        for s in range(4):
            if u == 0:
                g(f's_waitcnt lgkmcnt({3-s})')
            for t in range(2):
                ct = 2 * u + t
                c = '0' if s == 0 else R(a + 4 * t)
                g(f'{MF} {R(a+4*t)}, {R(PR+4*s)}, {R(40+16*ct+4*s)}, {c}')
        if u > 0:
            pack(u - 1)
    a = accreg(3)
    for r in range(4):
        g(f'v_cvt_pk_bf16_f32 v{PK+4*r+3}, v{a+r}, v{a+4+r}')
        g(f'v_bfi_b32 v{PK+4*r+3}, {S_MASK2}, v{PK+4*r+3}, v6')
        g(f'buffer_store_dwordx4 {R(PK+4*r)}, v13, {SRD_WS}, {S_T0} offen sc1')
        if r < 3:
            g(f's_add_u32 {S_T0}, {S_T0}, 0x10000')
    g('s_setprio 0')
    g.stamp(7)
    if nw2 < 8:
        g(f'''
        s_lshl_b32 {S_T0}, {S_WAVE}, 3
        s_sub_u32 {S_T0}, {S_T0}, 32
        ''')
        omega_src(g, 24, 8, S_T0)
    if o.get('swait', 1):
        g('s_waitcnt vmcnt(0)')
    if nw2 < 8:
        w2_dma(nw2, 8)
    g('s_branch L_Y_b5')
    g('L_Y_w8:')
    g('s_waitcnt lgkmcnt(0)')
    make_tag(g)
    mpos = o.get('mpos', 4)
    mpub = f'''
    ds_read_b128 v[16:19], v11
    s_waitcnt lgkmcnt(0)
    v_max3_f32 v8, v16, v17, v18
    v_max_f32 v8, v8, v19
    v_mul_f32 v20, {S_T1}, v8
    '''
    mst = f'buffer_store_dwordx2 v[20:21], v13, {SRD_WS}, {S_T0} offen sc1'
    g(f'''
    v_lshlrev_b32 v13, 3, v3
    v_lshlrev_b32 v8, 4, v3
    v_add_u32 v11, {LY_MX}, v8
    s_lshl_b32 {S_T0}, {S_HG}, 6
    s_add_u32 {S_T0}, {S_T0}, {S_SPLIT}
    s_lshl_b32 {S_T0}, {S_T0}, 7
    s_add_u32 {S_T2}, {S_T0}, {WS_L}
    s_add_u32 {S_T0}, {S_T0}, {WS_M}
    s_mov_b32 {S_T1}, 0x{f2u(SCALE):08x}
    v_mov_b32 v21, v6
    v_mov_b32 v23, v6
    v_lshlrev_b32 v7, 7, v0
    s_lshl_b32 {S_T3}, {S_HG}, 13
    s_add_u32 {S_T3}, {S_T3}, {WS_F2}
    s_setprio 3
    ''')
    if o.get('ptf2', 1):
        g(f'buffer_load_dword v16, v7, {SRD_WS}, {S_T3} offen sc1')
    for k in range(o.get('yb0', 1) + o.get('yb0b', 1)):
        g('s_barrier')
    if o.get('gate2', 1):
        lp = g.lab('f2')
        g(f'''
        {lp}:
        buffer_load_dword v16, v7, {SRD_WS}, {S_T3} offen sc1
        ''')
        spin_check(g)
        g(f'''
        s_waitcnt vmcnt(0)
        v_cmp_ne_u32 vcc, {S_EP}, v16
        s_nop 1
        s_cbranch_vccnz {lp}
        ''')
        g.stamp(14)
    g('s_barrier')
    g('s_barrier')
    w8early = o.get('w8early', 1)
    if w8early:
        w2_dma(0, 4)
    g('s_mov_b64 exec, 0xffff')
    g('s_barrier')
    g(mpub)
    if mpos == 3:
        g(mst)
        g.stamp(13)
    g('s_barrier')
    if mpos == 4:
        g(mst)
        g.stamp(13)
    g(f'''
    ds_read_b128 v[16:19], v11 offset:256
    s_waitcnt lgkmcnt(0)
    v_pk_add_f32 v[16:17], v[16:17], v[18:19]
    v_add_f32 v22, v16, v17
    buffer_store_dwordx2 v[22:23], v13, {SRD_WS}, {S_T2} offen sc1
    s_mov_b64 exec, -1
    s_setprio 0
    ''')
    if not w8early:
        g('s_barrier')
        w2_dma(0, 4)
        g('s_branch L_Y_b5x')
    g('L_Y_b5:')
    if not w8early:
        g('s_barrier')
        g('L_Y_b5x:')
    g(f's_lshl_b32 {S_T0}, {S_WAVE}, 2')
    omega_src(g, 24, 4, S_T0)
    g(f'''
    s_lshl_b32 {S_T0}, {S_WAVE}, 12
    s_add_u32 m0, {S_T0}, {LY_WOB}
    s_mul_i32 {S_OFF}, {S_CU}, 36864
    s_add_u32 {S_OFF}, {S_OFF}, {S_T0}
    s_lshl_b32 {S_T2}, {S_CU}, 10
    s_add_u32 {S_T2}, {S_T2}, {WS_H3P}
    ''')
    if w8early:
        g('s_barrier')
    for u in range(4):
        g(f'buffer_load_dwordx4 v{24+u}, {SRD_B}, {S_OFF} offen offset:{u*1024} {nt} lds')
    g.stamp(8)
    g(f'''
    s_cmp_lt_u32 {S_WAVE}, 2
    s_cbranch_scc0 L_Y_np
    ''')
    bias_prep(g, S_Y)
    if o.get('pt3', 1):
        g(f'buffer_load_dwordx4 v[16:19], v1, {SRD_WS}, {S_T2} offen sc1')
    gather32_ldsaddr(g, 60, LY_ACT, 64)
    g('L_Y_np:')
    omega_addr(g, 56)
    act_addr(g, 61, LY_ACT)
    h4_soff(g, S_Y)
    g(f'''
    v_lshlrev_b32 v62, 3, v0
    s_waitcnt vmcnt(0)
    s_barrier
    ''')
    g.stamp(9)
    omega_reads(g, 56, 80, LY_WOA)
    omega_reads(g, 56, 96, LY_WOB)
    g(f'''
    s_cmp_eq_u32 {S_WAVE}, 0
    s_cbranch_scc1 L_Y_ctx
    s_cmp_eq_u32 {S_WAVE}, 1
    s_cbranch_scc0 L_Y_c
    ''')
    bias_unpack(g)
    gather32(g, 1, S_T1, 60, act=True, stamp=10)
    g('s_branch L_Y_c')
    g('L_Y_ctx:')
    gather32(g, 1, S_T2, 60, lds_off=128, stamp=11)
    g('L_Y_c:')
    g('s_waitcnt lgkmcnt(0)')
    g('s_barrier')
    omega_finish(g, 61, [80, 96], 62, S_T3)
    g.stamp(12)
    g('L_END:')
    if stamps:
        g.stamp(15)
        g(f'''
        s_sleep 127
        s_sleep 127
        s_mov_b64 exec, 1
        s_mul_i32 {S_T0}, s2, 9
        s_add_u32 {S_T0}, {S_T0}, {S_WAVE}
        s_lshl_b32 {S_T0}, {S_T0}, 6
        s_add_u32 {S_T0}, {S_T0}, {WS_ST}
        v_mov_b32 v8, 0
        s_waitcnt lgkmcnt(0)
        ''')
        for k in range(16):
            g(f'v_mov_b32 v9, s{64+2*k}')
            g(f'buffer_store_dword v9, v8, {SRD_WS}, {S_T0} offen offset:{4*k}')
    g('L_EXIT:')
    g('s_endpgm')
    g.L.append('.fill 1200, 4, 0xbf810000')
    g.L.append('.section .rodata,"a"')
    g.L.append('.p2align 6')
    g.L.append(f'.amdhsa_kernel {NAME}_kernel')
    g.L.append('  .amdhsa_next_free_vgpr 168')
    g.L.append('  .amdhsa_next_free_sgpr 100')
    g.L.append('  .amdhsa_accum_offset 168')
    g.L.append('  .amdhsa_group_segment_fixed_size 0')
    g.L.append('  .amdhsa_kernarg_size 112')
    g.L.append('  .amdhsa_user_sgpr_count 2')
    g.L.append('  .amdhsa_user_sgpr_kernarg_segment_ptr 1')
    g.L.append('  .amdhsa_system_sgpr_workgroup_id_x 1')
    g.L.append('.end_amdhsa_kernel')
    return g.text()


def parse_opts(args):
    o = {}
    for a in args:
        if '=' in a:
            k, v = a.split('=')
            o[k] = int(v)
    return o


if __name__ == '__main__':
    out = sys.argv[1]
    stamps = 'stamps' in sys.argv[2:]
    nt = '' if 'nont' in sys.argv[2:] else 'nt'
    open(out, 'w').write(gen(stamps, nt, parse_opts(sys.argv[2:])))
```

```python
import sys, math, struct

NAME = 'parallel_sum__compressed_kv_cla__dense_activation_squared_relu__decode'

WS_H1 = 0x10000
WS_H2 = 0x30000
WS_H3P = 0x40000
WS_HF = 0x60000
WS_M = 0x90000
WS_F2 = 0xA0000
WS_H4 = 0x100000
WS_H3 = 0x300000
WS_SLOW = 0x500000
WS_ST = 0x600000
WS_SIZE = 0x800000

LX_WQ = 0
LX_WUK = 41472
LX_WUV = LX_WUK + 33280
LX_W1 = 0
LX_WO = 0
LX_XN = LX_WUV + 36864
LX_QP = LX_XN + 2048
LX_CC = LX_QP + 1024
LX_FIN = LX_CC + 1280
LX_ACT = LX_FIN + 1536
LX_WT = LX_ACT + 256
LX_END = LX_WT + 256
LY_CKV = 0
LY_Q = 135168
LY_P = LY_Q + 16896
LY_MX = LY_P + 4096
LY_LX = LY_MX + 256
LY_ACT = LY_LX + 256
LY_END = LY_ACT + 256
LY_WOA = 0
LY_WOB = 36864
LDS_BYTES = max(LX_END, LY_END)

SCALE = (128 ** -0.5) * math.log2(math.e)


def f2u(x):
    return struct.unpack('<I', struct.pack('<f', x))[0]


class G:
    def __init__(self, stamps=False, nt='nt', opts=None):
        self.L = []
        self.stamps = stamps
        self.nt = nt
        self.o = opts or {}
        self.nlab = 0

    def __call__(self, s):
        for line in s.strip('\n').split('\n'):
            line = line.strip()
            if not line:
                continue
            if line.endswith(':'):
                self.L.append(line)
            else:
                self.L.append('    ' + line)

    def lab(self, p):
        self.nlab += 1
        return f'L_{p}_{self.nlab}'

    def stamp(self, k):
        if self.stamps:
            self(f's_memrealtime s[{64+2*k}:{65+2*k}]')

    def stwait(self):
        if self.stamps:
            self('s_waitcnt lgkmcnt(0)')

    def text(self):
        return '\n'.join(self.L) + '\n'


S_WAVE = 's3'
S_CU = 's4'
S_H = 's5'
S_J = 's6'
S_T0 = 's7'
SRD_A = 's[8:11]'
SRD_WS = 's[12:15]'
SRD_X = 's[16:19]'
SRD_B = 's[20:23]'
SRD_C = 's[24:27]'
SRD_O = 's[28:31]'
SRD_B2 = 's[32:35]'
SRD_OUT = 's[36:39]'
S_TAG = 's40'
S_EP = 's41'
S_SPIN = 's42'
S_MASK = 's43'
S_OFF = 's44'
S_T1 = 's45'
S_T2 = 's46'
S_T3 = 's47'
S_EXC = 's[48:49]'
S_B = 's50'
S_SPLIT = 's51'
S_HG = 's52'
S_Y = 's53'
S_PC = 's[54:55]'
S_TAG2 = 's56'
S_MASK2 = 's57'
S_T4 = 's58'
S_T5 = 's59'
SRD_W1 = 's[60:63]'
S_CG = 's96'
S_RS = 's97'
S_CMP = 's[98:99]'
S_PH = 's100'
S_KEEP = 's101'
DPPF = 'row_mask:0xf bank_mask:0xf'
MF = 'v_mfma_f32_16x16x32_bf16'


def R(a, n=4):
    return f'v[{a}:{a+n-1}]'


def srd(g, name, karg_off, nbytes):
    n = int(name[2:name.index(':')])
    g(f's_load_dwordx2 s[{n}:{n+1}], s[0:1], {karg_off}')
    return [f's_mov_b32 s{n+2}, {nbytes}', f's_mov_b32 s{n+3}, s11']


def spin_check(g):
    g(f's_sub_u32 {S_SPIN}, {S_SPIN}, 1')
    g('s_cbranch_scc1 L_END')


def or_chain(g, acc, rs, first):
    rs = list(rs)
    if first:
        g(f'v_or3_b32 v{acc}, v{rs[0]}, v{rs[1]}, v{rs[2]}')
        rs = rs[3:]
    while len(rs) >= 2:
        g(f'v_or3_b32 v{acc}, v{acc}, v{rs[0]}, v{rs[1]}')
        rs = rs[2:]
    if rs:
        g(f'v_or_b32 v{acc}, v{acc}, v{rs[0]}')


def tagged_check(g, regs, acc):
    for r in regs:
        g(f'v_xor_b32 v{r}, {S_TAG}, v{r}')
    or_chain(g, acc, regs, True)
    g(f'v_and_b32 v{acc}, 0xfff, v{acc}')
    g(f'v_cmp_ne_u32 vcc, 0, v{acc}')


def slow_toggle(g, soff, extra):
    g(f'''
    s_andn2_b32 {soff}, {soff}, {WS_SLOW}
    s_and_b32 {S_T0}, {S_SPIN}, 31
    s_cselect_b32 {S_T0}, 0, {WS_SLOW}
    s_add_u32 {soff}, {soff}, {S_T0}
    ''')
    if callable(extra):
        g(f's_cmp_eq_u32 {S_T0}, 0')
        extra()


def gather32(g, vaddr, soff, vlds, lds_off=0, act=False, stamp=None, pre=None, dual=False, firstwait=0):
    lp = g.lab('g32')
    if dual:
        g(f's_or_b32 {S_SPIN}, {S_SPIN}, 31')
    if act:
        g('s_mov_b32 exec_hi, 0xffff')
    if pre is not None:
        g(f'buffer_load_dwordx4 v[16:19], v{vaddr}, {SRD_WS}, {soff} offen sc1')
        pre()
        if firstwait:
            g(f'''
            s_cbranch_scc0 {lp}_in
            s_waitcnt vmcnt(1)
            s_branch {lp}_chk
            ''')
        else:
            g(f's_branch {lp}_in')
    g(f'''
    {lp}:
    buffer_load_dwordx4 v[16:19], v{vaddr}, {SRD_WS}, {soff} offen sc1
    ''')
    spin_check(g)
    if dual:
        slow_toggle(g, soff, dual)
    g(f'{lp}_in:')
    g('s_waitcnt vmcnt(0)')
    g(f'{lp}_chk:')
    tagged_check(g, range(16, 20), 8)
    if act:
        g('s_nop 1')
        g(f's_cbranch_vccnz {lp}')
        g('s_mov_b32 exec_hi, -1')
        g('v_permlane32_swap_b32 v16, v17')
        g('v_permlane32_swap_b32 v18, v19')
    else:
        g('v_permlane32_swap_b32 v16, v17')
        g('v_permlane32_swap_b32 v18, v19')
        g(f's_cbranch_vccnz {lp}')
    if stamp is not None:
        g.stamp(stamp)
    g(f'''
    v_add_f32 v16, v16, v17
    v_add_f32 v18, v18, v19
    s_nop 1
    v_permlane16_swap_b32 v16, v18
    v_add_f32 v16, v16, v18
    ''')
    if act:
        g('v_max_f32 v16, 0, v16')
        g('v_mul_f32 v16, v16, v16')
    g('v_cvt_pk_bf16_f32 v16, v16, v16')
    g(f'ds_write_b16 v{vlds}, v16 offset:{lds_off}')


def flag_poll(g, vaddr, soff, off=0):
    lp = g.lab('fp')
    g(f'{lp}:')
    if g.o.get('slp'):
        g(f's_sleep {g.o["slp"]}')
    g(f'buffer_load_dword v16, v{vaddr}, {SRD_WS}, {soff} offen offset:{off} sc1')
    spin_check(g)
    g(f"""
    s_waitcnt vmcnt(0)
    v_cmp_ne_u32 vcc, {S_EP}, v16
    s_nop 1
    s_and_b64 exec, exec, vcc
    s_cbranch_scc1 {lp}
    s_mov_b64 exec, -1
    """)


def gather32_ldsaddr(g, dst, base, bstride):
    g(f'''
    v_and_b32 v8, 1, v2
    v_lshl_add_u32 v8, v3, 1, v8
    v_lshrrev_b32 v9, 1, v2
    v_mul_u32_u24 v9, {bstride}, v9
    v_lshl_add_u32 v8, v8, 1, v9
    v_add_u32 v{dst}, {base}, v8
    ''')


def layernorm_loads(g, off_q, off_f):
    g(f'''
    v_lshrrev_b32 v8, 5, v0
    v_mul_u32_u24 v8, 1152, v8
    v_and_b32 v9, 31, v0
    v_lshl_add_u32 v8, v9, 4, v8
    v_cmp_gt_u32 vcc, 8, v9
    v_mov_b32 v9, 0x7fff0000
    s_nop 0
    v_cndmask_b32 v9, v9, v8, vcc
    s_waitcnt lgkmcnt(0)
    buffer_load_dwordx4 v[10:13], v8, {SRD_X}, 0 offen
    buffer_load_dwordx4 v[14:17], v8, {SRD_X}, 0 offen offset:512
    buffer_load_dwordx4 v[18:21], v9, {SRD_X}, 0 offen offset:1024
    buffer_load_dwordx4 v[22:25], v8, {SRD_X}, {off_q} offen
    buffer_load_dwordx4 v[128:131], v8, {SRD_X}, {off_f} offen
    ''')


def layernorm_stats(g):
    g(f's_mov_b32 {S_T1}, 0x3f803f80')
    g('v_mov_b32 v26, 0')
    g('v_mov_b32 v27, 0')
    for r in range(10, 22):
        g(f'v_dot2c_f32_bf16 v26, {S_T1}, v{r}')
        g(f'v_dot2c_f32_bf16 v27, v{r}, v{r}')
    g('s_nop 2')
    for k in (1, 2, 4, 8):
        g(f'v_add_f32_dpp v26, v26, v26 row_ror:{k} {DPPF}')
        g(f'v_add_f32_dpp v27, v27, v27 row_ror:{k} {DPPF}')
        g('s_nop 0')
    g(f'''
    v_mov_b32 v28, v26
    v_mov_b32 v29, v27
    s_nop 0
    v_permlane16_swap_b32 v26, v28
    v_permlane16_swap_b32 v27, v29
    v_add_f32 v26, v26, v28
    v_add_f32 v27, v27, v29
    v_mul_f32 v26, 0x{f2u(1.0/576):08x}, v26
    v_mul_f32 v27, 0x{f2u(1.0/576):08x}, v27
    v_fma_f32 v27, -v26, v26, v27
    v_max_f32 v27, 0, v27
    v_cvt_pk_bf16_f32 v26, v26, v27
    v_and_b32 v27, 0xffff0000, v26
    v_lshlrev_b32 v132, 16, v26
    v_add_f32 v27, 0x{f2u(1e-5):08x}, v27
    v_cvt_pk_bf16_f32 v27, v27, v27
    v_and_b32 v27, 0xffff0000, v27
    v_sqrt_f32 v27, v27
    s_nop 0
    v_cvt_pk_bf16_f32 v27, v27, v27
    v_and_b32 v27, 0xffff0000, v27
    v_rcp_f32 v133, v27
    ''')


def layernorm_addr(g):
    g(f'''
    v_lshrrev_b32 v8, 2, v0
    v_lshlrev_b32 v8, 6, v8
    v_and_b32 v9, 1, v0
    v_lshl_add_u32 v8, v9, 5, v8
    v_bfe_u32 v9, v0, 1, 1
    v_lshl_add_u32 v8, v9, 3, v8
    v_add_u32 v134, {LX_XN}, v8
    ''')


def layernorm_slice(g, r0, off8):
    for r in range(r0, r0 + 4):
        g(f'''
        v_lshlrev_b32 v28, 16, v{r}
        v_and_b32 v29, 0xffff0000, v{r}
        v_sub_f32 v28, v28, v132
        v_sub_f32 v29, v29, v132
        v_cvt_pk_bf16_f32 v29, v28, v29
        v_lshlrev_b32 v28, 16, v29
        v_and_b32 v29, 0xffff0000, v29
        v_mul_f32 v28, v28, v133
        v_mul_f32 v29, v29, v133
        v_cvt_pk_bf16_f32 v{r}, v28, v29
        ''')
    g(f'ds_write2_b64 v134, v[{r0}:{r0+1}], v[{r0+2}:{r0+3}] offset0:{off8} offset1:{off8+2}')


def alpha_addr(g, dst, tile_sgpr):
    g(f'''
    v_lshrrev_b32 v8, 2, v3
    v_bfe_u32 v9, v0, 1, 1
    v_lshl_add_u32 v9, {tile_sgpr}, 1, v9
    v_lshlrev_b32 v{dst}, 1, v8
    v_xor_b32 v9, v9, v{dst}
    v_lshlrev_b32 v9, 4, v9
    v_lshl_add_u32 v9, v8, 8, v9
    v_and_b32 v8, 1, v0
    v_lshl_add_u32 v9, v8, 3, v9
    v_mul_u32_u24 v8, 1152, v2
    v_add_u32 v{dst}, v8, v9
    ''')


def omega_src(g, dst, n, first_sgpr):
    g(f'''
    v_lshrrev_b32 v8, 3, v0
    v_lshl_add_u32 v8, {first_sgpr}, 3, v8
    v_mul_u32_u24 v8, 57, v8
    ''')
    for k in range(n):
        g(f'''
        v_bfe_u32 v9, v8, 10, 1
        v_bfe_u32 v{dst+k}, v8, 12, 1
        v_lshl_add_u32 v9, v{dst+k}, 1, v9
        v_lshlrev_b32 v9, 5, v9
        v_xor_b32 v{dst+k}, v9, v1
        ''')
        if k < n - 1:
            g('v_add_u32 v8, 456, v8')


def omega_addr(g, dst):
    g(f'''
    v_lshrrev_b32 v8, 2, v3
    v_lshl_add_u32 v9, v2, 3, v8
    v_mul_u32_u24 v9, 1152, v9
    v_lshl_add_u32 v9, {S_WAVE}, 7, v9
    v_and_b32 v{dst}, 3, v0
    v_lshl_add_u32 v9, v{dst}, 3, v9
    v_lshrrev_b32 v8, 1, v8
    v_and_b32 v{dst}, 1, v2
    v_lshl_add_u32 v8, v{dst}, 1, v8
    v_lshl_add_u32 v{dst}, v8, 5, v9
    v_xor_b32 v{dst+1}, 32, v{dst}
    v_xor_b32 v{dst+2}, 64, v{dst}
    v_xor_b32 v{dst+3}, 0x60, v{dst}
    ''')


def omega_reads(g, addr, dst, base):
    for t in range(4):
        g(f'ds_read_b64_tr_b16 {R(dst+4*t,2)}, v{addr+t} offset:{base}')
        g(f'ds_read_b64_tr_b16 {R(dst+4*t+2,2)}, v{addr+t} offset:{base+4608}')


def act_addr(g, dst, act):
    g(f'''
    v_and_b32 v8, 1, v0
    v_lshlrev_b32 v8, 6, v8
    v_lshl_add_u32 v8, v2, 4, v8
    v_add_u32 v{dst}, {act}, v8
    ''')


def omega_finish(g, aaddr, wregs, vaddr, soff, late=None):
    n = len(wregs)
    for k in range(n):
        g(f'ds_read_b128 {R(20+4*k)}, v{aaddr} offset:{128*k}')
    if late:
        late()
    g(f'''
    s_mov_b32 s98, 0xffff0000
    s_mov_b32 s99, 0xffff0000
    s_mov_b32 vcc_lo, 0
    s_mov_b32 vcc_hi, -1
    ''')
    g.stwait()
    for k in range(n):
        if not late:
            g(f's_waitcnt lgkmcnt({n-1-k})')
        elif k == 0:
            g('s_waitcnt lgkmcnt(9)')
        for t in range(4):
            if late and k == 1:
                g(f's_waitcnt lgkmcnt({6-2*t})')
            c = '0' if k == 0 else R(36 + 4 * t)
            g(f'{MF} {R(36+4*t)}, {R(20+4*k)}, {R(wregs[k]+4*t)}, {c}')
    g(f'''
    s_nop 5
    v_cndmask_b32 v36, v36, v40, {S_CMP}
    v_cndmask_b32 v37, v37, v41, {S_CMP}
    v_cndmask_b32 v44, v44, v48, {S_CMP}
    v_cndmask_b32 v45, v45, v49, {S_CMP}
    v_cndmask_b32 v36, v36, v44, vcc
    v_cndmask_b32 v37, v37, v45, vcc
    v_bfi_b32 v36, {S_MASK}, v36, v6
    v_bfi_b32 v37, {S_MASK}, v37, v6
    buffer_store_dwordx2 v[36:37], v{vaddr}, {SRD_WS}, {soff} offen sc1
    ''')


def h4_soff(g, prod):
    g(f'''
    s_mul_i32 {S_T3}, {prod}, 4608
    s_lshl_b32 {S_T4}, {S_WAVE}, 9
    s_add_u32 {S_T3}, {S_T3}, {S_T4}
    s_add_u32 {S_T3}, {S_T3}, {WS_H4}
    ''')


def phys_head(g, dst, x, k, tmp):
    hm = g.o.get('hmap', 4)
    if hm == 0:
        g(f's_lshl2_add_u32 {dst}, {x}, {k}')
    elif hm == 1:
        g(f's_lshl3_add_u32 {dst}, {k}, {x}')
    elif hm == 2:
        g(f"""
        s_and_b32 {tmp}, {k}, 1
        s_lshl1_add_u32 {dst}, {x}, {tmp}
        s_lshr_b32 {tmp}, {k}, 1
        s_lshl4_add_u32 {dst}, {tmp}, {dst}
        """)
    elif hm == 3:
        g(f"""
        s_and_b32 {tmp}, {x}, 3
        s_lshl2_add_u32 {dst}, {k}, {tmp}
        s_lshr_b32 {tmp}, {x}, 2
        s_lshl4_add_u32 {dst}, {tmp}, {dst}
        """)
    elif hm == 4:
        g(f"""
        s_add_u32 {tmp}, {x}, {k}
        s_and_b32 {tmp}, {tmp}, 7
        s_lshl3_add_u32 {dst}, {k}, {tmp}
        """)


def set_role(g, dk, ph_only=None):
    g(f's_lshr_b32 {S_T0}, s2, 5')
    if dk:
        g(f's_add_u32 {S_T0}, {S_T0}, {dk}')
        g(f's_and_b32 {S_T0}, {S_T0}, 3')
    g(f"""
    s_add_u32 {S_T1}, s2, {S_T0}
    s_and_b32 {S_T1}, {S_T1}, 7
    s_lshl3_add_u32 {S_PH}, {S_T0}, {S_T1}
    """)
    if not ph_only:
        g(f"""
        s_and_b32 {S_T1}, s2, 7
        s_lshl2_add_u32 {S_H}, {S_T1}, {S_T0}
        s_lshl2_add_u32 {S_CU}, {S_H}, {S_J}
        """)


def lane_consts(g):
    g(f'''
    v_lshrrev_b32 v1, 6, v0
    v_and_b32 v0, 63, v0
    v_readfirstlane_b32 {S_WAVE}, v1
    v_lshlrev_b32 v1, 4, v0
    v_lshrrev_b32 v2, 4, v0
    v_and_b32 v3, 15, v0
    ''')


def misc_consts(g):
    g(f'''
    s_mov_b32 {S_SPIN}, 0xfffff
    s_mov_b32 {S_MASK}, 0xfffff000
    s_mov_b32 {S_MASK2}, 0xfffefffe
    ''')


def make_tag(g):
    g(f'''
    s_add_u32 {S_EP}, {S_EP}, 1
    s_and_b32 {S_TAG}, {S_EP}, 0xfff
    s_andn2_b32 {S_TAG2}, {S_EP}, {S_MASK2}
    v_mov_b32 v6, {S_EP}
    ''')


def bias_prep(g, blk, va=62):
    g(f'''
    v_lshlrev_b32 v{va}, 2, v3
    s_lshl_b32 {S_T0}, {blk}, 6
    s_lshl_b32 {S_T1}, {blk}, 10
    s_add_u32 {S_T1}, {S_T1}, {WS_HF}
    buffer_load_dword v28, v{va}, {SRD_C}, {S_T0} offen
    ''')


def bias_unpack(g):
    g(f'''
    v_lshlrev_b32 v16, 16, v28
    v_lshlrev_b32 v17, 16, v28
    v_and_b32 v18, 0xffff0000, v28
    v_and_b32 v19, 0xffff0000, v28
    ''')


def gen(stamps=False, nt='nt', opts=None):
    g = G(stamps, nt, opts)
    o = g.o
    hdr = open('cdna_kernels/' + NAME + '.s.ref').read().split('\n')
    for line in hdr:
        if line.startswith('; @launch'):
            break
        g.L.append(line)
    g.L.append(f'; @launch grid=(256,1,1) block=(576,1,1) lds={LDS_BYTES}')
    g.L.append('.amdgcn_target "amdgcn-amd-amdhsa--gfx950"')
    g.L.append('.text')
    g.L.append(f'.globl {NAME}_kernel')
    g.L.append('.p2align 12')
    g.L.append(f'.type {NAME}_kernel,@function')
    g.L.append(f'{NAME}_kernel:')
    LNW = o.get('lnw', 3)
    NT = lambda k, d=0: 'nt' if o.get(k, d) else ''
    g.stamp(0)
    if o.get('hold'):
        g('s_memrealtime s[92:93]')

    def clear_stamps():
        if stamps:
            for k in range(2, 16):
                g(f's_mov_b32 s{64+2*k}, 0')
    g(f'''
    s_load_dwordx2 s[16:17], s[0:1], 0
    s_load_dwordx2 s[12:13], s[0:1], 104
    s_cmp_ge_u32 s2, 256
    s_cbranch_scc1 L_EXIT
    ''')
    lane_consts(g)
    g(f'''
    s_mov_b32 s11, 0x20000
    s_mov_b32 s15, s11
    s_mov_b32 s14, {WS_SIZE}
    s_cmp_ge_u32 s2, 128
    s_cbranch_scc1 L_Y
    ''')
    g(f'''
    s_load_dwordx2 s[8:9], s[0:1], 16
    s_load_dwordx2 s[20:21], s[0:1], 24
    s_mov_b32 s10, {576*8192}
    s_mov_b32 s19, s11
    s_movk_i32 s18, 2304
    s_bfe_u32 {S_J}, s2, 0x20003
    ''')
    r1, r2, r3 = o.get('r1', 3), o.get('r2', 2), o.get('r3', 1)
    set_role(g, 0, ph_only=True)
    g(f'''
    v_lshlrev_b32 v8, 1, v2
    v_xor_b32 v8, v8, v3
    v_lshlrev_b32 v135, 4, v8
    v_lshl_add_u32 v4, v2, 13, v135
    s_lshl_b32 {S_T3}, {S_WAVE}, 17
    s_lshl_b32 {S_T2}, {S_PH}, 8
    s_add_u32 {S_T2}, {S_T2}, {S_T3}
    s_mul_i32 {S_OFF}, {S_J}, {144*8192}
    s_add_u32 {S_OFF}, {S_OFF}, {S_T2}
    s_mul_i32 m0, {S_WAVE}, 4608
    s_mov_b32 {S_T3}, 32768
    s_and_b32 {S_Y}, s2, 31
    s_mul_i32 {S_CG}, {S_Y}, 43
    s_lshr_b32 {S_CG}, {S_CG}, 7
    s_mul_i32 {S_RS}, {S_CG}, 3
    s_sub_u32 {S_RS}, {S_Y}, {S_RS}
    s_cmp_eq_u32 {S_WAVE}, {LNW}
    s_cbranch_scc0 L_X_nox
    s_mul_i32 {S_T1}, {S_J}, 288
    s_mul_i32 {S_T0}, {S_RS}, 384
    ''')
    layernorm_loads(g, S_T1, S_T0)
    g('L_X_nox:')
    g('s_waitcnt lgkmcnt(0)')
    for u in range(4):
        g(f'buffer_load_dwordx4 v4, {SRD_A}, {S_OFF} offen {NT("qnt")} lds')
        if u < 3:
            g('s_addk_i32 m0, 1152')
            g(f's_add_u32 {S_OFF}, {S_OFF}, {S_T3}')
    g(f'''
    s_add_u32 {S_SPLIT}, {S_PH}, {r3}
    s_and_b32 {S_SPLIT}, {S_SPLIT}, 3
    ''')
    set_role(g, r1, ph_only=True)
    g(f'''
    s_mov_b32 s22, {512*8192}
    s_mov_b32 s23, s11
    v_lshlrev_b32 v8, 2, v2
    v_xor_b32 v8, v8, v3
    v_lshlrev_b32 v8, 4, v8
    v_lshl_add_u32 v5, v2, 13, v8
    s_cmp_eq_u32 {S_WAVE}, 8
    s_cselect_b32 {S_T1}, {LNW}, {S_WAVE}
    s_lshl3_add_u32 {S_T0}, {S_J}, {S_T1}
    s_lshl_b32 {S_T0}, {S_T0}, 9
    s_add_u32 {S_T0}, {S_T0}, {S_PH}
    s_lshl_b32 {S_OFF}, {S_T0}, 8
    s_mul_i32 {S_T0}, {S_T1}, 4160
    s_add_u32 m0, {S_T0}, {LX_WUK}
    s_cmp_eq_u32 {S_WAVE}, {LNW}
    s_barrier
    s_cbranch_scc1 L_X2
    ''')
    nuk = o.get('nuk', 3)

    def wuk_dma(a, b):
        for u in range(a, b):
            g(f'buffer_load_dwordx4 v5, {SRD_B}, {S_OFF} offen {NT("knt")} lds')
            if u < 3:
                g('s_addk_i32 m0, 1040')
                g(f's_add_u32 {S_OFF}, {S_OFF}, {S_T3}')
    wuk_dma(0, nuk)
    g('s_branch L_X2')
    g('L_Y:')
    rot = o.get('rot', 1)
    g(f'''
    s_cmp_eq_u32 {S_WAVE}, 0
    s_cbranch_scc0 L_nopf
    s_getpc_b64 {S_PC}
    s_bfe_u32 {S_T0}, s2, 0x20003
    s_mul_i32 {S_T0}, {S_T0}, 3072
    v_lshl_add_u32 v8, v0, 7, {S_T0}
    s_mov_b64 exec, 0xffffff
    global_load_dword v30, v8, {S_PC} offset:512
    ''')
    if o.get('ptx', 0):
        g(f'''
        v_lshlrev_b32 v8, 7, v0
        s_mov_b64 exec, 0x3ffff
        s_cmp_lt_u32 s2, {128 + 8*o.get('ptx', 0)}
        s_cbranch_scc0 L_nopx
        s_waitcnt lgkmcnt(0)
        global_load_dword v31, v8, s[16:17]
        L_nopx:
        ''')
    g(f'''
    s_mov_b64 exec, -1
    L_nopf:
    s_load_dwordx2 s[8:9], s[0:1], 8
    s_mov_b32 s10, {2*4096*1024}
    s_sub_u32 {S_Y}, s2, 128
    s_bfe_u32 {S_HG}, s2, 0x10003
    s_and_b32 {S_T0}, s2, 7
    s_lshr_b32 {S_T1}, {S_Y}, 4
    s_lshl3_add_u32 {S_SPLIT}, {S_T0}, {S_T1}
    s_lshl_b32 {S_OFF}, {S_SPLIT}, 17
    s_lshl_b32 {S_T0}, {S_WAVE}, 14
    s_add_u32 {S_OFF}, {S_OFF}, {S_T0}
    ''')
    if rot:
        g(f's_lshl_b32 {S_T0}, {S_HG}, 16')
        g(f's_add_u32 {S_OFF}, {S_OFF}, {S_T0}')
    g(f'''
    s_mul_i32 m0, {S_WAVE}, 16896
    s_cmp_lt_u32 {S_WAVE}, 4
    s_cbranch_scc0 L_Y2
    s_waitcnt lgkmcnt(0)
    ''')
    ypace = o.get('ypace', 2)
    ystep = o.get('ystep', 1)
    ydepth = o.get('ydepth', 0)
    cnt = 'nt' if o.get('cnt') else ''
    n = 0
    for k in range(8):
        for u in range(4):
            g(f'buffer_load_dwordx4 v1, {SRD_A}, {S_OFF} offen offset:{u*1024} {cnt} lds')
            n += 1
            w = (n % ystep == 0) and (n // ystep <= ypace)
            if u < 3:
                g('s_addk_i32 m0, 32')
                g(f's_waitcnt vmcnt({ydepth})' if w else 's_nop 0')
        if k < 7:
            g(f's_add_u32 m0, m0, {4128 + (48*1056 if k == 3 else 0)}')
            if k == 3:
                g(f's_xor_b32 {S_OFF}, {S_OFF}, 0x13000')
                g('s_barrier')
            else:
                g(f's_addk_i32 {S_OFF}, 4096')
            if w:
                g(f's_waitcnt vmcnt({ydepth})')
    g('s_waitcnt vmcnt(16)')
    g('s_barrier')
    g('s_branch L_Y2')

    g('L_X2:')
    g.stamp(1)
    clear_stamps()
    post = []
    g(f's_load_dword {S_EP}, s[12:13], 0')
    post += srd(g, SRD_C, 32, 512 * 8192)
    post += srd(g, SRD_W1, 56, 0 if o.get('now1') else 576 * 9216)
    post += srd(g, SRD_O, 72, 4608 * 1152)
    post += srd(g, SRD_B2, 80, 1152)
    post += srd(g, SRD_OUT, 88, 2304)
    for p in post:
        g(p)
    misc_consts(g)
    set_role(g, 0)
    g(f'''
    s_lshl2_add_u32 {S_CG}, {S_CG}, {S_SPLIT}
    s_lshl2_add_u32 {S_SPLIT}, {S_SPLIT}, {S_Y}
    s_add_u32 {S_SPLIT}, {S_SPLIT}, 101
    v_lshlrev_b32 v136, 3, v0
    s_cmp_eq_u32 {S_WAVE}, 8
    s_cbranch_scc1 L_X_w8
    s_cmp_eq_u32 {S_WAVE}, {LNW}
    s_cbranch_scc0 L_X_noln
    ''')
    layernorm_addr(g)
    g('s_waitcnt vmcnt(4)')
    g.stamp(13)
    layernorm_stats(g)
    layernorm_slice(g, 22, 0)
    g.stamp(14)
    layernorm_slice(g, 128, 128)
    g('s_waitcnt vmcnt(0)')
    g('L_X_noln:')
    alpha_addr(g, 7, S_WAVE)
    g(f'''
    v_and_b32 v8, 1, v0
    v_lshlrev_b32 v9, 9, v8
    v_lshl_add_u32 v10, v2, 4, v9
    v_add_u32 v10, {LX_XN}, v10
    v_mov_b32 v34, 0
    v_mov_b32 v35, 0
    s_lshl3_add_u32 {S_T0}, {S_CU}, {S_WAVE}
    s_lshl_b32 {S_T0}, {S_T0}, 7
    s_add_u32 {S_T0}, {S_T0}, {WS_H1}
    s_waitcnt lgkmcnt(0)
    ''')
    make_tag(g)
    g(f's_waitcnt vmcnt({nuk})')
    g('s_barrier')
    g.stamp(2)
    for s in range(5):
        g(f'ds_read_b128 {R(36+4*s)}, v10 offset:{64*s}')
        g(f'ds_read_b64_tr_b16 {R(16+4*s,2)}, v7 offset:{s*9216}')
        if s < 4:
            g(f'ds_read_b64_tr_b16 {R(18+4*s,2)}, v7 offset:{s*9216+4608}')
    g.stwait()
    for s in range(5):
        g(f's_waitcnt lgkmcnt({max(11-3*s, 0)})')
        c = '0' if s == 0 else R(12)
        g(f'{MF} {R(12)}, {R(36+4*s)}, {R(16+4*s)}, {c}')
    g(f'''
    s_nop 6
    s_mov_b64 exec, 0xffff
    v_bfi_b32 v138, {S_MASK}, v12, v6
    v_bfi_b32 v139, {S_MASK}, v13, v6
    buffer_store_dwordx2 v[138:139], v136, {SRD_WS}, {S_T0} offen
    s_or_b32 {S_KEEP}, {S_T0}, {WS_SLOW}
    s_mov_b64 exec, -1
    ''')
    g.stamp(3)
    if nuk < 4:
        g(f'''
        s_cmp_eq_u32 {S_WAVE}, {LNW}
        s_cbranch_scc1 L_X_nolk
        ''')
        wuk_dma(nuk, 4)
        g('L_X_nolk:')
    set_role(g, r1)
    g(f"""
    s_cmp_lt_u32 {S_WAVE}, 4
    s_cbranch_scc0 L_X_h1
    """)
    g(f"""
    v_lshrrev_b32 v8, 2, v3
    v_mul_u32_u24 v8, 2080, v8
    v_and_b32 v9, 3, v0
    v_lshl_add_u32 v8, v9, 8, v8
    v_lshl_add_u32 v8, v2, 4, v8
    s_mul_i32 {S_T0}, {S_WAVE}, 8320
    s_add_u32 {S_T0}, {S_T0}, {LX_WUK}
    v_add_u32 v8, {S_T0}, v8
    v_lshlrev_b32 v9, 6, v9
    v_add_u32 v56, v8, v9
    v_xor_b32 v57, 64, v9
    v_add_u32 v57, v8, v57
    v_xor_b32 v58, 0x80, v9
    v_add_u32 v58, v8, v58
    v_xor_b32 v59, 0xc0, v9
    v_add_u32 v59, v8, v59
    v_and_b32 v8, 1, v0
    v_mul_u32_u24 v9, 272, v8
    v_lshl_add_u32 v9, v2, 4, v9
    v_add_u32 v61, {LX_QP}, v9
    v_lshlrev_b32 v8, 15, v8
    v_lshl_add_u32 v62, v2, 4, v8
    s_lshl2_add_u32 {S_T2}, {S_CU}, {S_WAVE}
    s_lshl_b32 {S_T2}, {S_T2}, 6
    s_add_u32 {S_T2}, {S_T2}, {WS_H2}
    s_mov_b32 s48, 0x00030003
    s_mov_b32 s49, 0x00030003
    """)
    set_role(g, r2)
    g(f"""
    v_lshl_add_u32 v4, v2, 17, v135
    s_lshl_b32 {S_OFF}, {S_J}, 5
    s_add_u32 {S_OFF}, {S_OFF}, {S_WAVE}
    s_lshl_b32 {S_OFF}, {S_OFF}, 7
    s_add_u32 {S_OFF}, {S_OFF}, {S_PH}
    s_lshl_b32 {S_OFF}, {S_OFF}, 8
    s_mul_i32 {S_T0}, {S_WAVE}, 9216
    s_add_u32 m0, {S_T0}, {LX_WUV}
    s_waitcnt vmcnt(0)
    s_barrier
    """)
    areg = lambda s, t: 64 + 8 * s + 4 * t
    for s in range(4):
        for t in range(2):
            g(f'ds_read_b128 {R(areg(s,t))}, v{56+s} offset:{t*1040}')
    g.stwait()
    g('s_barrier')
    for s in range(4):
        g(f'ds_read_b128 {R(36+4*s)}, v61 offset:{s*64}')
    for s in range(4):
        g(f's_waitcnt lgkmcnt({3-s})')
        for t in range(2):
            c = '0' if s == 0 else R(20 + 4 * t)
            g(f'{MF} {R(20+4*t)}, {R(areg(s,t))}, {R(36+4*s)}, {c}')
    g(f"""
    s_nop 5
    s_mov_b64 exec, {S_EXC}
    v_cvt_pk_bf16_f32 v16, v20, v21
    v_cvt_pk_bf16_f32 v17, v22, v23
    v_cvt_pk_bf16_f32 v18, v24, v25
    v_cvt_pk_bf16_f32 v19, v26, v27
    """)
    for r in range(4):
        g(f'v_bfi_b32 v{16+r}, {S_MASK2}, v{16+r}, v6')
    g(f"""
    buffer_store_dwordx4 v[16:19], v62, {SRD_WS}, {S_T2} offen sc1
    s_mov_b64 exec, 0xffff
    buffer_store_dwordx2 v[138:139], v136, {SRD_WS}, {S_KEEP} offen sc1
    s_mov_b64 exec, -1
    """)
    g.stamp(5)
    g('s_barrier')
    for u in range(8):
        g(f'buffer_load_dwordx4 v4, {SRD_C}, {S_OFF} offen {NT("x2nt", 1)} lds')
        if u < 7:
            g('s_addk_i32 m0, 1152')
            g(f's_add_u32 {S_OFF}, {S_OFF}, {61*8192 if u == 3 else 8192}')
    g.stamp(6)
    g(f's_lshl_b32 {S_T0}, {S_WAVE}, 1')
    alpha_addr(g, 56, S_T0)
    g(f"""
    v_add_u32 v56, {LX_WUV}, v56
    v_xor_b32 v57, 32, v56
    s_lshl2_add_u32 {S_T4}, {S_H}, {S_WAVE}
    s_lshl2_add_u32 {S_T4}, {S_T4}, {S_J}
    s_lshl_b32 {S_T4}, {S_T4}, 8
    s_add_u32 {S_T4}, {S_T4}, {WS_H3P}
    v_and_b32 v8, 3, v0
    v_mul_u32_u24 v9, 272, v8
    v_lshl_add_u32 v9, v2, 4, v9
    v_add_u32 v60, {LX_CC}, v9
    s_and_b32 {S_B}, {S_WAVE}, 1
    s_lshr_b32 {S_HG}, {S_WAVE}, 1
    s_lshl1_add_u32 {S_B}, {S_B}, {S_HG}
    s_lshl2_add_u32 {S_T1}, {S_CU}, {S_B}
    s_lshl_b32 {S_T1}, {S_T1}, 12
    s_add_u32 {S_T1}, {S_T1}, {WS_H3}
    s_lshl_b32 {S_T0}, {S_B}, 6
    s_add_u32 {S_T0}, {S_T0}, {LX_WT}
    v_lshl_add_u32 v62, v2, 4, {S_T0}
    v_lshlrev_b32 v8, 4, v3
    v_lshl_add_u32 v96, v2, 10, v8
    v_lshl_add_u32 v8, v2, 3, v8
    s_mul_i32 {S_T5}, {S_WAVE}, 272
    s_add_u32 {S_T5}, {S_T5}, {LX_CC}
    v_add_u32 v97, {S_T5}, v8
    v_and_b32 v8, 1, v0
    v_lshlrev_b32 v8, 4, v8
    v_mov_b32 v9, 0xffff
    v_lshlrev_b32 v9, v8, v9
    """)
    for t in range(4):
        m = (3 << (2 * t)) * 0x01010101
        g(f's_mov_b32 vcc_lo, 0x{m:08x}')
        g(f's_mov_b32 vcc_hi, 0x{m:08x}')
        g(f'v_cndmask_b32 v{100+t}, 0, v9, vcc')
    g('s_barrier')

    def h3_loads():
        for u in range(4):
            g(f'buffer_load_dwordx4 {R(36+4*u)}, v96, {SRD_WS}, {S_T1} offen offset:{u*256} sc1')
    g('s_barrier')
    h3_loads()
    g.stamp(8)
    g('s_waitcnt vmcnt(4)')
    g('s_barrier')
    g('ds_read_b128 v[20:23], v62')
    for s in range(4):
        for t in range(2):
            g(f'ds_read_b64_tr_b16 {R(64+8*s+4*t,2)}, v{56+t} offset:{s*9216}')
            g(f'ds_read_b64_tr_b16 {R(66+8*s+4*t,2)}, v{56+t} offset:{s*9216+4608}')
    g.stwait()
    g('s_waitcnt lgkmcnt(15)')
    for u in range(4):
        for t in range(4):
            g(f'v_and_b32 v{104+4*u+t}, v{20+u}, v{100+t}')
    lp = g.lab('h3')
    lp2 = g.lab('h3in')
    g(f's_branch {lp2}')
    g(f'{lp}:')
    h3_loads()
    spin_check(g)
    g(f'{lp2}:')
    for u in range(4):
        g(f's_waitcnt vmcnt({3-u})')
        for r in range(4):
            g(f'v_xor_b32 v{36+4*u+r}, {S_TAG2}, v{36+4*u+r}')
        or_chain(g, 8, range(36 + 4 * u, 40 + 4 * u), u == 0)
        c = '0' if u == 0 else R(12)
        g(f'{MF} {R(12)}, {R(104+4*u)}, {R(36+4*u)}, {c}')
    g(f"""
    v_and_b32 v8, 0x10001, v8
    v_cmp_ne_u32 vcc, 0, v8
    s_nop 3
    s_cbranch_vccnz {lp}
    s_mov_b32 exec_hi, 0
    v_cvt_pk_bf16_f32 v12, v12, v13
    v_cvt_pk_bf16_f32 v13, v14, v15
    ds_write_b64 v97, v[12:13]
    s_mov_b32 exec_hi, -1
    """)
    g.stamp(9)
    g('s_waitcnt lgkmcnt(0)')
    g('s_barrier')
    for s in range(4):
        g(f'ds_read_b128 {R(36+4*s)}, v60 offset:{s*64}')
    g('s_mov_b32 vcc_lo, 0xffff0000')
    g('s_mov_b32 vcc_hi, 0')
    for s in range(4):
        g(f's_waitcnt lgkmcnt({3-s})')
        for t in range(2):
            c = '0' if s == 0 else R(12 + 4 * t)
            g(f'{MF} {R(12+4*t)}, {R(36+4*s)}, {R(64+8*s+4*t)}, {c}')
    g(f"""
    s_nop 5
    s_mov_b32 exec_hi, 0
    v_add_f32 v12, v12, v14
    v_add_f32 v13, v13, v15
    v_add_f32 v16, v16, v18
    v_add_f32 v17, v17, v19
    v_cndmask_b32 v12, v12, v16, vcc
    v_cndmask_b32 v13, v13, v17, vcc
    v_bfi_b32 v12, {S_MASK}, v12, v6
    v_bfi_b32 v13, {S_MASK}, v13, v6
    buffer_store_dwordx2 v[12:13], v136, {SRD_WS}, {S_T4} offen
    s_or_b32 {S_T4}, {S_T4}, {WS_SLOW}
    buffer_store_dwordx2 v[12:13], v136, {SRD_WS}, {S_T4} offen sc1
    s_mov_b32 exec_hi, -1
    """)
    g.stamp(10)
    g('s_branch L_X_post')
    g('L_X_h1:')
    f2pos = o.get('f2pos', 1)
    ne = o.get('ne', 0)
    flag_regs = f"""
    v_mov_b32 v32, v6
    v_mov_b32 v33, v6
    v_mov_b32 v34, v6
    v_mov_b32 v35, v6
    s_lshl_b32 {S_T4}, {S_CU}, 7
    s_add_u32 {S_T4}, {S_T4}, {WS_F2}
    """
    fl = f"""
    s_mov_b64 exec, 0xff
    buffer_store_dwordx4 v[32:35], v1, {SRD_WS}, {S_T4} offen sc1
    s_mov_b64 exec, -1
    """
    gather32_ldsaddr(g, 60, LX_QP - 256, 272)
    g(f"""
    v_lshl_add_u32 v60, {S_WAVE}, 6, v60
    v_lshlrev_b32 v8, 4, v3
    v_lshl_add_u32 v61, v2, 10, v8
    s_lshl4_add_u32 {S_T2}, {S_H}, {S_WAVE}
    s_lshl_b32 {S_T2}, {S_T2}, 8
    s_add_u32 {S_T2}, {S_T2}, {WS_H1 - 1024}
    s_sub_u32 {S_T5}, {S_WAVE}, 4
    s_mul_i32 {S_T0}, {S_T5}, 9
    """)
    if f2pos == 0:
        g(flag_regs)
    omega_src(g, 64, 9, S_T0)
    g(f"""
    v_mul_u32_u24 v9, 9216, v2
    v_add_u32 v5, v135, v9
    s_cmp_lt_u32 {S_Y}, 27
    s_cbranch_scc1 L_X_a1
    s_lshl_b32 m0, {S_T0}, 10
    s_mul_i32 {S_OFF}, {S_SPLIT}, 36864
    s_add_u32 {S_OFF}, {S_OFF}, m0
    s_branch L_X_a2
    L_X_a1:
    s_mul_i32 {S_OFF}, {S_RS}, 48
    s_add_u32 {S_OFF}, {S_OFF}, {S_T5}
    s_mul_i32 {S_OFF}, {S_OFF}, {4*9216}
    s_lshl_b32 {S_T0}, {S_CG}, 8
    s_add_u32 {S_OFF}, {S_OFF}, {S_T0}
    s_mul_i32 m0, {S_T5}, 1152
    s_mov_b32 {S_T3}, {16*9216}
    L_X_a2:
    """)
    h1e = o.get('h1e', 4)

    def h1_fallback():
        g(f"""
        s_cbranch_scc1 L_X_nfb
        s_waitcnt vmcnt(0)
        s_and_b32 {S_T1}, {S_KEEP}, 0xfffffc00
        s_lshl_b32 {S_T0}, {S_T5}, 8
        s_add_u32 {S_T1}, {S_T1}, {S_T0}
        s_andn2_b32 {S_T0}, {S_T1}, {WS_SLOW}
        s_mov_b64 exec, 0xffff
        buffer_load_dwordx4 v[20:23], v1, {SRD_WS}, {S_T0} offen sc1
        s_waitcnt vmcnt(0)
        buffer_store_dwordx4 v[20:23], v1, {SRD_WS}, {S_T1} offen sc1
        s_mov_b64 exec, -1
        L_X_nfb:
        """)

    def b1b():
        if f2pos == 0:
            g(f"""
            s_cmp_eq_u32 {S_WAVE}, 7
            s_cbranch_scc0 L_X_nfl
            """)
            g(fl)
            g(f"""
            s_waitcnt vmcnt(2)
            s_branch L_X_nfl2
            L_X_nfl:
            s_waitcnt vmcnt(1)
            L_X_nfl2:
            """)
        else:
            g('s_waitcnt vmcnt(1)')
        g('s_barrier')
        g.stamp(12)
    if h1e:
        g(f's_waitcnt vmcnt({h1e})')
        gather32(g, 61, S_T2, 60, stamp=4, pre=b1b, dual=h1_fallback, firstwait=(1 if f2pos == 0 else 0))
    else:
        g('s_waitcnt vmcnt(0)')
        g('s_barrier')
        g.stamp(12)
        gather32(g, 61, S_T2, 60, stamp=4, dual=h1_fallback)
    g(f"""
    s_cmp_lt_u32 {S_Y}, 27
    s_waitcnt lgkmcnt(0)
    s_barrier
    s_mov_b64 exec, 0xffff
    buffer_store_dwordx2 v[138:139], v136, {SRD_WS}, {S_KEEP} offen sc1
    s_mov_b64 exec, -1
    s_cbranch_scc0 L_X_nof1
    """)
    for u in range(12):
        if u == ne:
            g('s_barrier')
        g(f'buffer_load_dwordx4 v5, {SRD_W1}, {S_OFF} offen {NT("x2nt", 1)} lds')
        if u < 11:
            g('s_addk_i32 m0, 4608')
            g(f's_add_u32 {S_OFF}, {S_OFF}, {S_T3}')
    g('s_barrier')
    g.stamp(6)
    g(f's_lshl_b32 {S_T0}, {S_T5}, 1')
    alpha_addr(g, 56, S_T0)
    for s in range(6):
        g(f'ds_read_b128 {R(140+4*s)}, v10 offset:{1024+64*s}')
    g(f"""
    v_xor_b32 v57, 32, v56
    s_lshl2_add_u32 {S_T2}, {S_CG}, {S_T5}
    s_lshl2_add_u32 {S_T2}, {S_T2}, {S_RS}
    s_lshl_b32 {S_T2}, {S_T2}, 8
    s_add_u32 {S_T2}, {S_T2}, {WS_HF}
    """)
    if stamps and o.get('st7', 0):
        g('s_waitcnt vmcnt(0)')
        g.stamp(7)
    g(f"""
    s_barrier
    s_waitcnt vmcnt(0)
    s_barrier
    """)
    for s in range(6):
        for t in range(2):
            g(f'ds_read_b64_tr_b16 {R(80+8*s+4*t,2)}, v{56+t} offset:{s*9216}')
            g(f'ds_read_b64_tr_b16 {R(82+8*s+4*t,2)}, v{56+t} offset:{s*9216+4608}')
    f1pos = o.get('f1pos', 0)
    if f1pos == 1:
        g('s_barrier')
    g.stwait()
    for s in range(6):
        g(f's_waitcnt lgkmcnt({min(15, 20-4*s)})')
        for t in range(2):
            c = '0' if s == 0 else R(12 + 4 * t)
            g(f'{MF} {R(12+4*t)}, {R(140+4*s)}, {R(80+8*s+4*t)}, {c}')
    g(f"""
    s_mov_b32 vcc_lo, 0xffff0000
    s_mov_b32 vcc_hi, 0
    s_nop 4
    s_mov_b32 exec_hi, 0
    v_cndmask_b32 v12, v12, v16, vcc
    v_cndmask_b32 v13, v13, v17, vcc
    v_bfi_b32 v12, {S_MASK}, v12, v6
    v_bfi_b32 v13, {S_MASK}, v13, v6
    buffer_store_dwordx2 v[12:13], v136, {SRD_WS}, {S_T2} offen sc1
    s_mov_b32 exec_hi, -1
    """)
    g.stamp(11)
    if f1pos == 0:
        g('s_barrier')
    g('s_branch L_X_post')
    g('L_X_nof1:')
    g(f"""
    s_cmp_lt_u32 {S_Y}, 31
    s_cbranch_scc1 L_X_f2s
    s_barrier
    s_branch L_X_nof2
    L_X_f2s:
    """)
    for u in range(9):
        if u == ne:
            g('s_barrier')
        g(f'buffer_load_dwordx4 v{64+u}, {SRD_O}, {S_OFF} offen offset:{(u&3)*1024} {NT("x2nt", 1)} lds')
        if u & 3 == 3:
            g('s_addk_i32 m0, 4096')
            g(f's_addk_i32 {S_OFF}, 4096')
    g(f"""
    L_X_nof2:
    s_barrier
    s_barrier
    s_waitcnt vmcnt(0)
    s_barrier
    s_barrier
    s_branch L_X_post
    """)
    g('L_X_w8:')
    set_role(g, r1)
    g('s_waitcnt lgkmcnt(0)')
    make_tag(g)
    g(flag_regs)
    set_role(g, r2)
    g(f"""
    v_lshlrev_b32 v62, 8, v0
    s_lshr_b32 {S_T2}, {S_H}, 4
    s_lshl_b32 {S_T2}, {S_T2}, 14
    s_and_b32 {S_T1}, {S_H}, 15
    s_lshl4_add_u32 {S_T2}, {S_T1}, {S_T2}
    s_add_u32 {S_T2}, {S_T2}, {WS_M}
    s_waitcnt vmcnt({nuk})
    s_barrier
    """)
    wuk_dma(nuk, 4)
    g('s_waitcnt vmcnt(0)')
    g('s_barrier')
    if f2pos == 1:
        g(fl)
    g('s_barrier')
    if f2pos == 2:
        g(fl)
    g(f"""
    s_barrier
    s_barrier
    s_setprio 3
    """)
    lp = g.lab('ml')
    g(f'''
    {lp}:
    buffer_load_dwordx3 v[16:18], v62, {SRD_WS}, {S_T2} offen sc1
    ''')
    spin_check(g)
    g(f'''
    s_waitcnt vmcnt(0)
    v_cmp_ne_u32 vcc, {S_EP}, v18
    s_nop 1
    s_and_b64 exec, exec, vcc
    s_cbranch_scc1 {lp}
    s_barrier
    s_mov_b64 exec, -1
    v_max_f32_dpp v20, v16, v16 row_ror:1 {DPPF}
    v_lshlrev_b32 v8, 2, v0
    v_add_u32 v8, {LX_WT}, v8
    v_max_f32_dpp v20, v20, v20 row_ror:2 {DPPF}
    s_nop 1
    v_max_f32_dpp v20, v20, v20 row_ror:4 {DPPF}
    s_nop 1
    v_max_f32_dpp v21, v20, v20 row_ror:8 {DPPF}
    v_max_f32_dpp v20, v20, v20 row_ror:8 {DPPF}
    s_nop 1
    v_permlane16_swap_b32 v20, v21
    v_max_f32 v20, v20, v21
    v_sub_f32 v16, v16, v20
    v_exp_f32 v16, v16
    s_nop 0
    v_mul_f32 v17, v16, v17
    s_nop 1
    v_add_f32_dpp v17, v17, v17 row_ror:1 {DPPF}
    s_nop 1
    v_add_f32_dpp v17, v17, v17 row_ror:2 {DPPF}
    s_nop 1
    v_add_f32_dpp v17, v17, v17 row_ror:4 {DPPF}
    s_nop 1
    v_add_f32_dpp v21, v17, v17 row_ror:8 {DPPF}
    v_add_f32_dpp v17, v17, v17 row_ror:8 {DPPF}
    s_nop 1
    v_permlane16_swap_b32 v17, v21
    v_add_f32 v17, v17, v21
    v_rcp_f32 v17, v17
    s_nop 0
    v_mul_f32 v16, v16, v17
    v_cvt_pk_bf16_f32 v16, v16, v16
    ds_write_b32 v8, v16
    s_waitcnt lgkmcnt(0)
    s_barrier
    s_setprio 0
    s_barrier
    L_X_post:
    s_cmp_lt_u32 {S_Y}, 16
    s_cbranch_scc1 L_X_final
    s_sub_u32 {S_T0}, {S_Y}, 27
    s_cmp_lt_u32 {S_T0}, 4
    s_cbranch_scc0 L_END
    ''')
    g(f'''
    s_load_dwordx2 s[24:25], s[0:1], 64
    s_movk_i32 s26, 9216
    s_mov_b32 {S_CU}, {S_SPLIT}
    ''')
    omega_addr(g, 56)
    omega_reads(g, 56, 80, LX_WO)
    act_addr(g, 61, LX_ACT)
    h4_soff(g, S_CU)
    g(f'''
    s_cmp_eq_u32 {S_WAVE}, 8
    s_cbranch_scc0 L_X_f2w
    s_waitcnt lgkmcnt(0)
    ''')
    bias_prep(g, S_CU)
    gather32_ldsaddr(g, 60, LX_ACT, 64)
    g('s_waitcnt vmcnt(0)')
    bias_unpack(g)
    gather32(g, 1, S_T1, 60, act=True)
    g('L_X_f2w:')
    g('s_waitcnt lgkmcnt(0)')
    g('s_barrier')
    omega_finish(g, 61, [80], 136, S_T3)
    g.stamp(12)
    g('s_branch L_END')
    g('L_X_final:')
    g(f'''
    s_lshr_b32 {S_T0}, s2, 5
    s_lshl4_add_u32 {S_CU}, {S_T0}, {S_Y}
    s_cmp_lt_u32 {S_CU}, 36
    s_cbranch_scc0 L_END
    v_lshrrev_b32 v8, 3, v0
    v_mul_u32_u24 v8, 4608, v8
    v_and_b32 v9, 7, v0
    v_lshl_add_u32 v10, v9, 4, v8
    s_mul_i32 {S_T0}, {S_WAVE}, {16*4608}
    s_lshl_b32 {S_T1}, {S_CU}, 7
    s_add_u32 {S_T0}, {S_T0}, {S_T1}
    s_add_u32 {S_T0}, {S_T0}, {WS_H4}
    s_add_u32 {S_T1}, {S_T0}, {8*4608}
    s_lshl_b32 {S_T4}, {S_CU}, 5
    v_lshlrev_b32 v55, 1, v3
    v_and_b32 v8, 1, v2
    v_mul_u32_u24 v56, 1152, v8
    v_add_u32 v56, v56, v55
    buffer_load_ushort v57, v56, {SRD_X}, {S_T4} offen
    buffer_load_ushort v58, v55, {SRD_B2}, {S_T4} offen
    v_lshl_add_u32 v8, v9, 1, v8
    v_lshrrev_b32 v59, 1, v2
    v_lshl_add_u32 v8, v59, 4, v8
    v_mul_u32_u24 v8, 48, v8
    v_lshl_add_u32 v8, {S_WAVE}, 2, v8
    v_and_b32 v11, 31, v0
    v_mul_u32_u24 v11, 48, v11
    v_add_u32 v61, {LX_FIN}, v11
    v_lshl_add_u32 v60, v59, 4, v61
    v_add_u32 v59, {LX_FIN}, v8
    ''')
    lp = g.lab('h4')
    g(f'{lp}:')
    for u, sr in enumerate((S_T0, S_T1)):
        g(f'buffer_load_dwordx4 {R(16+4*u)}, v10, {SRD_WS}, {sr} offen sc1')
    spin_check(g)
    g('s_waitcnt vmcnt(0)')
    tagged_check(g, range(16, 24), 8)
    g(f'''
    v_pk_add_f32 v[16:17], v[16:17], v[20:21]
    v_pk_add_f32 v[18:19], v[18:19], v[22:23]
    s_cbranch_vccnz {lp}
    ''')
    g.stamp(13)
    g(f'''
    v_permlane32_swap_b32 v16, v17
    v_permlane32_swap_b32 v18, v19
    v_add_f32 v16, v16, v17
    v_add_f32 v18, v18, v19
    v_lshlrev_b32 v57, 16, v57
    v_lshlrev_b32 v58, 16, v58
    v_permlane16_swap_b32 v16, v18
    v_add_f32 v16, v16, v18
    v_add_f32 v57, v57, v58
    s_cmp_eq_u32 {S_WAVE}, 0
    v_add_f32_dpp v16, v16, v16 row_ror:8 {DPPF}
    ds_write_b32 v59, v16
    s_waitcnt lgkmcnt(0)
    s_barrier
    s_cbranch_scc0 L_END
    ds_read_b128 v[16:19], v60
    ds_read_b32 v20, v61 offset:32
    s_waitcnt lgkmcnt(1)
    v_pk_add_f32 v[16:17], v[16:17], v[18:19]
    v_add_f32 v16, v16, v17
    v_mov_b32 v17, v16
    s_waitcnt lgkmcnt(0)
    v_add_f32 v57, v57, v20
    v_permlane32_swap_b32 v16, v17
    v_add_f32 v16, v16, v17
    v_add_f32 v16, v16, v57
    v_cvt_pk_bf16_f32 v16, v16, v16
    s_mov_b32 exec_hi, 0
    buffer_store_short v16, v56, {SRD_OUT}, {S_T4} offen
    ''')
    if o.get('hold'):
        g(f'''
        s_and_b32 s94, s2, 7
        s_lshr_b32 s94, {o.get('holdm', 1)}, s94
        s_and_b32 s94, s94, 1
        s_cbranch_scc0 L_nohold
        L_hold:
        s_memrealtime s[94:95]
        s_waitcnt lgkmcnt(0)
        s_sub_u32 s94, s94, s92
        s_cmp_lt_u32 s94, {o['hold']}
        s_cbranch_scc1 L_hold
        L_nohold:
        ''')
    g(f'''
    s_cmp_eq_u32 s2, 0
    s_cbranch_scc0 L_END
    v_mov_b32 v17, {S_EP}
    v_mov_b32 v18, 0
    buffer_store_dword v17, v18, {SRD_WS}, 0 offen
    s_branch L_END
    ''')

    g('L_Y2:')
    g.stamp(1)
    clear_stamps()
    post = []
    post += srd(g, SRD_B, 40, 0 if o.get('nowo') else 4096 * 1152)
    post += srd(g, SRD_C, 64, 9216)
    post += srd(g, SRD_O, 72, 0 if o.get('now2') else 4608 * 1152)
    for p in post:
        g(p)
    g(f'''
    s_lshr_b32 {S_B}, {S_SPLIT}, 5
    s_and_b32 {S_T0}, s2, 7
    s_lshr_b32 {S_T1}, {S_Y}, 3
    s_lshl4_add_u32 {S_CU}, {S_T0}, {S_T1}
    s_lshr_b32 {S_T2}, {S_T1}, 2
    ''')
    phys_head(g, S_PH, S_T0, S_T2, S_T3)
    g(f'''
    s_and_b32 {S_T1}, {S_T1}, 3
    s_lshl2_add_u32 {S_PH}, {S_PH}, {S_T1}
    ''')
    misc_consts(g)
    g(f'''
    s_waitcnt lgkmcnt(0)
    s_load_dword {S_EP}, s[12:13], 0
    s_cmp_lt_u32 {S_WAVE}, 4
    s_cbranch_scc0 L_Y_nqk
    ''')
    g(f'''
    v_mul_u32_u24 v8, 1056, v3
    v_lshl_add_u32 v8, v2, 4, v8
    s_mul_i32 {S_T0}, {S_WAVE}, 16896
    v_add_u32 v4, {S_T0}, v8
    v_add_u32 v7, 67584, v4
    v_add_u32 v5, {LY_Q}, v8
    v_lshlrev_b32 v13, 4, v3
    v_add_u32 v11, {LY_MX}, v13
    v_lshl_add_u32 v10, {S_WAVE}, 2, v11
    s_lshl_b32 {S_T0}, {S_WAVE}, 10
    s_add_u32 {S_T0}, {S_T0}, {LY_P}
    v_add_u32 v12, {S_T0}, v1
    s_lshl1_add_u32 {S_T2}, {S_B}, {S_HG}
    s_lshl2_add_u32 {S_T2}, {S_T2}, {S_WAVE}
    s_lshl_b32 {S_T2}, {S_T2}, 12
    s_add_u32 {S_T2}, {S_T2}, {WS_H2}
    s_mul_i32 {S_T0}, {S_WAVE}, 4224
    s_add_u32 {S_T0}, {S_T0}, {LY_Q}
    v_add_u32 v14, {S_T0}, v1
    s_mov_b32 {S_T1}, 0x{f2u(SCALE):08x}
    s_waitcnt lgkmcnt(0)
    ''')
    make_tag(g)

    def kreads(t):
        for ks in range(16):
            g(f'ds_read_b128 {R(40+8*ks+4*t)}, v{7 if t else 4} offset:{ks*64}')

    def h2_loads():
        for u in range(4):
            g(f'buffer_load_dwordx4 {R(16+4*u)}, v1, {SRD_WS}, {S_T2} offen offset:{u*1024} sc1')
    lp = g.lab('h2')
    lp2 = g.lab('h2in')
    kreads(0)
    g('s_waitcnt lgkmcnt(0)')
    g('s_barrier')
    g.stamp(4)
    h2_loads()
    g('s_waitcnt vmcnt(4)')
    g.stamp(2)
    g('s_barrier')
    kreads(1)
    g(f's_branch {lp2}')
    g(f'{lp}:')
    h2_loads()
    spin_check(g)
    g(f'{lp2}:')
    for u in range(4):
        g(f's_waitcnt vmcnt({3-u})')
        for r in range(4):
            g(f'v_xor_b32 v{16+4*u+r}, {S_TAG2}, v{16+4*u+r}')
        g(f'ds_write_b128 v14, {R(16+4*u)} offset:{u*1056}')
        or_chain(g, 8, range(16 + 4 * u, 20 + 4 * u), u == 0)
    g(f'''
    v_and_b32 v8, 0x10001, v8
    v_cmp_ne_u32 vcc, 0, v8
    s_waitcnt lgkmcnt(0)
    s_nop 0
    s_cbranch_vccnz {lp}
    ''')
    g.stamp(5)
    g.stwait()
    g('s_barrier')
    for ks in range(4):
        g(f'ds_read_b128 {R(16+4*ks)}, v5 offset:{ks*64}')
    for ks in range(16):
        q = 16 + 4 * (ks & 3)
        g(f's_waitcnt lgkmcnt({min(3, 15-ks)})')
        for t in range(2):
            c = '0' if ks == 0 else R(32 + 4 * t)
            g(f'{MF} {R(32+4*t)}, {R(40+8*ks+4*t)}, {R(q)}, {c}')
        if ks + 4 < 16:
            g(f'ds_read_b128 {R(q)}, v5 offset:{(ks+4)*64}')
    g(f'''
    s_nop 6
    v_max3_f32 v8, v32, v33, v34
    v_max3_f32 v8, v8, v35, v36
    v_max3_f32 v8, v8, v37, v38
    v_max_f32 v9, v8, v39
    v_max_f32 v8, v8, v39
    s_nop 1
    v_permlane16_swap_b32 v8, v9
    v_max_f32 v15, v8, v9
    v_max_f32 v8, v8, v9
    s_nop 1
    v_permlane32_swap_b32 v8, v15
    v_max_f32 v8, v8, v15
    ds_write_b32 v10, v8
    s_waitcnt lgkmcnt(0)
    s_barrier
    ds_read_b128 v[16:19], v11
    s_waitcnt lgkmcnt(0)
    v_max3_f32 v8, v16, v17, v18
    v_max_f32 v8, v8, v19
    v_mul_f32 v24, {S_T1}, v8
    ''')
    for r in range(8):
        g(f'v_fma_f32 v{32+r}, v{32+r}, {S_T1}, -v24')
    for r in range(8):
        g(f'v_exp_f32 v{32+r}, v{32+r}')
    for r in range(4):
        g(f'v_cvt_pk_bf16_f32 v{16+r}, v{32+2*r}, v{33+2*r}')
    g(f'''
    ds_write_b128 v12, v[16:19]
    v_pk_add_f32 v[32:33], v[32:33], v[34:35]
    v_pk_add_f32 v[36:37], v[36:37], v[38:39]
    v_pk_add_f32 v[32:33], v[32:33], v[36:37]
    v_add_f32 v8, v32, v33
    v_add_f32 v9, v32, v33
    s_nop 1
    v_permlane16_swap_b32 v8, v9
    v_add_f32 v15, v8, v9
    v_add_f32 v8, v8, v9
    s_nop 1
    v_permlane32_swap_b32 v8, v15
    v_add_f32 v8, v8, v15
    ds_write_b32 v10, v8 offset:256
    s_waitcnt lgkmcnt(0)
    s_barrier
    ''')
    g.stamp(6)
    n1 = o.get('n1', 5)
    n2 = o.get('n2', 2)
    rest = 36 - 4 * (n1 + n2)
    assert rest >= 0 and rest % 4 == 0
    n3 = rest // 4

    def w2_batch(first_sgpr, n, vsrc):
        for u in range(n):
            if u % 4 == 0:
                g(f's_lshl_b32 {S_T4}, {first_sgpr}, 10')
                g(f's_add_u32 m0, {S_T4}, {LY_WOA + (u>>2)*4096}')
                g(f's_mul_i32 {S_OFF}, {S_Y}, 36864')
                g(f's_add_u32 {S_OFF}, {S_OFF}, m0')
            g(f'buffer_load_dwordx4 v{vsrc+u}, {SRD_O}, {S_OFF} offen offset:{(u&3)*1024} {NT("wnt")} lds')
    if n2 + n3:
        g(f's_mul_i32 {S_T5}, {S_WAVE}, {n2 + n3}')
        g(f's_add_u32 {S_T5}, {S_T5}, {4*n1}')
        omega_src(g, 40, n2 + n3, S_T5)
        w2_batch(S_T5, n2, 40)
        g(f's_add_u32 {S_T5}, {S_T5}, {n2}')
    g('s_barrier')
    w2_batch(S_T5, n3, 40 + n2)
    g('s_branch L_Y_b5')
    g('L_Y_nqk:')
    g(f"""
    s_cmp_eq_u32 {S_WAVE}, 8
    s_cbranch_scc1 L_Y_w8
    s_sub_u32 {S_T5}, {S_WAVE}, 4
    s_mul_i32 {S_T5}, {S_T5}, {n1}
    """)
    if n1:
        omega_src(g, 24, n1, S_T5)
    g(f"""
    v_lshrrev_b32 v8, 2, v0
    v_mul_u32_u24 v8, 1056, v8
    v_and_b32 v9, 3, v0
    v_lshl_add_u32 v8, v9, 3, v8
    s_lshl_b32 {S_T0}, {S_WAVE}, 8
    s_sub_u32 {S_T0}, {S_T0}, 1024
    v_add_u32 v4, {S_T0}, v8
    v_add_u32 v5, 67584, v4
    v_add_u32 v12, {LY_P}, v1
    v_lshlrev_b32 v8, 4, v3
    v_lshl_add_u32 v13, v2, 18, v8
    s_lshl_b32 {S_T0}, {S_HG}, 20
    s_lshl_b32 {S_T3}, {S_WAVE}, 14
    s_add_u32 {S_T0}, {S_T0}, {S_T3}
    s_lshl_b32 {S_T3}, {S_SPLIT}, 8
    s_add_u32 {S_T0}, {S_T0}, {S_T3}
    s_add_u32 {S_T0}, {S_T0}, {WS_H3 - 4*16384}
    s_add_u32 {S_T1}, {S_T0}, 0x10000
    s_add_u32 {S_T2}, {S_T0}, 0x20000
    s_add_u32 {S_T3}, {S_T0}, 0x30000
    s_waitcnt lgkmcnt(0)
    """)
    make_tag(g)
    if o.get('ypt', 3):
        ypt = o.get('ypt', 3)
        g(f"""
        s_cmp_eq_u32 {S_WAVE}, 4
        s_cbranch_scc0 L_Y_npt
        s_lshl_b32 {S_T4}, {S_CU}, 10
        s_add_u32 {S_OFF}, {S_T4}, {WS_H1}
        """)
        if ypt & 1:
            g(f'buffer_load_dwordx4 v[16:19], v1, {SRD_WS}, {S_OFF} offen sc1')
        if ypt & 2:
            g(f's_add_u32 {S_OFF}, {S_T4}, {WS_H3P}')
            g(f'buffer_load_dwordx4 v[16:19], v1, {SRD_WS}, {S_OFF} offen sc1')
            g(f's_lshl_b32 {S_T4}, {S_Y}, 10')
            g(f's_add_u32 {S_OFF}, {S_T4}, {WS_HF}')
            g(f'buffer_load_dwordx4 v[16:19], v1, {SRD_WS}, {S_OFF} offen sc1')
        g('s_waitcnt vmcnt(0)')
        g('L_Y_npt:')
    def vreads(t, c0, c1):
        for ct in range(c0, c1):
            for s in range(4):
                g(f'ds_read_b64_tr_b16 {R(40+16*ct+4*s+2*t,2)}, v{4+t} offset:{s*16896 + ct*32}')
    g('s_barrier')
    g('s_barrier')
    vreads(0, 0, 8)
    g('s_waitcnt lgkmcnt(0)')
    g('s_barrier')
    g('s_barrier')
    n1pos = o.get('n1pos', 2)
    vs = o.get('vs', 4)
    if n1pos == 1:
        w2_batch(S_T5, n1, 24)
    vreads(1, 0, vs)
    g.stamp(3)
    g('s_barrier')
    if n1pos == 2:
        w2_batch(S_T5, n1, 24)
    vreads(1, vs, 8)
    g('s_barrier')
    g('s_waitcnt lgkmcnt(0)')
    g('s_setprio 2')
    g('s_barrier')
    PR = 16
    for s in range(4):
        g(f'ds_read_b128 {R(PR+4*s)}, v12 offset:{s*1024}')

    def accreg(u):
        return 32 if u == 0 else 40 + 32 * (u - 1)
    PK = 56

    def pack(u):
        a = accreg(u)
        return [f'v_cvt_pk_bf16_f32 v{PK+4*r+u}, v{a+r}, v{a+4+r}' for r in range(4)] + \
               [f'v_bfi_b32 v{PK+4*r+u}, {S_MASK2}, v{PK+4*r+u}, v6' for r in range(4)]
    pend = []
    for u in range(4):
        a = accreg(u)
        n = 0
        for s in range(4):
            if u == 0:
                g(f's_waitcnt lgkmcnt({3-s})')
            for t in range(2):
                ct = 2 * u + t
                c = '0' if s == 0 else R(a + 4 * t)
                g(f'{MF} {R(a+4*t)}, {R(PR+4*s)}, {R(40+16*ct+4*s)}, {c}')
                n += 1
                if u >= 2 and pend:
                    g(pend.pop(0))
        if u >= 1:
            pend += pack(u - 1)
    for e in pend:
        g(e)
    a = accreg(3)
    for r, sr in enumerate((S_T0, S_T1, S_T2, S_T3)):
        g(f'v_cvt_pk_bf16_f32 v{PK+4*r+3}, v{a+r}, v{a+4+r}')
        g(f'v_bfi_b32 v{PK+4*r+3}, {S_MASK2}, v{PK+4*r+3}, v6')
        g(f'buffer_store_dwordx4 {R(PK+4*r)}, v13, {SRD_WS}, {sr} offen sc1')
    g('s_setprio 0')
    g.stamp(7)
    g(f's_waitcnt vmcnt({o.get("swait", 4)})')
    g('s_barrier')
    g('s_branch L_Y_b5')
    g('L_Y_w8:')
    g('s_waitcnt lgkmcnt(0)')
    make_tag(g)
    g(f"""
    v_add_u32 v11, {LY_MX}, v1
    s_lshl_b32 {S_T0}, {S_HG}, 6
    s_add_u32 {S_T0}, {S_T0}, {S_SPLIT}
    s_lshl_b32 {S_T0}, {S_T0}, 8
    s_add_u32 {S_T0}, {S_T0}, {WS_M}
    s_mov_b32 {S_T1}, 0x{f2u(SCALE):08x}
    v_mov_b32 v22, v6
    v_mov_b32 v23, v6
    v_lshlrev_b32 v7, 7, v0
    s_lshl_b32 {S_T3}, {S_HG}, 13
    s_add_u32 {S_T3}, {S_T3}, {WS_F2}
    s_setprio 3
    """)
    if o.get('ptf2', 1):
        g(f'buffer_load_dword v16, v7, {SRD_WS}, {S_T3} offen sc1')
    g('s_barrier')
    g('s_barrier')
    flag_poll(g, 7, S_T3)
    g.stamp(14)
    g('s_barrier')
    g('s_barrier')
    g('s_barrier')
    g('s_mov_b64 exec, 0xffff')
    g('s_barrier')
    g(f"""
    ds_read_b128 v[16:19], v11
    s_waitcnt lgkmcnt(0)
    v_max3_f32 v8, v16, v17, v18
    v_max_f32 v8, v8, v19
    v_mul_f32 v20, {S_T1}, v8
    s_barrier
    ds_read_b128 v[16:19], v11 offset:256
    s_waitcnt lgkmcnt(0)
    v_add_f32 v16, v16, v17
    v_add_f32 v18, v18, v19
    v_add_f32 v21, v16, v18
    buffer_store_dwordx4 v[20:23], v1, {SRD_WS}, {S_T0} offen sc1
    s_mov_b64 exec, -1
    s_setprio 0
    """)
    g.stamp(13)
    g('s_barrier')
    g('L_Y_b5:')
    g(f's_lshl_b32 {S_T0}, {S_WAVE}, 2')
    omega_src(g, 24, 4, S_T0)
    g(f"""
    s_lshl_b32 {S_T0}, {S_WAVE}, 12
    s_add_u32 m0, {S_T0}, {LY_WOB}
    s_mul_i32 {S_OFF}, {S_PH}, 36864
    s_add_u32 {S_OFF}, {S_OFF}, {S_T0}
    """)
    for u in range(4):
        g(f'buffer_load_dwordx4 v{24+u}, {SRD_B}, {S_OFF} offen offset:{u*1024} {NT("wnt")} lds')
    g.stamp(8)
    omega_addr(g, 56)
    act_addr(g, 61, LY_ACT)
    h4_soff(g, S_Y)
    g(f"""
    v_lshlrev_b32 v62, 3, v0
    s_waitcnt vmcnt(4)
    s_barrier
    """)
    omega_reads(g, 56, 80, LY_WOA)
    GW = o.get('gw', 7)
    g(f"""
    s_sub_u32 {S_T1}, {S_WAVE}, {GW}
    s_cmp_lt_u32 {S_T1}, 2
    s_cbranch_scc0 L_Y_c
    s_setprio 2
    """)
    gather32_ldsaddr(g, 60, LY_ACT, 64)
    g(f"""
    s_cmp_eq_u32 {S_WAVE}, {GW}
    s_cbranch_scc0 L_Y_ctx
    """)
    bias_prep(g, S_Y, 63)
    g('s_waitcnt vmcnt(0)')
    bias_unpack(g)
    gather32(g, 1, S_T1, 60, act=True, stamp=10)
    g(f"""
    s_branch L_Y_c
    L_Y_ctx:
    s_lshl_b32 {S_T2}, {S_CU}, 10
    s_add_u32 {S_T2}, {S_T2}, {WS_H3P}
    """)
    gather32(g, 1, S_T2, 60, lds_off=128, stamp=11, dual=True)
    g('L_Y_c:')
    g('s_waitcnt vmcnt(0) lgkmcnt(0)')
    g.stamp(9)
    g('s_barrier')
    omega_finish(g, 61, [80, 96], 62, S_T3, late=lambda: omega_reads(g, 56, 96, LY_WOB))
    g.stamp(12)
    g('L_END:')
    if stamps:
        g.stamp(15)
        g(f'''
        s_sleep 127
        s_sleep 127
        s_mov_b64 exec, 1
        s_mul_i32 {S_T0}, s2, 9
        s_add_u32 {S_T0}, {S_T0}, {S_WAVE}
        s_lshl_b32 {S_T0}, {S_T0}, 6
        s_add_u32 {S_T0}, {S_T0}, {WS_ST}
        v_mov_b32 v8, 0
        s_waitcnt lgkmcnt(0)
        ''')
        for k in range(16):
            g(f'v_mov_b32 v9, s{64+2*k}')
            g(f'buffer_store_dword v9, v8, {SRD_WS}, {S_T0} offen offset:{4*k}')
    g('L_EXIT:')
    g('s_endpgm')
    g.L.append('.fill 1200, 4, 0xbf810000')
    g.L.append('.section .rodata,"a"')
    g.L.append('.p2align 6')
    g.L.append(f'.amdhsa_kernel {NAME}_kernel')
    g.L.append('  .amdhsa_next_free_vgpr 168')
    g.L.append('  .amdhsa_next_free_sgpr 102')
    g.L.append('  .amdhsa_accum_offset 168')
    g.L.append('  .amdhsa_group_segment_fixed_size 0')
    g.L.append('  .amdhsa_kernarg_size 112')
    g.L.append('  .amdhsa_user_sgpr_count 2')
    g.L.append('  .amdhsa_user_sgpr_kernarg_segment_ptr 1')
    g.L.append('  .amdhsa_system_sgpr_workgroup_id_x 1')
    g.L.append('.end_amdhsa_kernel')
    return g.text()


def parse_opts(args):
    o = {}
    for a in args:
        if '=' in a:
            k, v = a.split('=')
            o[k] = int(v)
    return o


if __name__ == '__main__':
    out = sys.argv[1]
    stamps = 'stamps' in sys.argv[2:]
    nt = '' if 'nont' in sys.argv[2:] else 'nt'
    open(out, 'w').write(gen(stamps, nt, parse_opts(sys.argv[2:])))
```

```python
import sys, math, struct

NAME = 'parallel_sum__compressed_kv_cla__dense_activation_squared_relu__decode'

WS_H1 = 0x10000
WS_H2 = 0x30000
WS_H3P = 0x40000
WS_HF = 0x60000
WS_M = 0x90000
WS_F2 = 0xA0000
WS_H4 = 0x100000
WS_H3 = 0x300000
WS_SLOW = 0x500000
WS_ST = 0x600000
WS_SIZE = 0x800000

LX_W1 = 0
LX_WO = 0
LX_WUK = 55296
LX_WUV = 89088
LX_XN = LX_WUV + 36864
LX_QP = LX_XN + 1024
LX_CC = LX_QP + 1024
LX_FIN = LX_CC + 1280
LX_ACT = LX_FIN + 1536
LX_WT = LX_ACT + 256
LX_END = LX_WT + 256
LY_CKV = 0
LY_Q = 135168
LY_P = LY_Q + 16896
LY_MX = LY_P + 4096
LY_LX = LY_MX + 256
LY_ACT = LY_LX + 256
LY_END = LY_ACT + 256
LY_WQ = 67584
LY_XN = LY_P
LY_WOA = 0
LY_WOB = 36864
LDS_BYTES = max(LX_END, LY_END)

SCALE = (128 ** -0.5) * math.log2(math.e)


def f2u(x):
    return struct.unpack('<I', struct.pack('<f', x))[0]


class G:
    def __init__(self, stamps=False, nt='nt', opts=None):
        self.L = []
        self.stamps = stamps
        self.nt = nt
        self.o = opts or {}
        self.nlab = 0

    def __call__(self, s):
        for line in s.strip('\n').split('\n'):
            line = line.strip()
            if not line:
                continue
            if line.endswith(':'):
                self.L.append(line)
            else:
                self.L.append('    ' + line)

    def lab(self, p):
        self.nlab += 1
        return f'L_{p}_{self.nlab}'

    def stamp(self, k):
        if self.stamps:
            self(f's_memrealtime s[{64+2*k}:{65+2*k}]')

    def stwait(self):
        if self.stamps:
            self('s_waitcnt lgkmcnt(0)')

    def text(self):
        return '\n'.join(self.L) + '\n'


S_WAVE = 's3'
S_CU = 's4'
S_H = 's5'
S_J = 's6'
S_T0 = 's7'
SRD_A = 's[8:11]'
SRD_WS = 's[12:15]'
SRD_X = 's[16:19]'
SRD_B = 's[20:23]'
SRD_C = 's[24:27]'
SRD_O = 's[28:31]'
SRD_B2 = 's[32:35]'
SRD_OUT = 's[36:39]'
S_TAG = 's40'
S_EP = 's41'
S_SPIN = 's42'
S_MASK = 's43'
S_OFF = 's44'
S_T1 = 's45'
S_T2 = 's46'
S_T3 = 's47'
S_EXC = 's[48:49]'
S_B = 's50'
S_SPLIT = 's51'
S_HG = 's52'
S_Y = 's53'
S_PC = 's[54:55]'
S_TAG2 = 's56'
S_MASK2 = 's57'
S_T4 = 's58'
S_T5 = 's59'
SRD_W1 = 's[60:63]'
S_CG = 's96'
S_RS = 's97'
S_CMP = 's[98:99]'
S_PH = 's100'
S_KEEP = 's101'
DPPF = 'row_mask:0xf bank_mask:0xf'
MF = 'v_mfma_f32_16x16x32_bf16'


def R(a, n=4):
    return f'v[{a}:{a+n-1}]'


def srd(g, name, karg_off, nbytes):
    n = int(name[2:name.index(':')])
    g(f's_load_dwordx2 s[{n}:{n+1}], s[0:1], {karg_off}')
    return [f's_mov_b32 s{n+2}, {nbytes}', f's_mov_b32 s{n+3}, s11']


def spin_check(g):
    g(f's_sub_u32 {S_SPIN}, {S_SPIN}, 1')
    g('s_cbranch_scc1 L_END')


def or_chain(g, acc, rs, first):
    rs = list(rs)
    if first:
        g(f'v_or3_b32 v{acc}, v{rs[0]}, v{rs[1]}, v{rs[2]}')
        rs = rs[3:]
    while len(rs) >= 2:
        g(f'v_or3_b32 v{acc}, v{acc}, v{rs[0]}, v{rs[1]}')
        rs = rs[2:]
    if rs:
        g(f'v_or_b32 v{acc}, v{acc}, v{rs[0]}')


def tagged_check(g, regs, acc):
    for r in regs:
        g(f'v_xor_b32 v{r}, {S_TAG}, v{r}')
    or_chain(g, acc, regs, True)
    g(f'v_and_b32 v{acc}, 0xfff, v{acc}')
    g(f'v_cmp_ne_u32 vcc, 0, v{acc}')


def slow_toggle(g, soff, extra):
    if g.o.get('one', 0):
        if callable(extra):
            g(f's_and_b32 {S_T0}, {S_SPIN}, 31')
            extra()
        return
    g(f'''
    s_andn2_b32 {soff}, {soff}, {WS_SLOW}
    s_and_b32 {S_T0}, {S_SPIN}, 31
    s_cselect_b32 {S_T0}, 0, {WS_SLOW}
    s_add_u32 {soff}, {soff}, {S_T0}
    ''')
    if callable(extra):
        g(f's_cmp_eq_u32 {S_T0}, 0')
        extra()


def gather32(g, vaddr, soff, vlds, lds_off=0, act=False, stamp=None, pre=None, dual=False, firstwait=0, have=False):
    lp = g.lab('g32')
    if dual:
        g(f's_or_b32 {S_SPIN}, {S_SPIN}, 31')
    if act:
        g('s_mov_b32 exec_hi, 0xffff')
    if have:
        g(f's_branch {lp}_chk')
    if pre is not None:
        g(f'buffer_load_dwordx4 v[16:19], v{vaddr}, {SRD_WS}, {soff} offen sc1')
        pre()
        if firstwait:
            g(f'''
            s_cbranch_scc0 {lp}_in
            s_waitcnt vmcnt(1)
            s_branch {lp}_chk
            ''')
        else:
            g(f's_branch {lp}_in')
    g(f'''
    {lp}:
    buffer_load_dwordx4 v[16:19], v{vaddr}, {SRD_WS}, {soff} offen sc1
    ''')
    spin_check(g)
    if dual:
        slow_toggle(g, soff, dual)
    g(f'{lp}_in:')
    g('s_waitcnt vmcnt(0)')
    g(f'{lp}_chk:')
    tagged_check(g, range(16, 20), 8)
    if act:
        g('s_nop 1')
        g(f's_cbranch_vccnz {lp}')
        g('s_mov_b32 exec_hi, -1')
        g('v_permlane32_swap_b32 v16, v17')
        g('v_permlane32_swap_b32 v18, v19')
    else:
        g('v_permlane32_swap_b32 v16, v17')
        g('v_permlane32_swap_b32 v18, v19')
        g(f's_cbranch_vccnz {lp}')
    if stamp is not None:
        g.stamp(stamp)
    g(f'''
    v_add_f32 v16, v16, v17
    v_add_f32 v18, v18, v19
    s_nop 1
    v_permlane16_swap_b32 v16, v18
    v_add_f32 v16, v16, v18
    ''')
    if act:
        g('v_max_f32 v16, 0, v16')
        g('v_mul_f32 v16, v16, v16')
    g('v_cvt_pk_bf16_f32 v16, v16, v16')
    g(f'ds_write_b16 v{vlds}, v16 offset:{lds_off}')


def flag_poll(g, vaddr, soff, off=0):
    lp = g.lab('fp')
    g(f'{lp}:')
    if g.o.get('slp'):
        g(f's_sleep {g.o["slp"]}')
    g(f'buffer_load_dword v16, v{vaddr}, {SRD_WS}, {soff} offen offset:{off} sc1')
    spin_check(g)
    g(f"""
    s_waitcnt vmcnt(0)
    v_cmp_ne_u32 vcc, {S_EP}, v16
    s_nop 1
    s_and_b64 exec, exec, vcc
    s_cbranch_scc1 {lp}
    s_mov_b64 exec, -1
    """)


def sflag_issue(g, regs, base, stride, off=0):
    for k, r in enumerate(regs):
        g(f's_load_dword s{r}, {base}, {k*stride + off} glc')


def sflag_wait(g, regs, base, stride, off=0):
    lp = g.lab('sf')
    g(f's_branch {lp}_in')
    g(f'{lp}:')
    sflag_issue(g, regs, base, stride, off)
    spin_check(g)
    g(f'{lp}_in:')
    g(f's_mul_i32 {S_T0}, {S_EP}, {len(regs)}')
    g('s_waitcnt lgkmcnt(0)')
    for r in regs:
        g(f's_sub_u32 {S_T0}, {S_T0}, s{r}')
    g(f's_cmp_eq_u32 {S_T0}, 0')
    g(f's_cbranch_scc0 {lp}')


def gather32_ldsaddr(g, dst, base, bstride):
    g(f'''
    v_and_b32 v8, 1, v2
    v_lshl_add_u32 v8, v3, 1, v8
    v_lshrrev_b32 v9, 1, v2
    v_mul_u32_u24 v9, {bstride}, v9
    v_lshl_add_u32 v8, v8, 1, v9
    v_add_u32 v{dst}, {base}, v8
    ''')


def layernorm_loads(g, off_q):
    g(f'''
    v_lshrrev_b32 v8, 5, v0
    v_mul_u32_u24 v8, 1152, v8
    v_and_b32 v9, 31, v0
    v_lshl_add_u32 v8, v9, 4, v8
    v_cmp_gt_u32 vcc, 8, v9
    v_mov_b32 v9, 0x7fff0000
    s_nop 0
    v_cndmask_b32 v9, v9, v8, vcc
    s_waitcnt lgkmcnt(0)
    buffer_load_dwordx4 v[10:13], v8, {SRD_X}, 0 offen
    buffer_load_dwordx4 v[14:17], v8, {SRD_X}, 0 offen offset:512
    buffer_load_dwordx4 v[18:21], v9, {SRD_X}, 0 offen offset:1024
    buffer_load_dwordx4 v[22:25], v8, {SRD_X}, {off_q} offen
    ''')


def layernorm_stats(g):
    g(f's_mov_b32 {S_T1}, 0x3f803f80')
    g('v_mov_b32 v26, 0')
    g('v_mov_b32 v27, 0')
    for r in range(10, 22):
        g(f'v_dot2c_f32_bf16 v26, {S_T1}, v{r}')
        g(f'v_dot2c_f32_bf16 v27, v{r}, v{r}')
    g('s_nop 2')
    for k in (1, 2, 4, 8):
        g(f'v_add_f32_dpp v26, v26, v26 row_ror:{k} {DPPF}')
        g(f'v_add_f32_dpp v27, v27, v27 row_ror:{k} {DPPF}')
        g('s_nop 0')
    g(f'''
    v_mov_b32 v28, v26
    v_mov_b32 v29, v27
    s_nop 0
    v_permlane16_swap_b32 v26, v28
    v_permlane16_swap_b32 v27, v29
    v_add_f32 v26, v26, v28
    v_add_f32 v27, v27, v29
    v_mul_f32 v26, 0x{f2u(1.0/576):08x}, v26
    v_mul_f32 v27, 0x{f2u(1.0/576):08x}, v27
    v_fma_f32 v27, -v26, v26, v27
    v_max_f32 v27, 0, v27
    v_cvt_pk_bf16_f32 v26, v26, v27
    v_and_b32 v27, 0xffff0000, v26
    v_lshlrev_b32 v132, 16, v26
    v_add_f32 v27, 0x{f2u(1e-5):08x}, v27
    v_cvt_pk_bf16_f32 v27, v27, v27
    v_and_b32 v27, 0xffff0000, v27
    v_sqrt_f32 v27, v27
    s_nop 0
    v_cvt_pk_bf16_f32 v27, v27, v27
    v_and_b32 v27, 0xffff0000, v27
    v_rcp_f32 v133, v27
    ''')


def layernorm_addr(g, LX_XN):
    g(f'''
    v_lshrrev_b32 v8, 2, v0
    v_lshlrev_b32 v8, 6, v8
    v_and_b32 v9, 1, v0
    v_lshl_add_u32 v8, v9, 5, v8
    v_bfe_u32 v9, v0, 1, 1
    v_lshl_add_u32 v8, v9, 3, v8
    v_add_u32 v134, {LX_XN}, v8
    ''')


def layernorm_slice(g, r0, off8):
    for r in range(r0, r0 + 4):
        g(f'''
        v_lshlrev_b32 v28, 16, v{r}
        v_and_b32 v29, 0xffff0000, v{r}
        v_sub_f32 v28, v28, v132
        v_sub_f32 v29, v29, v132
        v_cvt_pk_bf16_f32 v29, v28, v29
        v_lshlrev_b32 v28, 16, v29
        v_and_b32 v29, 0xffff0000, v29
        v_mul_f32 v28, v28, v133
        v_mul_f32 v29, v29, v133
        v_cvt_pk_bf16_f32 v{r}, v28, v29
        ''')
    g(f'ds_write2_b64 v134, v[{r0}:{r0+1}], v[{r0+2}:{r0+3}] offset0:{off8} offset1:{off8+2}')


def alpha_addr(g, dst, tile_sgpr):
    g(f'''
    v_lshrrev_b32 v8, 2, v3
    v_bfe_u32 v9, v0, 1, 1
    v_lshl_add_u32 v9, {tile_sgpr}, 1, v9
    v_lshlrev_b32 v{dst}, 1, v8
    v_xor_b32 v9, v9, v{dst}
    v_lshlrev_b32 v9, 4, v9
    v_lshl_add_u32 v9, v8, 8, v9
    v_and_b32 v8, 1, v0
    v_lshl_add_u32 v9, v8, 3, v9
    v_mul_u32_u24 v8, 1152, v2
    v_add_u32 v{dst}, v8, v9
    ''')


def omega_src(g, dst, n, first_sgpr):
    g(f'''
    v_lshrrev_b32 v8, 3, v0
    v_lshl_add_u32 v8, {first_sgpr}, 3, v8
    v_mul_u32_u24 v8, 57, v8
    ''')
    for k in range(n):
        g(f'''
        v_bfe_u32 v9, v8, 10, 1
        v_bfe_u32 v{dst+k}, v8, 12, 1
        v_lshl_add_u32 v9, v{dst+k}, 1, v9
        v_lshlrev_b32 v9, 5, v9
        v_xor_b32 v{dst+k}, v9, v1
        ''')
        if k < n - 1:
            g('v_add_u32 v8, 456, v8')


def omega_addr(g, dst):
    g(f'''
    v_lshrrev_b32 v8, 2, v3
    v_lshl_add_u32 v9, v2, 3, v8
    v_mul_u32_u24 v9, 1152, v9
    v_lshl_add_u32 v9, {S_WAVE}, 7, v9
    v_and_b32 v{dst}, 3, v0
    v_lshl_add_u32 v9, v{dst}, 3, v9
    v_lshrrev_b32 v8, 1, v8
    v_and_b32 v{dst}, 1, v2
    v_lshl_add_u32 v8, v{dst}, 1, v8
    v_lshl_add_u32 v{dst}, v8, 5, v9
    v_xor_b32 v{dst+1}, 32, v{dst}
    v_xor_b32 v{dst+2}, 64, v{dst}
    v_xor_b32 v{dst+3}, 0x60, v{dst}
    ''')


def omega_reads(g, addr, dst, base):
    for t in range(4):
        g(f'ds_read_b64_tr_b16 {R(dst+4*t,2)}, v{addr+t} offset:{base}')
        g(f'ds_read_b64_tr_b16 {R(dst+4*t+2,2)}, v{addr+t} offset:{base+4608}')


def act_addr(g, dst, act):
    g(f'''
    v_and_b32 v8, 1, v0
    v_lshlrev_b32 v8, 6, v8
    v_lshl_add_u32 v8, v2, 4, v8
    v_add_u32 v{dst}, {act}, v8
    ''')


def omega_finish(g, aaddr, wregs, vaddr, soff, late=None):
    n = len(wregs)
    for k in range(n):
        g(f'ds_read_b128 {R(20+4*k)}, v{aaddr} offset:{128*k}')
    if late:
        late()
    g(f'''
    s_mov_b32 s98, 0xffff0000
    s_mov_b32 s99, 0xffff0000
    s_mov_b32 vcc_lo, 0
    s_mov_b32 vcc_hi, -1
    ''')
    g.stwait()
    for k in range(n):
        if not late:
            g(f's_waitcnt lgkmcnt({n-1-k})')
        elif k == 0:
            g('s_waitcnt lgkmcnt(9)')
        for t in range(4):
            if late and k == 1:
                g(f's_waitcnt lgkmcnt({6-2*t})')
            c = '0' if k == 0 else R(36 + 4 * t)
            g(f'{MF} {R(36+4*t)}, {R(20+4*k)}, {R(wregs[k]+4*t)}, {c}')
    g(f'''
    s_nop 5
    v_cndmask_b32 v36, v36, v40, {S_CMP}
    v_cndmask_b32 v37, v37, v41, {S_CMP}
    v_cndmask_b32 v44, v44, v48, {S_CMP}
    v_cndmask_b32 v45, v45, v49, {S_CMP}
    v_cndmask_b32 v36, v36, v44, vcc
    v_cndmask_b32 v37, v37, v45, vcc
    v_bfi_b32 v36, {S_MASK}, v36, v6
    v_bfi_b32 v37, {S_MASK}, v37, v6
    buffer_store_dwordx2 v[36:37], v{vaddr}, {SRD_WS}, {soff} offen sc1
    ''')


def h4_soff(g, prod):
    g(f'''
    s_mul_i32 {S_T3}, {prod}, 4608
    s_lshl_b32 {S_T4}, {S_WAVE}, 9
    s_add_u32 {S_T3}, {S_T3}, {S_T4}
    s_add_u32 {S_T3}, {S_T3}, {WS_H4}
    ''')


def phys_head(g, dst, x, k, tmp):
    hm = g.o.get('hmap', 4)
    if hm == 0:
        g(f's_lshl2_add_u32 {dst}, {x}, {k}')
    elif hm == 1:
        g(f's_lshl3_add_u32 {dst}, {k}, {x}')
    elif hm == 2:
        g(f"""
        s_and_b32 {tmp}, {k}, 1
        s_lshl1_add_u32 {dst}, {x}, {tmp}
        s_lshr_b32 {tmp}, {k}, 1
        s_lshl4_add_u32 {dst}, {tmp}, {dst}
        """)
    elif hm == 3:
        g(f"""
        s_and_b32 {tmp}, {x}, 3
        s_lshl2_add_u32 {dst}, {k}, {tmp}
        s_lshr_b32 {tmp}, {x}, 2
        s_lshl4_add_u32 {dst}, {tmp}, {dst}
        """)
    elif hm == 4:
        g(f"""
        s_add_u32 {tmp}, {x}, {k}
        s_and_b32 {tmp}, {tmp}, 7
        s_lshl3_add_u32 {dst}, {k}, {tmp}
        """)


def set_role(g, dk, ph_only=None):
    g(f's_lshr_b32 {S_T0}, s2, 5')
    if dk:
        g(f's_add_u32 {S_T0}, {S_T0}, {dk}')
        g(f's_and_b32 {S_T0}, {S_T0}, 3')
    g(f"""
    s_add_u32 {S_T1}, s2, {S_T0}
    s_and_b32 {S_T1}, {S_T1}, 7
    s_lshl3_add_u32 {S_PH}, {S_T0}, {S_T1}
    """)
    if not ph_only:
        g(f"""
        s_and_b32 {S_T1}, s2, 7
        s_lshl2_add_u32 {S_H}, {S_T1}, {S_T0}
        s_lshl2_add_u32 {S_CU}, {S_H}, {S_J}
        """)


def lane_consts(g):
    g(f'''
    v_lshrrev_b32 v1, 6, v0
    v_and_b32 v0, 63, v0
    v_readfirstlane_b32 {S_WAVE}, v1
    v_lshlrev_b32 v1, 4, v0
    v_lshrrev_b32 v2, 4, v0
    v_and_b32 v3, 15, v0
    ''')


def misc_consts(g):
    g(f'''
    s_mov_b32 {S_SPIN}, 0xfffff
    s_mov_b32 {S_MASK}, 0xfffff000
    s_mov_b32 {S_MASK2}, 0xfffefffe
    ''')


def make_tag(g):
    g(f'''
    s_add_u32 {S_EP}, {S_EP}, 1
    s_and_b32 {S_TAG}, {S_EP}, 0xfff
    s_andn2_b32 {S_TAG2}, {S_EP}, {S_MASK2}
    v_mov_b32 v6, {S_EP}
    ''')


def bias_prep(g, blk, va=62):
    g(f'''
    v_lshlrev_b32 v{va}, 2, v3
    s_lshl_b32 {S_T0}, {blk}, 6
    s_lshl_b32 {S_T1}, {blk}, 10
    s_add_u32 {S_T1}, {S_T1}, {WS_HF}
    buffer_load_dword v28, v{va}, {SRD_C}, {S_T0} offen
    ''')


def bias_unpack(g):
    g(f'''
    v_lshlrev_b32 v16, 16, v28
    v_lshlrev_b32 v17, 16, v28
    v_and_b32 v18, 0xffff0000, v28
    v_and_b32 v19, 0xffff0000, v28
    ''')


def gen(stamps=False, nt='nt', opts=None):
    g = G(stamps, nt, opts)
    o = g.o
    global WS_H1, WS_H2, WS_H3P, WS_HF
    WS_H1 = o.get('ah1', 0x10) << 12
    WS_H2 = o.get('ah2', 0x30) << 12
    WS_H3P = o.get('ah3p', 0x40) << 12
    WS_HF = o.get('ahf', 0x60) << 12
    hdr = open('cdna_kernels/' + NAME + '.s.ref').read().split('\n')
    for line in hdr:
        if line.startswith('; @launch'):
            break
        g.L.append(line)
    g.L.append(f'; @launch grid=(256,1,1) block=(576,1,1) lds={LDS_BYTES}')
    g.L.append('.amdgcn_target "amdgcn-amd-amdhsa--gfx950"')
    g.L.append('.text')
    g.L.append(f'.globl {NAME}_kernel')
    g.L.append('.p2align 12')
    g.L.append(f'.type {NAME}_kernel,@function')
    g.L.append(f'{NAME}_kernel:')
    LNW = o.get('lnw', 4)
    NT = lambda k, d=0: 'nt' if o.get(k, d) else ''
    g.stamp(0)
    if o.get('hold'):
        g('s_memrealtime s[92:93]')

    def clear_stamps(k0=2):
        if stamps:
            for k in range(k0, 16):
                g(f's_mov_b32 s{64+2*k}, 0')
    g(f"""
    s_cmp_ge_u32 s2, 128
    s_cselect_b32 s3, 16, 24
    s_load_dwordx2 s[20:21], s[0:1], s3
    s_load_dwordx2 s[16:17], s[0:1], 0
    s_load_dwordx2 s[12:13], s[0:1], 104
    s_cmp_ge_u32 s2, 256
    s_cbranch_scc1 L_EXIT
    """)
    lane_consts(g)
    g(f"""
    s_mov_b32 s11, 0x20000
    s_mov_b32 s23, s11
    s_mov_b32 s19, s11
    s_movk_i32 s18, 2304
    s_mov_b32 s15, s11
    s_mov_b32 s14, {WS_SIZE}
    v_lshlrev_b32 v8, 1, v2
    v_xor_b32 v8, v8, v3
    v_lshlrev_b32 v135, 4, v8
    s_mov_b32 {S_T3}, 32768
    s_cmp_ge_u32 s2, 128
    s_cbranch_scc0 L_X
    """)
    cnt = 'nt' if o.get('cnt') else ''
    g(f"""
    s_load_dwordx2 s[8:9], s[0:1], 8
    s_mov_b32 s22, {576*8192}
    s_bfe_u32 {S_T0}, s2, 0x20003
    s_bfe_u32 {S_J}, s2, 0x20005
    s_add_u32 {S_T1}, s2, {S_T0}
    s_and_b32 {S_T1}, {S_T1}, 7
    s_lshl3_add_u32 {S_T1}, {S_T0}, {S_T1}
    v_lshl_add_u32 v4, v2, 13, v135
    s_mul_i32 {S_OFF}, {S_J}, 9
    s_add_u32 {S_OFF}, {S_OFF}, {S_WAVE}
    s_lshl_b32 {S_OFF}, {S_OFF}, 9
    s_add_u32 {S_OFF}, {S_OFF}, {S_T1}
    s_lshl_b32 {S_OFF}, {S_OFF}, 8
    s_mul_i32 {S_T2}, {S_WAVE}, 4608
    s_add_u32 m0, {S_T2}, {LY_WQ}
    s_cmp_eq_u32 {S_WAVE}, {LNW}
    s_cbranch_scc0 L_Y_nox
    s_mul_i32 {S_T1}, {S_J}, 288
    """)
    layernorm_loads(g, S_T1)
    g('L_Y_nox:')
    g('s_waitcnt lgkmcnt(0)')
    for u in range(4):
        g(f'buffer_load_dwordx4 v4, {SRD_B}, {S_OFF} offen {NT("qnt")} lds')
        if u < 3:
            g('s_addk_i32 m0, 1152')
            g(f's_add_u32 {S_OFF}, {S_OFF}, {S_T3}')
    g('s_branch L_Y2')
    g('L_X:')
    r1, r2, r3 = 0, o.get('r2', 1), o.get('r3', 2)
    g(f"""
    s_cmp_eq_u32 {S_WAVE}, 0
    s_cbranch_scc0 L_nopf
    s_getpc_b64 {S_PC}
    s_bfe_u32 {S_T0}, s2, 0x20003
    s_mul_i32 {S_T0}, {S_T0}, 3072
    v_lshl_add_u32 v8, v0, 7, {S_T0}
    s_mov_b64 exec, 0xffffff
    global_load_dword v30, v8, {S_PC} offset:512
    s_mov_b64 exec, -1
    L_nopf:
    s_mov_b32 s22, {512*8192}
    s_bfe_u32 {S_J}, s2, 0x20003
    """)
    set_role(g, 0)
    g(f"""
    v_lshlrev_b32 v8, 2, v2
    v_xor_b32 v8, v8, v3
    v_lshlrev_b32 v8, 4, v8
    v_lshl_add_u32 v5, v2, 13, v8
    s_lshl3_add_u32 {S_T0}, {S_J}, {S_WAVE}
    s_lshl_b32 {S_T0}, {S_T0}, 9
    s_add_u32 {S_T0}, {S_T0}, {S_PH}
    s_lshl_b32 {S_OFF}, {S_T0}, 8
    s_mul_i32 {S_T0}, {S_WAVE}, 4160
    s_add_u32 m0, {S_T0}, {LX_WUK}
    """)
    xq = o.get('xq', 64)
    if xq:
        g(f"""
        s_cmp_lt_u32 {S_WAVE}, {xq//32}
        s_cbranch_scc0 L_X_noq
        s_load_dwordx2 s[8:9], s[0:1], 16
        s_mov_b32 s10, {576*8192}
        s_add_u32 {S_T1}, s2, {S_J}
        s_and_b32 {S_T1}, {S_T1}, 7
        s_lshl3_add_u32 {S_T1}, {S_J}, {S_T1}
        s_lshr_b32 {S_T0}, s2, 5
        s_mul_i32 {S_T0}, {S_T0}, 144
        s_lshl_b32 {S_T2}, {S_WAVE}, 5
        s_sub_u32 {S_T0}, {S_T0}, {S_T2}
        s_add_u32 {S_T0}, {S_T0}, 112
        s_lshl_b32 {S_T0}, {S_T0}, 5
        s_add_u32 {S_T0}, {S_T0}, {S_T1}
        s_lshl_b32 {S_T0}, {S_T0}, 8
        v_lshrrev_b32 v8, 1, v0
        v_and_b32 v9, 1, v0
        v_lshlrev_b32 v9, 7, v9
        v_lshl_add_u32 v8, v8, 13, v9
        s_waitcnt lgkmcnt(0)
        buffer_load_dword v31, v8, {SRD_A}, {S_T0} offen
        L_X_noq:
        """)
    g(f"""
    s_cmp_eq_u32 {S_WAVE}, 8
    s_waitcnt lgkmcnt(0)
    s_cbranch_scc1 L_X2
    """)
    xp = str(o.get('xp', '0'))
    for u in range(4):
        g(f'buffer_load_dwordx4 v5, {SRD_B}, {S_OFF} offen {NT("knt")} lds')
        if u < len(xp) and xp[u] != '9':
            g(f's_waitcnt vmcnt({xp[u]})')
        if u < 3:
            g('s_addk_i32 m0, 1040')
            g(f's_add_u32 {S_OFF}, {S_OFF}, {S_T3}')
    g('L_X2:')
    g.stamp(1)
    clear_stamps()
    post = []
    g(f's_load_dword {S_EP}, s[12:13], 0')
    g('s_load_dwordx2 s[8:9], s[0:1], 40')
    g(f's_mov_b32 s10, {4096*1152}')
    post += srd(g, SRD_C, 32, 512 * 8192)
    post += srd(g, SRD_W1, 56, 0 if o.get('now1') else 576 * 9216)
    post += srd(g, SRD_O, 72, 4608 * 1152)
    post += srd(g, SRD_B2, 80, 1152)
    post += srd(g, SRD_OUT, 88, 2304)
    for p in post:
        g(p)
    misc_consts(g)
    g(f"""
    s_and_b32 {S_Y}, s2, 31
    s_mul_i32 {S_CG}, {S_Y}, 43
    s_lshr_b32 {S_CG}, {S_CG}, 7
    s_mul_i32 {S_RS}, {S_CG}, 3
    s_sub_u32 {S_RS}, {S_Y}, {S_RS}
    s_add_u32 {S_SPLIT}, {S_PH}, {r3}
    s_and_b32 {S_SPLIT}, {S_SPLIT}, 3
    s_lshl2_add_u32 {S_CG}, {S_CG}, {S_SPLIT}
    s_lshl2_add_u32 {S_SPLIT}, {S_SPLIT}, {S_Y}
    s_add_u32 {S_SPLIT}, {S_SPLIT}, 101
    v_lshlrev_b32 v136, 3, v0
    s_cmp_eq_u32 {S_WAVE}, 8
    s_cbranch_scc1 L_X_w8
    s_waitcnt lgkmcnt(0)
    """)
    make_tag(g)
    g(f"""
    s_cmp_lt_u32 {S_WAVE}, 4
    s_cbranch_scc0 L_X_h1
    """)
    g(f"""
    v_lshrrev_b32 v8, 2, v3
    v_mul_u32_u24 v8, 2080, v8
    v_and_b32 v9, 3, v0
    v_lshl_add_u32 v8, v9, 8, v8
    v_lshl_add_u32 v8, v2, 4, v8
    s_mul_i32 {S_T0}, {S_WAVE}, 8320
    s_add_u32 {S_T0}, {S_T0}, {LX_WUK}
    v_add_u32 v8, {S_T0}, v8
    v_lshlrev_b32 v9, 6, v9
    v_add_u32 v56, v8, v9
    v_xor_b32 v57, 64, v9
    v_add_u32 v57, v8, v57
    v_xor_b32 v58, 0x80, v9
    v_add_u32 v58, v8, v58
    v_xor_b32 v59, 0xc0, v9
    v_add_u32 v59, v8, v59
    v_and_b32 v8, 1, v0
    v_mul_u32_u24 v9, 272, v8
    v_lshl_add_u32 v9, v2, 4, v9
    v_add_u32 v61, {LX_QP}, v9
    v_lshlrev_b32 v8, 15, v8
    v_lshl_add_u32 v62, v2, 4, v8
    s_lshl2_add_u32 {S_T2}, {S_CU}, {S_WAVE}
    s_lshl_b32 {S_T2}, {S_T2}, 6
    s_add_u32 {S_T2}, {S_T2}, {WS_H2}
    s_mov_b32 s48, 0x00030003
    s_mov_b32 s49, 0x00030003
    """)
    set_role(g, r2)
    g(f"""
    v_lshl_add_u32 v4, v2, 17, v135
    s_lshl_b32 {S_OFF}, {S_J}, 5
    s_add_u32 {S_OFF}, {S_OFF}, {S_WAVE}
    s_lshl_b32 {S_OFF}, {S_OFF}, 7
    s_add_u32 {S_OFF}, {S_OFF}, {S_PH}
    s_lshl_b32 {S_OFF}, {S_OFF}, 8
    s_mul_i32 {S_T0}, {S_WAVE}, 9216
    s_add_u32 m0, {S_T0}, {LX_WUV}
    s_nop 0
    """)
    ne0 = o.get('ne0', 0)

    def wuv_dma(a, b):
        for u in range(a, b):
            g(f'buffer_load_dwordx4 v4, {SRD_C}, {S_OFF} offen {NT("x2nt", 1)} lds')
            if u < 7:
                g('s_addk_i32 m0, 1152')
                g(f's_add_u32 {S_OFF}, {S_OFF}, {61*8192 if u == 3 else 8192}')
    if ne0:
        g('s_waitcnt vmcnt(0)')
    wuv_dma(0, ne0)
    g(f's_waitcnt vmcnt({ne0})')
    g('s_barrier')
    areg = lambda s, t: 64 + 8 * s + 4 * t
    for s in range(4):
        for t in range(2):
            g(f'ds_read_b128 {R(areg(s,t))}, v{56+s} offset:{t*1040}')
    g.stwait()
    g('s_barrier')
    for s in range(4):
        g(f'ds_read_b128 {R(36+4*s)}, v61 offset:{s*64}')
    for s in range(4):
        g(f's_waitcnt lgkmcnt({3-s})')
        for t in range(2):
            c = '0' if s == 0 else R(20 + 4 * t)
            g(f'{MF} {R(20+4*t)}, {R(areg(s,t))}, {R(36+4*s)}, {c}')
    g(f"""
    s_nop 5
    s_mov_b64 exec, {S_EXC}
    v_cvt_pk_bf16_f32 v16, v20, v21
    v_cvt_pk_bf16_f32 v17, v22, v23
    v_cvt_pk_bf16_f32 v18, v24, v25
    v_cvt_pk_bf16_f32 v19, v26, v27
    """)
    for r in range(4):
        g(f'v_bfi_b32 v{16+r}, {S_MASK2}, v{16+r}, v6')
    g(f"""
    buffer_store_dwordx4 v[16:19], v62, {SRD_WS}, {S_T2} offen sc1
    s_mov_b64 exec, -1
    """)
    g.stamp(5)
    op = str(o.get('op', '0')).replace('x', '')
    for k, dch in enumerate(op):
        wuv_dma(ne0 + k, ne0 + k + 1)
        if dch != '9':
            g(f's_waitcnt vmcnt({dch})')
    g('s_barrier')
    wuv_dma(ne0 + len(op), 8)
    g.stamp(6)
    g(f's_lshl_b32 {S_T0}, {S_WAVE}, 1')
    alpha_addr(g, 56, S_T0)
    g(f"""
    v_add_u32 v56, {LX_WUV}, v56
    v_xor_b32 v57, 32, v56
    s_lshl2_add_u32 {S_T4}, {S_H}, {S_WAVE}
    s_lshl2_add_u32 {S_T4}, {S_T4}, {S_J}
    s_lshl_b32 {S_T4}, {S_T4}, 8
    s_add_u32 {S_T4}, {S_T4}, {WS_H3P}
    v_and_b32 v8, 3, v0
    v_mul_u32_u24 v9, 272, v8
    v_lshl_add_u32 v9, v2, 4, v9
    v_add_u32 v60, {LX_CC}, v9
    s_and_b32 {S_B}, {S_WAVE}, 1
    s_lshr_b32 {S_HG}, {S_WAVE}, 1
    s_lshl1_add_u32 {S_B}, {S_B}, {S_HG}
    s_lshl2_add_u32 {S_T1}, {S_CU}, {S_B}
    s_lshl_b32 {S_T1}, {S_T1}, 12
    s_add_u32 {S_T1}, {S_T1}, {WS_H3}
    s_lshl_b32 {S_T0}, {S_B}, 6
    s_add_u32 {S_T0}, {S_T0}, {LX_WT}
    v_lshl_add_u32 v62, v2, 4, {S_T0}
    v_lshlrev_b32 v8, 4, v3
    v_lshl_add_u32 v96, v2, 10, v8
    v_lshl_add_u32 v8, v2, 3, v8
    s_mul_i32 {S_T5}, {S_WAVE}, 272
    s_add_u32 {S_T5}, {S_T5}, {LX_CC}
    v_add_u32 v97, {S_T5}, v8
    v_and_b32 v8, 1, v0
    v_lshlrev_b32 v8, 4, v8
    v_mov_b32 v9, 0xffff
    v_lshlrev_b32 v9, v8, v9
    """)
    for t in range(4):
        m = (3 << (2 * t)) * 0x01010101
        g(f's_mov_b32 vcc_lo, 0x{m:08x}')
        g(f's_mov_b32 vcc_hi, 0x{m:08x}')
        g(f'v_cndmask_b32 v{100+t}, 0, v9, vcc')
    mgate = o.get('mgate', 0)
    XR = [8, 9, 10, 20, 21, 22, 23, 28, 29, 30, 31, 60, 61, 62, 63, 96]
    if mgate:
        g(f"""
        s_lshr_b32 {S_T0}, {S_H}, 4
        s_lshl2_add_u32 {S_T0}, {S_T0}, {S_B}
        s_lshl_b32 {S_T0}, {S_T0}, 12
        s_and_b32 {S_T2}, {S_H}, 15
        s_lshl4_add_u32 {S_T0}, {S_T2}, {S_T0}
        s_add_u32 {S_T0}, {S_T0}, {WS_M + 8}
        s_add_u32 s54, s12, {S_T0}
        s_addc_u32 s55, s13, 0
        """)
    g('s_barrier')
    xw = o.get('xw', 0)
    f1e = o.get('f1e', 1)
    nxw = 0
    if xw:
        g(f"""
        s_lshr_b32 {S_T0}, s2, 5
        s_add_u32 {S_T2}, s2, {S_T0}
        s_and_b32 {S_T2}, {S_T2}, 7
        s_lshl3_add_u32 {S_T2}, {S_T0}, {S_T2}
        s_lshl2_add_u32 {S_T2}, {S_T2}, {S_J}
        s_lshl2_add_u32 {S_T2}, {S_T2}, {S_WAVE}
        s_mul_i32 {S_T2}, {S_T2}, 9216
        v_lshlrev_b32 v8, 7, v0
        """)
        left = xw
        while left > 0:
            if left < 64:
                g(f's_mov_b64 exec, {hex((1 << left) - 1)}' if left < 32 else f's_mov_b32 exec_hi, {hex((1 << (left-32)) - 1)}')
            g(f'buffer_load_dword v30, v8, {SRD_A}, {S_T2} offen')
            nxw += 1
            left -= 64
            if left > 0:
                g(f's_addk_i32 {S_T2}, 8192')
        g('s_mov_b64 exec, -1')
    if f1e:
        g(f's_waitcnt vmcnt({nxw})')
        g('s_barrier')
        g.stamp(7)

    def h3_loads():
        for u in range(4):
            g(f'buffer_load_dwordx4 {R(36+4*u)}, v96, {SRD_WS}, {S_T1} offen offset:{u*256} sc1')
    if mgate:
        sflag_issue(g, XR, S_PC, 256)
        sflag_wait(g, XR, S_PC, 256)
    else:
        g('s_barrier')
    h3_loads()
    g.stamp(8)
    g('s_waitcnt vmcnt(4)')
    g('s_barrier')
    g('ds_read_b128 v[20:23], v62')
    for s in range(4):
        for t in range(2):
            g(f'ds_read_b64_tr_b16 {R(64+8*s+4*t,2)}, v{56+t} offset:{s*9216}')
            g(f'ds_read_b64_tr_b16 {R(66+8*s+4*t,2)}, v{56+t} offset:{s*9216+4608}')
    g.stwait()
    g('s_waitcnt lgkmcnt(15)')
    for u in range(4):
        for t in range(4):
            g(f'v_and_b32 v{104+4*u+t}, v{20+u}, v{100+t}')
    lp = g.lab('h3')
    lp2 = g.lab('h3in')
    g(f's_branch {lp2}')
    g(f'{lp}:')
    h3_loads()
    spin_check(g)
    g(f'{lp2}:')
    for u in range(4):
        g(f's_waitcnt vmcnt({3-u})')
        for r in range(4):
            g(f'v_xor_b32 v{36+4*u+r}, {S_TAG2}, v{36+4*u+r}')
        or_chain(g, 8, range(36 + 4 * u, 40 + 4 * u), u == 0)
        c = '0' if u == 0 else R(12)
        g(f'{MF} {R(12)}, {R(104+4*u)}, {R(36+4*u)}, {c}')
    g(f"""
    v_and_b32 v8, 0x10001, v8
    v_cmp_ne_u32 vcc, 0, v8
    s_nop 3
    s_cbranch_vccnz {lp}
    s_mov_b32 exec_hi, 0
    v_cvt_pk_bf16_f32 v12, v12, v13
    v_cvt_pk_bf16_f32 v13, v14, v15
    ds_write_b64 v97, v[12:13]
    s_mov_b32 exec_hi, -1
    """)
    g.stamp(9)
    g('s_waitcnt lgkmcnt(0)')
    g('s_barrier')
    for s in range(4):
        g(f'ds_read_b128 {R(36+4*s)}, v60 offset:{s*64}')
    g('s_mov_b32 vcc_lo, 0xffff0000')
    g('s_mov_b32 vcc_hi, 0')
    for s in range(4):
        g(f's_waitcnt lgkmcnt({3-s})')
        for t in range(2):
            c = '0' if s == 0 else R(12 + 4 * t)
            g(f'{MF} {R(12+4*t)}, {R(36+4*s)}, {R(64+8*s+4*t)}, {c}')
    g(f"""
    s_nop 5
    s_mov_b32 exec_hi, 0
    v_add_f32 v12, v12, v14
    v_add_f32 v13, v13, v15
    v_add_f32 v16, v16, v18
    v_add_f32 v17, v17, v19
    v_cndmask_b32 v12, v12, v16, vcc
    v_cndmask_b32 v13, v13, v17, vcc
    v_bfi_b32 v12, {S_MASK}, v12, v6
    v_bfi_b32 v13, {S_MASK}, v13, v6
    buffer_store_dwordx2 v[12:13], v136, {SRD_WS}, {S_T4} offen {'sc1' if o.get('noloc3') else ''}
    """)
    g.stamp(10)
    if o.get('one', 0):
        for k in range(o.get('rb', 2)):
            g('s_waitcnt vmcnt(0)')
            g(f'buffer_load_dwordx2 v[12:13], v136, {SRD_WS}, {S_T4} offen sc1')
        g('s_waitcnt vmcnt(0)')
    else:
        g(f's_or_b32 {S_T4}, {S_T4}, {WS_SLOW}')
    if not o.get('noloc3'):
        g(f'buffer_store_dwordx2 v[12:13], v136, {SRD_WS}, {S_T4} offen sc1')
    g('s_mov_b32 exec_hi, -1')
    g('s_branch L_X_post')
    g('L_X_h1:')
    f2pos = o.get('f2pos', 4)
    ne = o.get('ne', 0)
    flag_regs = f"""
    v_mov_b32 v32, v6
    v_mov_b32 v33, v6
    v_mov_b32 v34, v6
    v_mov_b32 v35, v6
    s_lshl_b32 {S_T4}, {S_CU}, 7
    s_add_u32 {S_T4}, {S_T4}, {WS_F2}
    """
    fl = f"""
    s_mov_b64 exec, 0xff
    buffer_store_dwordx4 v[32:35], v1, {SRD_WS}, {S_T4} offen sc1
    s_mov_b64 exec, -1
    """
    gather32_ldsaddr(g, 60, LX_QP - 256, 272)
    g(f"""
    v_lshl_add_u32 v60, {S_WAVE}, 6, v60
    v_lshlrev_b32 v8, 4, v3
    v_lshl_add_u32 v61, v2, 10, v8
    s_lshl4_add_u32 {S_T2}, {S_H}, {S_WAVE}
    s_lshl_b32 {S_T2}, {S_T2}, 8
    s_add_u32 {S_T2}, {S_T2}, {WS_H1 - 1024}
    s_sub_u32 {S_T5}, {S_WAVE}, 4
    s_mul_i32 {S_T0}, {S_T5}, 9
    """)
    omega_src(g, 64, 9, S_T0)
    g(f"""
    v_mul_u32_u24 v9, 9216, v2
    v_add_u32 v5, v135, v9
    s_cmp_lt_u32 {S_Y}, 27
    s_cbranch_scc1 L_X_a1
    s_lshl_b32 m0, {S_T0}, 10
    s_mul_i32 {S_OFF}, {S_SPLIT}, 36864
    s_add_u32 {S_OFF}, {S_OFF}, m0
    s_branch L_X_a2
    L_X_a1:
    s_mul_i32 {S_OFF}, {S_RS}, 48
    s_add_u32 {S_OFF}, {S_OFF}, {S_T5}
    s_mul_i32 {S_OFF}, {S_OFF}, {4*9216}
    s_lshl_b32 {S_T0}, {S_CG}, 8
    s_add_u32 {S_OFF}, {S_OFF}, {S_T0}
    s_mul_i32 m0, {S_T5}, 1152
    s_mov_b32 {S_T3}, {16*9216}
    L_X_a2:
    """)
    g(f"""
    v_and_b32 v8, 1, v0
    v_lshlrev_b32 v9, 9, v8
    v_lshl_add_u32 v10, v2, 4, v9
    v_add_u32 v10, {LX_XN}, v10
    s_waitcnt vmcnt(0)
    s_barrier
    """)
    g.stamp(12)
    gather32(g, 61, S_T2, 60, stamp=4, dual=True)
    g(f"""
    s_cmp_lt_u32 {S_Y}, 27
    s_waitcnt lgkmcnt(0)
    s_barrier
    s_cbranch_scc0 L_X_nof1
    """)
    for u in range(12):
        if u == ne:
            g('s_barrier')
        g(f'buffer_load_dwordx4 v5, {SRD_W1}, {S_OFF} offen {NT("x2nt", 1)} lds')
        if u < 11:
            g('s_addk_i32 m0, 4608')
            g(f's_add_u32 {S_OFF}, {S_OFF}, {S_T3}')
    g('s_barrier')
    g.stamp(6)
    g(f's_lshl_b32 {S_T0}, {S_T5}, 1')
    alpha_addr(g, 56, S_T0)
    for s in range(6):
        g(f'ds_read_b128 {R(140+4*s)}, v10 offset:{64*s}')
    g(f"""
    v_xor_b32 v57, 32, v56
    s_lshl2_add_u32 {S_T2}, {S_CG}, {S_T5}
    s_lshl2_add_u32 {S_T2}, {S_T2}, {S_RS}
    s_lshl_b32 {S_T2}, {S_T2}, 8
    s_add_u32 {S_T2}, {S_T2}, {WS_HF}
    """)
    if stamps and o.get('st7', 0):
        g('s_waitcnt vmcnt(0)')
        g.stamp(7)
    if not f1e:
        g('s_barrier')
    g('s_waitcnt vmcnt(0)')
    g('s_barrier')
    for s in range(6):
        for t in range(2):
            g(f'ds_read_b64_tr_b16 {R(80+8*s+4*t,2)}, v{56+t} offset:{s*9216}')
            g(f'ds_read_b64_tr_b16 {R(82+8*s+4*t,2)}, v{56+t} offset:{s*9216+4608}')
    f1pos = o.get('f1pos', 0)
    if f1pos == 1:
        g('s_barrier')
    g.stwait()
    for s in range(6):
        g(f's_waitcnt lgkmcnt({min(15, 20-4*s)})')
        for t in range(2):
            c = '0' if s == 0 else R(12 + 4 * t)
            g(f'{MF} {R(12+4*t)}, {R(140+4*s)}, {R(80+8*s+4*t)}, {c}')
    g(f"""
    s_mov_b32 vcc_lo, 0xffff0000
    s_mov_b32 vcc_hi, 0
    s_nop 4
    s_mov_b32 exec_hi, 0
    v_cndmask_b32 v12, v12, v16, vcc
    v_cndmask_b32 v13, v13, v17, vcc
    v_bfi_b32 v12, {S_MASK}, v12, v6
    v_bfi_b32 v13, {S_MASK}, v13, v6
    buffer_store_dwordx2 v[12:13], v136, {SRD_WS}, {S_T2} offen sc1
    s_mov_b32 exec_hi, -1
    """)
    g.stamp(11)
    if f1e:
        g('s_barrier')
        g('s_barrier')
    if f1pos == 0:
        g('s_barrier')
    g('s_branch L_X_post')
    g('L_X_nof1:')
    g(f"""
    s_cmp_lt_u32 {S_Y}, 31
    s_cbranch_scc1 L_X_f2s
    s_barrier
    s_branch L_X_nof2
    L_X_f2s:
    """)
    for u in range(9):
        if u == ne:
            g('s_barrier')
        g(f'buffer_load_dwordx4 v{64+u}, {SRD_O}, {S_OFF} offen offset:{(u&3)*1024} {NT("x2nt", 1)} lds')
        if u & 3 == 3:
            g('s_addk_i32 m0, 4096')
            g(f's_addk_i32 {S_OFF}, 4096')
    g(f"""
    L_X_nof2:
    s_barrier
    {'s_barrier' if f1e else ''}
    s_barrier
    s_waitcnt vmcnt(0)
    s_barrier
    s_barrier
    s_branch L_X_post
    """)
    g('L_X_w8:')
    g(f"""
    s_and_b32 {S_T0}, s2, 7
    s_lshr_b32 {S_T1}, s2, 3
    s_lshl4_add_u32 {S_T0}, {S_T0}, {S_T1}
    s_lshl_b32 {S_T0}, {S_T0}, 10
    s_add_u32 {S_T1}, {S_T0}, {WS_H1}
    buffer_load_dwordx4 v[40:43], v1, {SRD_WS}, {S_T1} offen sc1
    s_add_u32 {S_T1}, {S_T0}, {WS_H3P}
    buffer_load_dwordx4 v[40:43], v1, {SRD_WS}, {S_T1} offen sc1
    s_lshl_b32 {S_T0}, s2, 10
    s_add_u32 {S_T1}, {S_T0}, {WS_HF}
    buffer_load_dwordx4 v[40:43], v1, {SRD_WS}, {S_T1} offen sc1
    """)
    if o.get('ptf2', 1) and o.get('gate2', 0):
        g(f"""
        s_lshr_b32 {S_T0}, s2, 3
        s_lshl_b32 {S_T0}, {S_T0}, 10
        s_add_u32 {S_T1}, {S_T0}, {WS_F2}
        buffer_load_dwordx4 v[40:43], v1, {SRD_WS}, {S_T1} offen sc1
        """)
    g(f's_mul_i32 {S_T1}, {S_RS}, 384')
    layernorm_loads(g, S_T1)
    make_tag(g)
    g(flag_regs)
    set_role(g, r2)
    layernorm_addr(g, LX_XN)
    g(f"""
    v_lshlrev_b32 v62, 8, v0
    s_lshr_b32 {S_T2}, {S_H}, 4
    s_lshl_b32 {S_T2}, {S_T2}, 14
    s_and_b32 {S_T1}, {S_H}, 15
    s_lshl4_add_u32 {S_T2}, {S_T1}, {S_T2}
    s_add_u32 {S_T2}, {S_T2}, {WS_M}
    """)
    if o.get('ptm', 1):
        g(f"""
        s_lshr_b32 {S_T0}, s2, 1
        s_and_b32 {S_T0}, {S_T0}, 60
        s_lshl_b64 exec, 15, {S_T0}
        buffer_load_dword v44, v62, {SRD_WS}, {S_T2} offen sc1
        s_mov_b64 exec, -1
        """)
    g(f"""
    s_waitcnt vmcnt(0)
    """)
    g('s_barrier')
    if f2pos == 1:
        g(fl)
    g('s_barrier')
    if f2pos == 2:
        g(fl)
    g('s_barrier')
    if f2pos == 3:
        g(fl)
    layernorm_stats(g)
    layernorm_slice(g, 22, 0)
    g('s_waitcnt lgkmcnt(0)')
    g('s_barrier')
    if f1e:
        g('s_barrier')
    g('s_setprio 3')
    mls = o.get('mls', 8)
    if mls:
        lp = g.lab('ml0')
        m = 0
        for k in range(mls):
            m |= 1 << (k * (64 // mls))
        g(f'''
        s_lshr_b32 {S_T0}, s2, 3
        s_mul_i32 {S_T0}, {S_T0}, 5
        s_and_b32 {S_T0}, {S_T0}, {64 // mls - 1}
        s_mov_b32 exec_lo, 0x{m & 0xffffffff:x}
        s_mov_b32 exec_hi, 0x{m >> 32:x}
        s_lshl_b64 exec, exec, {S_T0}
        {lp}:
        buffer_load_dword v18, v62, {SRD_WS}, {S_T2} offen offset:8 sc1
        ''')
        spin_check(g)
        g(f'''
        s_waitcnt vmcnt(0)
        v_cmp_ne_u32 vcc, {S_EP}, v18
        s_nop 1
        s_cbranch_vccnz {lp}
        s_mov_b64 exec, -1
        ''')
    lp = g.lab('ml')
    g(f'''
    {lp}:
    {'s_sleep ' + str(o['slp']) if o.get('slp') else ''}
    buffer_load_dwordx3 v[16:18], v62, {SRD_WS}, {S_T2} offen sc1
    ''')
    spin_check(g)
    g(f'''
    s_waitcnt vmcnt(0)
    v_cmp_ne_u32 vcc, {S_EP}, v18
    s_nop 1
    s_and_b64 exec, exec, vcc
    s_cbranch_scc1 {lp}
    {'' if mgate else 's_barrier'}
    s_mov_b64 exec, -1
    v_max_f32_dpp v20, v16, v16 row_ror:1 {DPPF}
    v_lshlrev_b32 v8, 2, v0
    v_add_u32 v8, {LX_WT}, v8
    v_max_f32_dpp v20, v20, v20 row_ror:2 {DPPF}
    s_nop 1
    v_max_f32_dpp v20, v20, v20 row_ror:4 {DPPF}
    s_nop 1
    v_max_f32_dpp v21, v20, v20 row_ror:8 {DPPF}
    v_max_f32_dpp v20, v20, v20 row_ror:8 {DPPF}
    s_nop 1
    v_permlane16_swap_b32 v20, v21
    v_max_f32 v20, v20, v21
    v_sub_f32 v16, v16, v20
    v_exp_f32 v16, v16
    s_nop 0
    v_mul_f32 v17, v16, v17
    s_nop 1
    v_add_f32_dpp v17, v17, v17 row_ror:1 {DPPF}
    s_nop 1
    v_add_f32_dpp v17, v17, v17 row_ror:2 {DPPF}
    s_nop 1
    v_add_f32_dpp v17, v17, v17 row_ror:4 {DPPF}
    s_nop 1
    v_add_f32_dpp v21, v17, v17 row_ror:8 {DPPF}
    v_add_f32_dpp v17, v17, v17 row_ror:8 {DPPF}
    s_nop 1
    v_permlane16_swap_b32 v17, v21
    v_add_f32 v17, v17, v21
    v_rcp_f32 v17, v17
    s_nop 0
    v_mul_f32 v16, v16, v17
    v_cvt_pk_bf16_f32 v16, v16, v16
    ds_write_b32 v8, v16
    s_waitcnt lgkmcnt(0)
    s_barrier
    s_setprio 0
    s_barrier
    L_X_post:
    s_cmp_lt_u32 {S_Y}, 16
    s_cbranch_scc1 L_X_final
    s_sub_u32 {S_T0}, {S_Y}, 27
    s_cmp_lt_u32 {S_T0}, 4
    s_cbranch_scc0 L_END
    ''')
    g(f'''
    s_load_dwordx2 s[24:25], s[0:1], 64
    s_movk_i32 s26, 9216
    s_mov_b32 {S_CU}, {S_SPLIT}
    ''')
    omega_addr(g, 56)
    omega_reads(g, 56, 80, LX_WO)
    act_addr(g, 61, LX_ACT)
    h4_soff(g, S_CU)
    g(f'''
    s_cmp_eq_u32 {S_WAVE}, 8
    s_cbranch_scc0 L_X_f2w
    s_waitcnt lgkmcnt(0)
    ''')
    bias_prep(g, S_CU)
    gather32_ldsaddr(g, 60, LX_ACT, 64)
    g('s_waitcnt vmcnt(0)')
    bias_unpack(g)
    gather32(g, 1, S_T1, 60, act=True)
    g('L_X_f2w:')
    g('s_waitcnt lgkmcnt(0)')
    g('s_barrier')
    omega_finish(g, 61, [80], 136, S_T3)
    g.stamp(12)
    g('s_branch L_END')
    g('L_X_final:')
    g(f'''
    s_lshr_b32 {S_T0}, s2, 5
    s_lshl4_add_u32 {S_CU}, {S_T0}, {S_Y}
    s_cmp_lt_u32 {S_CU}, 36
    s_cbranch_scc0 L_END
    v_lshrrev_b32 v8, 3, v0
    v_mul_u32_u24 v8, 4608, v8
    v_and_b32 v9, 7, v0
    v_lshl_add_u32 v10, v9, 4, v8
    s_mul_i32 {S_T0}, {S_WAVE}, {16*4608}
    s_lshl_b32 {S_T1}, {S_CU}, 7
    s_add_u32 {S_T0}, {S_T0}, {S_T1}
    s_add_u32 {S_T0}, {S_T0}, {WS_H4}
    s_add_u32 {S_T1}, {S_T0}, {8*4608}
    s_lshl_b32 {S_T4}, {S_CU}, 5
    v_lshlrev_b32 v55, 1, v3
    v_and_b32 v8, 1, v2
    v_mul_u32_u24 v56, 1152, v8
    v_add_u32 v56, v56, v55
    buffer_load_ushort v57, v56, {SRD_X}, {S_T4} offen
    buffer_load_ushort v58, v55, {SRD_B2}, {S_T4} offen
    v_lshl_add_u32 v8, v9, 1, v8
    v_lshrrev_b32 v59, 1, v2
    v_lshl_add_u32 v8, v59, 4, v8
    v_mul_u32_u24 v8, 48, v8
    v_lshl_add_u32 v8, {S_WAVE}, 2, v8
    v_and_b32 v11, 31, v0
    v_mul_u32_u24 v11, 48, v11
    v_add_u32 v61, {LX_FIN}, v11
    v_lshl_add_u32 v60, v59, 4, v61
    v_add_u32 v59, {LX_FIN}, v8
    ''')
    h4s = o.get('h4s', 0)
    if h4s:
        if h4s == 1:
            for u, sr in enumerate((S_T0, S_T1)):
                g(f'buffer_load_dwordx4 {R(16+4*u)}, v10, {SRD_WS}, {sr} offen sc1')
        lp = g.lab('h40')
        nl = o.get('h4n', 1)
        m = 0
        for k in range(nl):
            m |= 1 << (8 * k)
        g(f'''
        s_mov_b32 exec_lo, 0x{m & 0xffffffff:x}
        s_mov_b32 exec_hi, 0x{m >> 32:x}
        {lp}:
        buffer_load_dword v24, v10, {SRD_WS}, {S_T0} offen sc1
        ''')
        spin_check(g)
        g(f'''
        s_waitcnt vmcnt(0)
        v_and_b32 v24, 0xfff, v24
        v_cmp_ne_u32 vcc, {S_TAG}, v24
        s_nop 1
        s_cbranch_vccnz {lp}
        s_mov_b64 exec, -1
        ''')
    lp = g.lab('h4')
    g(f'{lp}:')
    for u, sr in enumerate((S_T0, S_T1)):
        g(f'buffer_load_dwordx4 {R(16+4*u)}, v10, {SRD_WS}, {sr} offen sc1')
    spin_check(g)
    g('s_waitcnt vmcnt(0)')
    tagged_check(g, range(16, 24), 8)
    g(f'''
    v_pk_add_f32 v[16:17], v[16:17], v[20:21]
    v_pk_add_f32 v[18:19], v[18:19], v[22:23]
    s_cbranch_vccnz {lp}
    ''')
    g.stamp(13)
    g(f'''
    v_permlane32_swap_b32 v16, v17
    v_permlane32_swap_b32 v18, v19
    v_add_f32 v16, v16, v17
    v_add_f32 v18, v18, v19
    v_lshlrev_b32 v57, 16, v57
    v_lshlrev_b32 v58, 16, v58
    v_permlane16_swap_b32 v16, v18
    v_add_f32 v16, v16, v18
    v_add_f32 v57, v57, v58
    s_cmp_eq_u32 {S_WAVE}, 0
    v_add_f32_dpp v16, v16, v16 row_ror:8 {DPPF}
    ds_write_b32 v59, v16
    s_waitcnt lgkmcnt(0)
    s_barrier
    s_cbranch_scc0 L_END
    ds_read_b128 v[16:19], v60
    ds_read_b32 v20, v61 offset:32
    s_waitcnt lgkmcnt(1)
    v_pk_add_f32 v[16:17], v[16:17], v[18:19]
    v_add_f32 v16, v16, v17
    v_mov_b32 v17, v16
    s_waitcnt lgkmcnt(0)
    v_add_f32 v57, v57, v20
    v_permlane32_swap_b32 v16, v17
    v_add_f32 v16, v16, v17
    v_add_f32 v16, v16, v57
    v_cvt_pk_bf16_f32 v16, v16, v16
    s_mov_b32 exec_hi, 0
    buffer_store_short v16, v56, {SRD_OUT}, {S_T4} offen {'sc1' if o.get('osc1') else ''}
    ''')
    if o.get('hold'):
        g(f'''
        s_and_b32 s94, s2, 7
        s_lshr_b32 s94, {o.get('holdm', 1)}, s94
        s_and_b32 s94, s94, 1
        s_cbranch_scc0 L_nohold
        L_hold:
        s_memrealtime s[94:95]
        s_waitcnt lgkmcnt(0)
        s_sub_u32 s94, s94, s92
        s_cmp_lt_u32 s94, {o['hold']}
        s_cbranch_scc1 L_hold
        L_nohold:
        ''')
    g(f'''
    s_cmp_eq_u32 s2, 0
    s_cbranch_scc0 L_END
    v_mov_b32 v17, {S_EP}
    v_mov_b32 v18, 0
    buffer_store_dword v17, v18, {SRD_WS}, 0 offen {'sc1' if o.get('osc1') else ''}
    s_branch L_END
    ''')

    g('L_Y2:')
    clear_stamps(1)
    g(f"""
    s_load_dword {S_EP}, s[12:13], 0
    s_mov_b32 s10, {2*4096*1024}
    s_sub_u32 {S_Y}, s2, 128
    s_bfe_u32 {S_HG}, s2, 0x10003
    s_and_b32 {S_T0}, s2, 7
    s_lshr_b32 {S_T1}, {S_Y}, 4
    s_lshl3_add_u32 {S_SPLIT}, {S_T0}, {S_T1}
    s_lshl1_add_u32 {S_OFF}, {S_SPLIT}, {S_HG}
    s_lshl2_add_u32 {S_OFF}, {S_OFF}, {S_WAVE}
    s_lshl_b32 {S_OFF}, {S_OFF}, 14
    s_mul_i32 m0, {S_WAVE}, 16896
    s_cmp_lt_u32 {S_WAVE}, 4
    s_barrier
    s_cbranch_scc0 L_Y_noc
    """)
    nc0 = o.get('nc0', 4)

    def ckv_dma(a, b, yp=''):
        for n in range(a, b):
            k, u = n >> 2, n & 3
            w = n - a < len(yp) and yp[n - a] != '9'
            if w:
                g(f's_waitcnt vmcnt({yp[n-a]})')
            g(f'buffer_load_dwordx4 v1, {SRD_A}, {S_OFF} offen offset:{u*1024} {cnt} lds')
            if u < 3:
                g('s_addk_i32 m0, 32')
                g('s_nop 0')
            elif k < 7:
                g(f's_add_u32 m0, m0, {4128 + (48*1056 if k == 3 else 0)}')
                if k == 3:
                    g(f's_xor_b32 {S_OFF}, {S_OFF}, {0x1c000 if o.get("rev", 1) else 0x13000}')
                    g('s_barrier')
                else:
                    g(f's_addk_i32 {S_OFF}, {-4096 if (k > 3 and o.get("rev", 1)) else 4096}')
    ckv_dma(0, nc0)
    g('L_Y_noc:')
    post = []
    post += srd(g, SRD_W1, 40, 0 if o.get('nowo') else 4096 * 1152)
    post += srd(g, SRD_C, 64, 9216)
    post += srd(g, SRD_O, 72, 0 if o.get('now2') else 4608 * 1152)
    for p in post:
        g(p)
    g(f"""
    s_lshr_b32 {S_B}, {S_SPLIT}, 5
    s_and_b32 {S_T0}, s2, 7
    s_lshr_b32 {S_T1}, {S_Y}, 3
    s_lshl4_add_u32 {S_CU}, {S_T0}, {S_T1}
    s_lshr_b32 {S_T2}, {S_T1}, 2
    """)
    phys_head(g, S_PH, S_T0, S_T2, S_T3)
    g(f"""
    s_and_b32 {S_T1}, {S_T1}, 3
    s_lshl2_add_u32 {S_PH}, {S_PH}, {S_T1}
    s_lshl2_add_u32 {S_H}, {S_T0}, {S_T1}
    """)
    misc_consts(g)
    g('s_waitcnt lgkmcnt(0)')
    make_tag(g)
    g(f"""
    s_lshl2_add_u32 {S_KEEP}, {S_H}, {S_J}
    s_cmp_eq_u32 {S_WAVE}, 8
    s_cbranch_scc1 L_Y_w8
    s_cmp_eq_u32 {S_WAVE}, {LNW}
    s_cbranch_scc0 L_Y_noln
    """)
    layernorm_addr(g, LY_XN)
    g('s_waitcnt vmcnt(4)')
    layernorm_stats(g)
    layernorm_slice(g, 22, 0)
    g('L_Y_noln:')
    alpha_addr(g, 56, S_WAVE)
    g(f"""
    v_add_u32 v56, {LY_WQ}, v56
    v_and_b32 v8, 1, v0
    v_lshlrev_b32 v9, 9, v8
    v_lshl_add_u32 v10, v2, 4, v9
    v_add_u32 v10, {LY_XN}, v10
    v_lshlrev_b32 v11, 3, v0
    v_mov_b32 v98, 0
    v_mov_b32 v99, 0
    s_lshl3_add_u32 {S_T4}, {S_KEEP}, {S_WAVE}
    s_lshl_b32 {S_T4}, {S_T4}, 7
    s_add_u32 {S_T4}, {S_T4}, {WS_H1}
    s_or_b32 {S_KEEP}, {S_T4}, {WS_SLOW}
    s_waitcnt lgkmcnt(0)
    s_barrier
    """)
    for s in range(5):
        g(f'ds_read_b128 {R(140+4*s)}, v10 offset:{64*s}')
    g(f"""
    s_cmp_lt_u32 {S_WAVE}, 4
    s_cbranch_scc1 L_Y_q1a
    s_waitcnt vmcnt(0)
    L_Y_q1a:
    s_waitcnt vmcnt({nc0})
    s_barrier
    """)
    g.stamp(13)
    for s in range(5):
        g(f'ds_read_b64_tr_b16 {R(80+4*s,2)}, v56 offset:{s*9216}')
        if s < 4:
            g(f'ds_read_b64_tr_b16 {R(82+4*s,2)}, v56 offset:{s*9216+4608}')
    g.stwait()
    for s in range(5):
        g(f's_waitcnt lgkmcnt({max(7-2*s, 0)})')
        c = '0' if s == 0 else R(16)
        g(f'{MF} {R(16)}, {R(140+4*s)}, {R(80+4*s)}, {c}')
    g(f"""
    s_nop 6
    s_mov_b64 exec, 0xffff
    v_bfi_b32 v16, {S_MASK}, v16, v6
    v_bfi_b32 v17, {S_MASK}, v17, v6
    buffer_store_dwordx2 v[16:17], v11, {SRD_WS}, {S_T4} offen
    """)
    g.stamp(14)
    g(f"""
    s_barrier
    buffer_store_dwordx2 v[16:17], v11, {SRD_WS}, {S_KEEP} offen sc1
    s_mov_b64 exec, -1
    s_cbranch_scc0 L_Y_nqk
    """)
    ckv_dma(nc0, 16, str(o.get('yp', '9')))
    g(f'''
    v_mul_u32_u24 v8, 1056, v3
    v_lshl_add_u32 v8, v2, 4, v8
    s_mul_i32 {S_T0}, {S_WAVE}, 16896
    v_add_u32 v4, {S_T0}, v8
    v_add_u32 v7, 67584, v4
    v_add_u32 v5, {LY_Q}, v8
    v_lshlrev_b32 v13, 4, v3
    v_add_u32 v11, {LY_MX}, v13
    v_lshl_add_u32 v10, {S_WAVE}, 2, v11
    s_lshl_b32 {S_T0}, {S_WAVE}, 10
    s_add_u32 {S_T0}, {S_T0}, {LY_P}
    v_add_u32 v12, {S_T0}, v1
    s_lshl1_add_u32 {S_T2}, {S_B}, {S_HG}
    s_lshl2_add_u32 {S_T2}, {S_T2}, {S_WAVE}
    s_lshl_b32 {S_T2}, {S_T2}, 12
    s_add_u32 {S_T2}, {S_T2}, {WS_H2}
    s_mul_i32 {S_T0}, {S_WAVE}, 4224
    s_add_u32 {S_T0}, {S_T0}, {LY_Q}
    v_add_u32 v14, {S_T0}, v1
    s_mov_b32 {S_T1}, 0x{f2u(SCALE):08x}
    ''')

    def kreads(t):
        for ks in range(16):
            g(f'ds_read_b128 {R(40+8*ks+4*t)}, v{7 if t else 4} offset:{ks*64}')

    def h2_loads():
        for u in range(4):
            g(f'buffer_load_dwordx4 {R(16+4*u)}, v1, {SRD_WS}, {S_T2} offen offset:{u*1024} sc1')
    lp = g.lab('h2')
    lp2 = g.lab('h2in')
    sgate = 0
    fpos = o.get('fpos', 0)
    ckv_dma(16, 32)
    g('s_waitcnt vmcnt(16)')
    g.stamp(1)
    g('s_barrier')
    if fpos == 0:
        g.stamp(4)
        h2_loads()
        kreads(0)
    else:
        kreads(0)
        g('s_waitcnt lgkmcnt(0)')
        g('s_barrier')
        g.stamp(4)
        h2_loads()
    g('s_waitcnt vmcnt(4)')
    g.stamp(2)
    g('s_barrier')
    kreads(1)
    g(f's_branch {lp2}')
    g(f'{lp}:')
    h2_loads()
    spin_check(g)
    g(f'{lp2}:')
    for u in range(4):
        g(f's_waitcnt vmcnt({3-u})')
        for r in range(4):
            g(f'v_xor_b32 v{16+4*u+r}, {S_TAG2}, v{16+4*u+r}')
        g(f'ds_write_b128 v14, {R(16+4*u)} offset:{u*1056}')
        or_chain(g, 8, range(16 + 4 * u, 20 + 4 * u), u == 0)
    g(f'''
    v_and_b32 v8, 0x10001, v8
    v_cmp_ne_u32 vcc, 0, v8
    s_waitcnt lgkmcnt(0)
    s_nop 0
    s_cbranch_vccnz {lp}
    ''')
    g.stamp(5)
    g.stwait()
    g('s_barrier')
    for ks in range(4):
        g(f'ds_read_b128 {R(16+4*ks)}, v5 offset:{ks*64}')
    for ks in range(16):
        q = 16 + 4 * (ks & 3)
        g(f's_waitcnt lgkmcnt({min(3, 15-ks)})')
        for t in range(2):
            c = '0' if ks == 0 else R(32 + 4 * t)
            g(f'{MF} {R(32+4*t)}, {R(40+8*ks+4*t)}, {R(q)}, {c}')
        if ks + 4 < 16:
            g(f'ds_read_b128 {R(q)}, v5 offset:{(ks+4)*64}')
    g(f'''
    s_nop 6
    v_max3_f32 v8, v32, v33, v34
    v_max3_f32 v8, v8, v35, v36
    v_max3_f32 v8, v8, v37, v38
    v_max_f32 v9, v8, v39
    v_max_f32 v8, v8, v39
    s_nop 1
    v_permlane16_swap_b32 v8, v9
    v_max_f32 v15, v8, v9
    v_max_f32 v8, v8, v9
    s_nop 1
    v_permlane32_swap_b32 v8, v15
    v_max_f32 v8, v8, v15
    ds_write_b32 v10, v8
    s_waitcnt lgkmcnt(0)
    s_barrier
    ds_read_b128 v[16:19], v11
    s_waitcnt lgkmcnt(0)
    v_max3_f32 v8, v16, v17, v18
    v_max_f32 v8, v8, v19
    v_mul_f32 v24, {S_T1}, v8
    ''')
    for r in range(8):
        g(f'v_fma_f32 v{32+r}, v{32+r}, {S_T1}, -v24')
    for r in range(8):
        g(f'v_exp_f32 v{32+r}, v{32+r}')
    for r in range(4):
        g(f'v_cvt_pk_bf16_f32 v{16+r}, v{32+2*r}, v{33+2*r}')
    g(f'''
    ds_write_b128 v12, v[16:19]
    v_pk_add_f32 v[32:33], v[32:33], v[34:35]
    v_pk_add_f32 v[36:37], v[36:37], v[38:39]
    v_pk_add_f32 v[32:33], v[32:33], v[36:37]
    v_add_f32 v8, v32, v33
    v_add_f32 v9, v32, v33
    s_nop 1
    v_permlane16_swap_b32 v8, v9
    v_add_f32 v15, v8, v9
    v_add_f32 v8, v8, v9
    s_nop 1
    v_permlane32_swap_b32 v8, v15
    v_add_f32 v8, v8, v15
    ds_write_b32 v10, v8 offset:256
    s_waitcnt lgkmcnt(0)
    s_barrier
    ''')
    g.stamp(6)
    n1 = o.get('n1', 5)
    n2 = o.get('n2', 2)
    rest = 36 - 4 * (n1 + n2)
    assert rest >= 0 and rest % 4 == 0
    n3 = rest // 4

    def w2_batch(first_sgpr, n, vsrc):
        for u in range(n):
            if u % 4 == 0:
                g(f's_lshl_b32 {S_T4}, {first_sgpr}, 10')
                g(f's_add_u32 m0, {S_T4}, {LY_WOA + (u>>2)*4096}')
                g(f's_mul_i32 {S_OFF}, {S_Y}, 36864')
                g(f's_add_u32 {S_OFF}, {S_OFF}, m0')
            g(f'buffer_load_dwordx4 v{vsrc+u}, {SRD_O}, {S_OFF} offen offset:{(u&3)*1024} {NT("wnt")} lds')
    if n2 + n3:
        g(f's_mul_i32 {S_T5}, {S_WAVE}, {n2 + n3}')
        g(f's_add_u32 {S_T5}, {S_T5}, {4*n1}')
        omega_src(g, 40, n2 + n3, S_T5)
        w2_batch(S_T5, n2, 40)
        g(f's_add_u32 {S_T5}, {S_T5}, {n2}')
    g('s_barrier')
    w2_batch(S_T5, n3, 40 + n2)
    g('s_branch L_Y_b5')
    g('L_Y_nqk:')
    g(f"""
    s_sub_u32 {S_T5}, {S_WAVE}, 4
    s_mul_i32 {S_T5}, {S_T5}, {n1}
    """)

    def pv_setup():
        if n1:
            omega_src(g, 24, n1, S_T5)
        g(f"""
        v_lshrrev_b32 v8, 2, v0
        v_mul_u32_u24 v8, 1056, v8
        v_and_b32 v9, 3, v0
        v_lshl_add_u32 v8, v9, 3, v8
        s_lshl_b32 {S_T0}, {S_WAVE}, 8
        s_sub_u32 {S_T0}, {S_T0}, 1024
        v_add_u32 v4, {S_T0}, v8
        v_add_u32 v5, 67584, v4
        v_add_u32 v12, {LY_P}, v1
        v_lshlrev_b32 v8, 4, v3
        v_lshl_add_u32 v13, v2, 18, v8
        s_lshl_b32 {S_T0}, {S_HG}, 20
        s_lshl_b32 {S_T3}, {S_WAVE}, 14
        s_add_u32 {S_T0}, {S_T0}, {S_T3}
        s_lshl_b32 {S_T3}, {S_SPLIT}, 8
        s_add_u32 {S_T0}, {S_T0}, {S_T3}
        s_add_u32 {S_T0}, {S_T0}, {WS_H3 - 4*16384}
        s_add_u32 {S_T1}, {S_T0}, 0x10000
        s_add_u32 {S_T2}, {S_T0}, 0x20000
        s_add_u32 {S_T3}, {S_T0}, 0x30000
        """)
    pv_setup()

    def vreads(t, c0, c1):
        for ct in range(c0, c1):
            for s in range(4):
                g(f'ds_read_b64_tr_b16 {R(40+16*ct+4*s+2*t,2)}, v{4+t} offset:{s*16896 + ct*32}')
    g('s_barrier')
    g('s_barrier')
    vreads(0, 0, 8)
    g('s_waitcnt lgkmcnt(0)')
    if fpos:
        g('s_barrier')
    g('s_barrier')
    n1pos = o.get('n1pos', 2)
    vs = o.get('vs', 4)
    if n1pos == 1:
        w2_batch(S_T5, n1, 24)
    vreads(1, 0, vs)
    g.stamp(3)
    g('s_barrier')
    if n1pos == 2:
        w2_batch(S_T5, n1, 24)
    vreads(1, vs, 8)
    g('s_barrier')
    g('s_waitcnt lgkmcnt(0)')
    g('s_setprio 2')
    g('s_barrier')
    PR = 16
    for s in range(4):
        g(f'ds_read_b128 {R(PR+4*s)}, v12 offset:{s*1024}')

    def accreg(u):
        return 32 if u == 0 else 40 + 32 * (u - 1)
    PK = 56

    def pack(u):
        a = accreg(u)
        return [f'v_cvt_pk_bf16_f32 v{PK+4*r+u}, v{a+r}, v{a+4+r}' for r in range(4)] + \
               [f'v_bfi_b32 v{PK+4*r+u}, {S_MASK2}, v{PK+4*r+u}, v6' for r in range(4)]
    pend = []
    for u in range(4):
        a = accreg(u)
        n = 0
        for s in range(4):
            if u == 0:
                g(f's_waitcnt lgkmcnt({3-s})')
            for t in range(2):
                ct = 2 * u + t
                c = '0' if s == 0 else R(a + 4 * t)
                g(f'{MF} {R(a+4*t)}, {R(PR+4*s)}, {R(40+16*ct+4*s)}, {c}')
                n += 1
                if u >= 2 and pend:
                    g(pend.pop(0))
        if u >= 1:
            pend += pack(u - 1)
    for e in pend:
        g(e)
    a = accreg(3)
    for r, sr in enumerate((S_T0, S_T1, S_T2, S_T3)):
        g(f'v_cvt_pk_bf16_f32 v{PK+4*r+3}, v{a+r}, v{a+4+r}')
        g(f'v_bfi_b32 v{PK+4*r+3}, {S_MASK2}, v{PK+4*r+3}, v6')
        g(f'buffer_store_dwordx4 {R(PK+4*r)}, v13, {SRD_WS}, {sr} offen sc1')
    g('s_setprio 0')
    g.stamp(7)
    g(f's_waitcnt vmcnt({o.get("swait", 4)})')
    g('s_barrier')
    g('s_branch L_Y_b5')
    g('L_Y_w8:')
    g(f"""
    v_add_u32 v11, {LY_MX}, v1
    s_lshl_b32 {S_T0}, {S_HG}, 6
    s_add_u32 {S_T0}, {S_T0}, {S_SPLIT}
    s_lshl_b32 {S_T0}, {S_T0}, 8
    s_add_u32 {S_T0}, {S_T0}, {WS_M}
    s_mov_b32 {S_T1}, 0x{f2u(SCALE):08x}
    v_mov_b32 v22, v6
    v_mov_b32 v23, v6
    v_lshlrev_b32 v7, 7, v0
    s_lshl_b32 {S_T3}, {S_HG}, 13
    s_add_u32 {S_T3}, {S_T3}, {WS_F2}
    s_setprio 3
    """)
    g(f"""
    v_mov_b32 v24, v6
    v_mov_b32 v25, v6
    s_lshl_b32 {S_T4}, {S_KEEP}, 7
    s_add_u32 {S_T4}, {S_T4}, {WS_F2}
    s_barrier
    s_waitcnt vmcnt(0)
    s_barrier
    """)
    yfl = f"""
    s_mov_b64 exec, 0xff
    buffer_store_dwordx4 v[22:25], v1, {SRD_WS}, {S_T4} offen sc1
    s_mov_b64 exec, -1
    """
    if f2pos == 5:
        g(yfl)
    g('s_barrier')
    if f2pos == 4 and o.get('gate2', 0):
        g(yfl)
    g('s_barrier')
    if fpos:
        g('s_barrier')
    if o.get('gate2', 0):
        flag_poll(g, 7, S_T3)
    g.stamp(14)
    g('s_barrier')
    g('s_barrier')
    g('s_barrier')
    g('s_mov_b64 exec, 0xffff')
    g('s_barrier')
    g(f"""
    ds_read_b128 v[16:19], v11
    s_waitcnt lgkmcnt(0)
    v_max3_f32 v8, v16, v17, v18
    v_max_f32 v8, v8, v19
    v_mul_f32 v20, {S_T1}, v8
    s_barrier
    ds_read_b128 v[16:19], v11 offset:256
    s_waitcnt lgkmcnt(0)
    v_add_f32 v16, v16, v17
    v_add_f32 v18, v18, v19
    v_add_f32 v21, v16, v18
    buffer_store_dwordx4 v[20:23], v1, {SRD_WS}, {S_T0} offen sc1
    s_mov_b64 exec, -1
    s_setprio 0
    """)
    g.stamp(13)
    g('s_barrier')
    g('L_Y_b5:')
    GW = o.get('gw', 7)
    g(f"""
    s_cmp_eq_u32 {S_WAVE}, {GW}
    s_cbranch_scc0 L_Y_nh
    """)
    bias_prep(g, S_Y, 63)
    g(f"""
    s_mov_b32 exec_hi, 0xffff
    buffer_load_dwordx4 v[16:19], v1, {SRD_WS}, {S_T1} offen sc1
    s_mov_b32 exec_hi, -1
    L_Y_nh:
    s_lshl_b32 {S_T0}, {S_WAVE}, 2
    """)
    omega_src(g, 24, 4, S_T0)
    g(f"""
    s_lshl_b32 {S_T0}, {S_WAVE}, 12
    s_add_u32 m0, {S_T0}, {LY_WOB}
    s_mul_i32 {S_OFF}, {S_PH}, 36864
    s_add_u32 {S_OFF}, {S_OFF}, {S_T0}
    """)
    for u in range(4):
        g(f'buffer_load_dwordx4 v{24+u}, {SRD_W1}, {S_OFF} offen offset:{u*1024} {NT("wnt")} lds')
    g.stamp(8)
    omega_addr(g, 56)
    act_addr(g, 61, LY_ACT)
    h4_soff(g, S_Y)
    gather32_ldsaddr(g, 60, LY_ACT, 64)
    g(f"""
    v_lshlrev_b32 v62, 3, v0
    s_lshl_b32 {S_T2}, {S_CU}, 10
    s_add_u32 {S_T2}, {S_T2}, {WS_H3P}
    s_mov_b32 s98, 0xffff0000
    s_mov_b32 s99, 0xffff0000
    s_mov_b32 s48, 0
    s_mov_b32 s49, -1
    s_cmp_eq_u32 {S_WAVE}, {GW}
    s_cbranch_scc0 L_Y_nh2
    s_waitcnt vmcnt(4)
    s_mov_b32 exec_lo, 0
    s_mov_b32 exec_hi, 0xffff0000
    """)
    bias_unpack(g)
    g('s_mov_b32 exec_lo, -1')
    gather32(g, 1, S_T1, 60, act=True, stamp=10, have=True)
    g(f"""
    L_Y_nh2:
    s_cmp_eq_u32 {S_WAVE}, {GW+1}
    s_cbranch_scc1 L_Y_ctx
    s_waitcnt vmcnt(0) lgkmcnt(0)
    """)

    def block_a():
        g.stamp(9)
        g('s_barrier')
        g('ds_read_b128 v[20:23], v61')
        omega_reads(g, 56, 80, LY_WOA)
        omega_reads(g, 56, 96, LY_WOB)

    def mfma_a():
        for t in range(4):
            g(f'{MF} {R(36+4*t)}, {R(20)}, {R(80+4*t)}, 0')
    block_a()
    g('s_waitcnt lgkmcnt(8)')
    g.stwait()
    mfma_a()
    g(f"""
    s_branch L_Y_c
    L_Y_ctx:
    s_setprio 2
    s_waitcnt vmcnt({o.get('cw', 1)})
    """)

    def pre():
        g('s_waitcnt vmcnt(1)')
        block_a()
        g('s_waitcnt lgkmcnt(8)')
        g.stwait()
        mfma_a()
    gather32(g, 1, S_T2, 60, lds_off=128, stamp=11, dual=True, pre=pre)
    g(f"""
    L_Y_c:
    s_waitcnt lgkmcnt(0)
    s_barrier
    ds_read_b128 v[24:27], v61 offset:128
    s_waitcnt lgkmcnt(0)
    """)
    for t in range(4):
        g(f'{MF} {R(36+4*t)}, {R(24)}, {R(96+4*t)}, {R(36+4*t)}')
    g(f"""
    s_nop 5
    v_cndmask_b32 v36, v36, v40, {S_CMP}
    v_cndmask_b32 v37, v37, v41, {S_CMP}
    v_cndmask_b32 v44, v44, v48, {S_CMP}
    v_cndmask_b32 v45, v45, v49, {S_CMP}
    v_cndmask_b32 v36, v36, v44, {S_EXC}
    v_cndmask_b32 v37, v37, v45, {S_EXC}
    v_bfi_b32 v36, {S_MASK}, v36, v6
    v_bfi_b32 v37, {S_MASK}, v37, v6
    buffer_store_dwordx2 v[36:37], v62, {SRD_WS}, {S_T3} offen sc1
    """)
    g.stamp(12)
    g('L_END:')
    if stamps:
        g.stamp(15)
        g(f'''
        s_sleep 127
        s_sleep 127
        s_mov_b64 exec, 1
        s_mul_i32 {S_T0}, s2, 9
        s_add_u32 {S_T0}, {S_T0}, {S_WAVE}
        s_lshl_b32 {S_T0}, {S_T0}, 6
        s_add_u32 {S_T0}, {S_T0}, {WS_ST}
        v_mov_b32 v8, 0
        s_waitcnt lgkmcnt(0)
        ''')
        for k in range(16):
            g(f'v_mov_b32 v9, s{64+2*k}')
            g(f'buffer_store_dword v9, v8, {SRD_WS}, {S_T0} offen offset:{4*k}')
    g('L_EXIT:')
    g('s_endpgm')
    g.L.append('.fill 1200, 4, 0xbf810000')
    g.L.append('.section .rodata,"a"')
    g.L.append('.p2align 6')
    g.L.append(f'.amdhsa_kernel {NAME}_kernel')
    g.L.append('  .amdhsa_next_free_vgpr 168')
    g.L.append('  .amdhsa_next_free_sgpr 102')
    g.L.append('  .amdhsa_accum_offset 168')
    g.L.append('  .amdhsa_group_segment_fixed_size 0')
    g.L.append('  .amdhsa_kernarg_size 112')
    g.L.append('  .amdhsa_user_sgpr_count 2')
    g.L.append('  .amdhsa_user_sgpr_kernarg_segment_ptr 1')
    g.L.append('  .amdhsa_system_sgpr_workgroup_id_x 1')
    g.L.append('.end_amdhsa_kernel')
    return g.text()


def parse_opts(args):
    o = {}
    for a in args:
        if '=' in a:
            k, v = a.split('=')
            o[k] = v if k in ('yp', 'xp', 'op') else int(v)
    return o


if __name__ == '__main__':
    out = sys.argv[1]
    stamps = 'stamps' in sys.argv[2:]
    nt = '' if 'nont' in sys.argv[2:] else 'nt'
    open(out, 'w').write(gen(stamps, nt, parse_opts(sys.argv[2:])))
```

```python
import sys, math, struct

NAME = 'parallel_sum__compressed_kv_cla__dense_activation_squared_relu__decode'

WS_H1 = 0x10000
WS_H2 = 0x30000
WS_H3P = 0x40000
WS_HF = 0x60000
WS_M = 0x90000
WS_F2 = 0xA0000
WS_H4 = 0x100000
WS_H3 = 0x300000
WS_SLOW = 0x500000
WS_ST = 0x600000
WS_SIZE = 0x800000

LX_W1 = 0
LX_WO = 0
LX_WUK = 55296
LX_WUV = 89088
LX_XN = LX_WUV + 36864
LX_QP = LX_XN + 1024
LX_CC = LX_QP + 1024
LX_FIN = LX_CC + 1280
LX_ACT = LX_FIN + 1536
LX_WT = LX_ACT + 640
LX_END = LX_WT + 256
LY_CKV = 0
LY_Q = 135168
LY_P = LY_Q + 16896
LY_MX = LY_P + 4096
LY_LX = LY_MX + 256
LY_ACT = LY_LX + 256
LY_END = LY_ACT + 256
LY_WQ = 67584
LY_XN = LY_P
LY_WOA = 0
LY_WOB = 36864
LDS_BYTES = max(LX_END, LY_END)

SCALE = (128 ** -0.5) * math.log2(math.e)


def f2u(x):
    return struct.unpack('<I', struct.pack('<f', x))[0]


class G:
    def __init__(self, stamps=False, nt='nt', opts=None):
        self.L = []
        self.stamps = stamps
        self.nt = nt
        self.o = opts or {}
        self.nlab = 0

    def __call__(self, s):
        for line in s.strip('\n').split('\n'):
            line = line.strip()
            if not line:
                continue
            if line.endswith(':'):
                self.L.append(line)
            else:
                self.L.append('    ' + line)

    def lab(self, p):
        self.nlab += 1
        return f'L_{p}_{self.nlab}'

    def stamp(self, k):
        if self.stamps:
            self(f's_memrealtime s[{64+2*k}:{65+2*k}]')

    def stwait(self):
        if self.stamps:
            self('s_waitcnt lgkmcnt(0)')

    def text(self):
        return '\n'.join(self.L) + '\n'


S_WAVE = 's3'
S_CU = 's4'
S_H = 's5'
S_J = 's6'
S_T0 = 's7'
SRD_A = 's[8:11]'
SRD_WS = 's[12:15]'
SRD_X = 's[16:19]'
SRD_B = 's[20:23]'
SRD_C = 's[24:27]'
SRD_O = 's[28:31]'
SRD_B2 = 's[32:35]'
SRD_OUT = 's[36:39]'
S_TAG = 's40'
S_EP = 's41'
S_SPIN = 's42'
S_MASK = 's43'
S_OFF = 's44'
S_T1 = 's45'
S_T2 = 's46'
S_T3 = 's47'
S_EXC = 's[48:49]'
S_B = 's50'
S_SPLIT = 's51'
S_HG = 's52'
S_Y = 's53'
S_PC = 's[54:55]'
S_TAG2 = 's56'
S_MASK2 = 's57'
S_T4 = 's58'
S_T5 = 's59'
SRD_W1 = 's[60:63]'
S_CG = 's96'
S_RS = 's97'
S_CMP = 's[98:99]'
S_PH = 's100'
S_KEEP = 's101'
DPPF = 'row_mask:0xf bank_mask:0xf'
MF = 'v_mfma_f32_16x16x32_bf16'


def R(a, n=4):
    return f'v[{a}:{a+n-1}]'


def srd(g, name, karg_off, nbytes):
    n = int(name[2:name.index(':')])
    g(f's_load_dwordx2 s[{n}:{n+1}], s[0:1], {karg_off}')
    return [f's_mov_b32 s{n+2}, {nbytes}', f's_mov_b32 s{n+3}, s11']


def spin_check(g):
    g(f's_sub_u32 {S_SPIN}, {S_SPIN}, 1')
    g('s_cbranch_scc1 L_END')


def or_chain(g, acc, rs, first):
    rs = list(rs)
    if first:
        g(f'v_or3_b32 v{acc}, v{rs[0]}, v{rs[1]}, v{rs[2]}')
        rs = rs[3:]
    while len(rs) >= 2:
        g(f'v_or3_b32 v{acc}, v{acc}, v{rs[0]}, v{rs[1]}')
        rs = rs[2:]
    if rs:
        g(f'v_or_b32 v{acc}, v{acc}, v{rs[0]}')


def tagged_check(g, regs, acc):
    for r in regs:
        g(f'v_xor_b32 v{r}, {S_TAG}, v{r}')
    or_chain(g, acc, regs, True)
    g(f'v_and_b32 v{acc}, 0xfff, v{acc}')
    g(f'v_cmp_ne_u32 vcc, 0, v{acc}')


def slow_toggle(g, soff, extra):
    if g.o.get('one', 0):
        if callable(extra):
            g(f's_and_b32 {S_T0}, {S_SPIN}, 31')
            extra()
        return
    g(f'''
    s_andn2_b32 {soff}, {soff}, {WS_SLOW}
    s_and_b32 {S_T0}, {S_SPIN}, 31
    s_cselect_b32 {S_T0}, 0, {WS_SLOW}
    s_add_u32 {soff}, {soff}, {S_T0}
    ''')
    if callable(extra):
        g(f's_cmp_eq_u32 {S_T0}, 0')
        extra()


def gather32(g, vaddr, soff, vlds, lds_off=0, act=False, stamp=None, pre=None, dual=False, firstwait=0, have=False):
    lp = g.lab('g32')
    if dual:
        g(f's_or_b32 {S_SPIN}, {S_SPIN}, 31')
    if act:
        g('s_mov_b32 exec_hi, 0xffff')
    if have:
        g(f's_branch {lp}_chk')
    if pre is not None:
        g(f'buffer_load_dwordx4 v[16:19], v{vaddr}, {SRD_WS}, {soff} offen sc1')
        pre()
        if firstwait:
            g(f'''
            s_cbranch_scc0 {lp}_in
            s_waitcnt vmcnt(1)
            s_branch {lp}_chk
            ''')
        else:
            g(f's_branch {lp}_in')
    g(f'''
    {lp}:
    buffer_load_dwordx4 v[16:19], v{vaddr}, {SRD_WS}, {soff} offen sc1
    ''')
    spin_check(g)
    if dual:
        slow_toggle(g, soff, dual)
    g(f'{lp}_in:')
    g('s_waitcnt vmcnt(0)')
    g(f'{lp}_chk:')
    tagged_check(g, range(16, 20), 8)
    if act:
        g('s_nop 1')
        g(f's_cbranch_vccnz {lp}')
        g('s_mov_b32 exec_hi, -1')
        g('v_permlane32_swap_b32 v16, v17')
        g('v_permlane32_swap_b32 v18, v19')
    else:
        g('v_permlane32_swap_b32 v16, v17')
        g('v_permlane32_swap_b32 v18, v19')
        g(f's_cbranch_vccnz {lp}')
    if stamp is not None:
        g.stamp(stamp)
    g(f'''
    v_add_f32 v16, v16, v17
    v_add_f32 v18, v18, v19
    s_nop 1
    v_permlane16_swap_b32 v16, v18
    v_add_f32 v16, v16, v18
    ''')
    if act:
        g('v_max_f32 v16, 0, v16')
        g('v_mul_f32 v16, v16, v16')
    g('v_cvt_pk_bf16_f32 v16, v16, v16')
    g(f'ds_write_b16 v{vlds}, v16 offset:{lds_off}')


def flag_poll(g, vaddr, soff, off=0):
    lp = g.lab('fp')
    g(f'{lp}:')
    if g.o.get('slp'):
        g(f's_sleep {g.o["slp"]}')
    g(f'buffer_load_dword v16, v{vaddr}, {SRD_WS}, {soff} offen offset:{off} sc1')
    spin_check(g)
    g(f"""
    s_waitcnt vmcnt(0)
    v_cmp_ne_u32 vcc, {S_EP}, v16
    s_nop 1
    s_and_b64 exec, exec, vcc
    s_cbranch_scc1 {lp}
    s_mov_b64 exec, -1
    """)


def sflag_issue(g, regs, base, stride, off=0):
    for k, r in enumerate(regs):
        g(f's_load_dword s{r}, {base}, {k*stride + off} glc')


def sflag_wait(g, regs, base, stride, off=0):
    lp = g.lab('sf')
    g(f's_branch {lp}_in')
    g(f'{lp}:')
    sflag_issue(g, regs, base, stride, off)
    spin_check(g)
    g(f'{lp}_in:')
    g(f's_mul_i32 {S_T0}, {S_EP}, {len(regs)}')
    g('s_waitcnt lgkmcnt(0)')
    for r in regs:
        g(f's_sub_u32 {S_T0}, {S_T0}, s{r}')
    g(f's_cmp_eq_u32 {S_T0}, 0')
    g(f's_cbranch_scc0 {lp}')


def gather32_ldsaddr(g, dst, base, bstride):
    g(f'''
    v_and_b32 v8, 1, v2
    v_lshl_add_u32 v8, v3, 1, v8
    v_lshrrev_b32 v9, 1, v2
    v_mul_u32_u24 v9, {bstride}, v9
    v_lshl_add_u32 v8, v8, 1, v9
    v_add_u32 v{dst}, {base}, v8
    ''')


def layernorm_loads(g, off_q):
    g(f'''
    v_lshrrev_b32 v8, 5, v0
    v_mul_u32_u24 v8, 1152, v8
    v_and_b32 v9, 31, v0
    v_lshl_add_u32 v8, v9, 4, v8
    v_cmp_gt_u32 vcc, 8, v9
    v_mov_b32 v9, 0x7fff0000
    s_nop 0
    v_cndmask_b32 v9, v9, v8, vcc
    s_waitcnt lgkmcnt(0)
    buffer_load_dwordx4 v[10:13], v8, {SRD_X}, 0 offen
    buffer_load_dwordx4 v[14:17], v8, {SRD_X}, 0 offen offset:512
    buffer_load_dwordx4 v[18:21], v9, {SRD_X}, 0 offen offset:1024
    buffer_load_dwordx4 v[22:25], v8, {SRD_X}, {off_q} offen
    ''')


def layernorm_stats(g):
    g(f's_mov_b32 {S_T1}, 0x3f803f80')
    g('v_mov_b32 v26, 0')
    g('v_mov_b32 v27, 0')
    for r in range(10, 22):
        g(f'v_dot2c_f32_bf16 v26, {S_T1}, v{r}')
        g(f'v_dot2c_f32_bf16 v27, v{r}, v{r}')
    g('s_nop 2')
    for k in (1, 2, 4, 8):
        g(f'v_add_f32_dpp v26, v26, v26 row_ror:{k} {DPPF}')
        g(f'v_add_f32_dpp v27, v27, v27 row_ror:{k} {DPPF}')
        g('s_nop 0')
    g(f'''
    v_mov_b32 v28, v26
    v_mov_b32 v29, v27
    s_nop 0
    v_permlane16_swap_b32 v26, v28
    v_permlane16_swap_b32 v27, v29
    v_add_f32 v26, v26, v28
    v_add_f32 v27, v27, v29
    v_mul_f32 v26, 0x{f2u(1.0/576):08x}, v26
    v_mul_f32 v27, 0x{f2u(1.0/576):08x}, v27
    v_fma_f32 v27, -v26, v26, v27
    v_max_f32 v27, 0, v27
    v_cvt_pk_bf16_f32 v26, v26, v27
    v_and_b32 v27, 0xffff0000, v26
    v_lshlrev_b32 v132, 16, v26
    v_add_f32 v27, 0x{f2u(1e-5):08x}, v27
    v_cvt_pk_bf16_f32 v27, v27, v27
    v_and_b32 v27, 0xffff0000, v27
    v_sqrt_f32 v27, v27
    s_nop 0
    v_cvt_pk_bf16_f32 v27, v27, v27
    v_and_b32 v27, 0xffff0000, v27
    v_rcp_f32 v133, v27
    ''')


def layernorm_addr(g, LX_XN):
    g(f'''
    v_lshrrev_b32 v8, 2, v0
    v_lshlrev_b32 v8, 6, v8
    v_and_b32 v9, 1, v0
    v_lshl_add_u32 v8, v9, 5, v8
    v_bfe_u32 v9, v0, 1, 1
    v_lshl_add_u32 v8, v9, 3, v8
    v_add_u32 v134, {LX_XN}, v8
    ''')


def layernorm_slice(g, r0, off8):
    for r in range(r0, r0 + 4):
        g(f'''
        v_lshlrev_b32 v28, 16, v{r}
        v_and_b32 v29, 0xffff0000, v{r}
        v_sub_f32 v28, v28, v132
        v_sub_f32 v29, v29, v132
        v_cvt_pk_bf16_f32 v29, v28, v29
        v_lshlrev_b32 v28, 16, v29
        v_and_b32 v29, 0xffff0000, v29
        v_mul_f32 v28, v28, v133
        v_mul_f32 v29, v29, v133
        v_cvt_pk_bf16_f32 v{r}, v28, v29
        ''')
    g(f'ds_write2_b64 v134, v[{r0}:{r0+1}], v[{r0+2}:{r0+3}] offset0:{off8} offset1:{off8+2}')


def alpha_addr(g, dst, tile_sgpr):
    g(f'''
    v_lshrrev_b32 v8, 2, v3
    v_bfe_u32 v9, v0, 1, 1
    v_lshl_add_u32 v9, {tile_sgpr}, 1, v9
    v_lshlrev_b32 v{dst}, 1, v8
    v_xor_b32 v9, v9, v{dst}
    v_lshlrev_b32 v9, 4, v9
    v_lshl_add_u32 v9, v8, 8, v9
    v_and_b32 v8, 1, v0
    v_lshl_add_u32 v9, v8, 3, v9
    v_mul_u32_u24 v8, 1152, v2
    v_add_u32 v{dst}, v8, v9
    ''')


def omega_src(g, dst, n, first_sgpr):
    g(f'''
    v_lshrrev_b32 v8, 3, v0
    v_lshl_add_u32 v8, {first_sgpr}, 3, v8
    v_mul_u32_u24 v8, 57, v8
    ''')
    for k in range(n):
        g(f'''
        v_bfe_u32 v9, v8, 10, 1
        v_bfe_u32 v{dst+k}, v8, 12, 1
        v_lshl_add_u32 v9, v{dst+k}, 1, v9
        v_lshlrev_b32 v9, 5, v9
        v_xor_b32 v{dst+k}, v9, v1
        ''')
        if k < n - 1:
            g('v_add_u32 v8, 456, v8')


def omega_addr(g, dst, cb=S_WAVE):
    g(f'''
    v_lshrrev_b32 v8, 2, v3
    v_lshl_add_u32 v9, v2, 3, v8
    v_mul_u32_u24 v9, 1152, v9
    v_lshl_add_u32 v9, {cb}, 7, v9
    v_and_b32 v{dst}, 3, v0
    v_lshl_add_u32 v9, v{dst}, 3, v9
    v_lshrrev_b32 v8, 1, v8
    v_and_b32 v{dst}, 1, v2
    v_lshl_add_u32 v8, v{dst}, 1, v8
    v_lshl_add_u32 v{dst}, v8, 5, v9
    v_xor_b32 v{dst+1}, 32, v{dst}
    v_xor_b32 v{dst+2}, 64, v{dst}
    v_xor_b32 v{dst+3}, 0x60, v{dst}
    ''')


def omega_reads(g, addr, dst, base):
    for t in range(4):
        g(f'ds_read_b64_tr_b16 {R(dst+4*t,2)}, v{addr+t} offset:{base}')
        g(f'ds_read_b64_tr_b16 {R(dst+4*t+2,2)}, v{addr+t} offset:{base+4608}')


def act_addr(g, dst, act):
    g(f'''
    v_and_b32 v8, 1, v0
    v_lshlrev_b32 v8, 6, v8
    v_lshl_add_u32 v8, v2, 4, v8
    v_add_u32 v{dst}, {act}, v8
    ''')


def omega_finish(g, aaddr, wregs, vaddr, soff, late=None):
    n = len(wregs)
    for k in range(n):
        g(f'ds_read_b128 {R(20+4*k)}, v{aaddr} offset:{128*k}')
    if late:
        late()
    g(f'''
    s_mov_b32 s98, 0xffff0000
    s_mov_b32 s99, 0xffff0000
    s_mov_b32 vcc_lo, 0
    s_mov_b32 vcc_hi, -1
    ''')
    g.stwait()
    for k in range(n):
        if not late:
            g(f's_waitcnt lgkmcnt({n-1-k})')
        elif k == 0:
            g('s_waitcnt lgkmcnt(9)')
        for t in range(4):
            if late and k == 1:
                g(f's_waitcnt lgkmcnt({6-2*t})')
            c = '0' if k == 0 else R(36 + 4 * t)
            g(f'{MF} {R(36+4*t)}, {R(20+4*k)}, {R(wregs[k]+4*t)}, {c}')
    g(f'''
    s_nop 5
    v_cndmask_b32 v36, v36, v40, {S_CMP}
    v_cndmask_b32 v37, v37, v41, {S_CMP}
    v_cndmask_b32 v44, v44, v48, {S_CMP}
    v_cndmask_b32 v45, v45, v49, {S_CMP}
    v_cndmask_b32 v36, v36, v44, vcc
    v_cndmask_b32 v37, v37, v45, vcc
    v_bfi_b32 v36, {S_MASK}, v36, v6
    v_bfi_b32 v37, {S_MASK}, v37, v6
    buffer_store_dwordx2 v[36:37], v{vaddr}, {SRD_WS}, {soff} offen sc1
    ''')


def h4_soff(g, prod):
    g(f'''
    s_mul_i32 {S_T3}, {prod}, 4608
    s_lshl_b32 {S_T4}, {S_WAVE}, 9
    s_add_u32 {S_T3}, {S_T3}, {S_T4}
    s_add_u32 {S_T3}, {S_T3}, {WS_H4}
    ''')


def phys_head(g, dst, x, k, tmp):
    hm = g.o.get('hmap', 4)
    if hm == 0:
        g(f's_lshl2_add_u32 {dst}, {x}, {k}')
    elif hm == 1:
        g(f's_lshl3_add_u32 {dst}, {k}, {x}')
    elif hm == 2:
        g(f"""
        s_and_b32 {tmp}, {k}, 1
        s_lshl1_add_u32 {dst}, {x}, {tmp}
        s_lshr_b32 {tmp}, {k}, 1
        s_lshl4_add_u32 {dst}, {tmp}, {dst}
        """)
    elif hm == 3:
        g(f"""
        s_and_b32 {tmp}, {x}, 3
        s_lshl2_add_u32 {dst}, {k}, {tmp}
        s_lshr_b32 {tmp}, {x}, 2
        s_lshl4_add_u32 {dst}, {tmp}, {dst}
        """)
    elif hm == 4:
        g(f"""
        s_add_u32 {tmp}, {x}, {k}
        s_and_b32 {tmp}, {tmp}, 7
        s_lshl3_add_u32 {dst}, {k}, {tmp}
        """)


def set_role(g, dk, ph_only=None):
    g(f's_lshr_b32 {S_T0}, s2, 5')
    if dk:
        g(f's_add_u32 {S_T0}, {S_T0}, {dk}')
        g(f's_and_b32 {S_T0}, {S_T0}, 3')
    g(f"""
    s_add_u32 {S_T1}, s2, {S_T0}
    s_and_b32 {S_T1}, {S_T1}, 7
    s_lshl3_add_u32 {S_PH}, {S_T0}, {S_T1}
    """)
    if not ph_only:
        g(f"""
        s_and_b32 {S_T1}, s2, 7
        s_lshl2_add_u32 {S_H}, {S_T1}, {S_T0}
        s_lshl2_add_u32 {S_CU}, {S_H}, {S_J}
        """)


def lane_consts(g):
    g(f'''
    v_lshrrev_b32 v1, 6, v0
    v_and_b32 v0, 63, v0
    v_readfirstlane_b32 {S_WAVE}, v1
    v_lshlrev_b32 v1, 4, v0
    v_lshrrev_b32 v2, 4, v0
    v_and_b32 v3, 15, v0
    ''')


def misc_consts(g):
    g(f'''
    s_mov_b32 {S_SPIN}, 0xfffff
    s_mov_b32 {S_MASK}, 0xfffff000
    s_mov_b32 {S_MASK2}, 0xfffefffe
    ''')


def make_tag(g):
    g(f'''
    s_add_u32 {S_EP}, {S_EP}, 1
    s_and_b32 {S_TAG}, {S_EP}, 0xfff
    s_andn2_b32 {S_TAG2}, {S_EP}, {S_MASK2}
    v_mov_b32 v6, {S_EP}
    ''')


def bias_prep(g, blk, va=62, SRD_C=SRD_C):
    g(f'''
    v_lshlrev_b32 v{va}, 2, v3
    s_lshl_b32 {S_T0}, {blk}, 6
    s_lshl_b32 {S_T1}, {blk}, 10
    s_add_u32 {S_T1}, {S_T1}, {WS_HF}
    buffer_load_dword v28, v{va}, {SRD_C}, {S_T0} offen
    ''')


def bias_unpack(g):
    g(f'''
    v_lshlrev_b32 v16, 16, v28
    v_lshlrev_b32 v17, 16, v28
    v_and_b32 v18, 0xffff0000, v28
    v_and_b32 v19, 0xffff0000, v28
    ''')


def gen(stamps=False, nt='nt', opts=None):
    g = G(stamps, nt, opts)
    o = g.o
    global WS_H1, WS_H2, WS_H3P, WS_HF
    WS_H1 = o.get('ah1', 0x10) << 12
    WS_H2 = o.get('ah2', 0x30) << 12
    WS_H3P = o.get('ah3p', 0x40) << 12
    WS_HF = o.get('ahf', 0x60) << 12
    hdr = open('cdna_kernels/' + NAME + '.s.ref').read().split('\n')
    for line in hdr:
        if line.startswith('; @launch'):
            break
        g.L.append(line)
    g.L.append(f'; @launch grid=(256,1,1) block=(576,1,1) lds={LDS_BYTES}')
    g.L.append('.amdgcn_target "amdgcn-amd-amdhsa--gfx950"')
    g.L.append('.text')
    g.L.append(f'.globl {NAME}_kernel')
    g.L.append('.p2align 12')
    g.L.append(f'.type {NAME}_kernel,@function')
    g.L.append(f'{NAME}_kernel:')
    LNW = o.get('lnw', 4)
    NT = lambda k, d=0: 'nt' if o.get(k, d) else ''
    g.stamp(0)
    if o.get('hold'):
        g('s_memrealtime s[92:93]')

    def clear_stamps(k0=2):
        if stamps:
            for k in range(k0, 16):
                g(f's_mov_b32 s{64+2*k}, 0')
    g(f"""
    s_cmp_ge_u32 s2, 128
    s_cselect_b32 s3, 16, 24
    s_load_dwordx2 s[20:21], s[0:1], s3
    s_load_dwordx2 s[16:17], s[0:1], 0
    s_load_dwordx2 s[12:13], s[0:1], 104
    s_cmp_ge_u32 s2, 256
    s_cbranch_scc1 L_EXIT
    """)
    lane_consts(g)
    g(f"""
    s_mov_b32 s11, 0x20000
    s_mov_b32 s23, s11
    s_mov_b32 s19, s11
    s_movk_i32 s18, 2304
    s_mov_b32 s15, s11
    s_mov_b32 s14, {WS_SIZE}
    v_lshlrev_b32 v8, 1, v2
    v_xor_b32 v8, v8, v3
    v_lshlrev_b32 v135, 4, v8
    s_mov_b32 {S_T3}, 32768
    s_cmp_ge_u32 s2, 128
    s_cbranch_scc0 L_X
    """)
    cnt = 'nt' if o.get('cnt') else ''
    g(f"""
    s_load_dwordx2 s[8:9], s[0:1], 8
    s_mov_b32 s22, {576*8192}
    s_bfe_u32 {S_T0}, s2, 0x20003
    s_bfe_u32 {S_J}, s2, 0x20005
    s_add_u32 {S_T1}, s2, {S_T0}
    s_and_b32 {S_T1}, {S_T1}, 7
    s_lshl3_add_u32 {S_T1}, {S_T0}, {S_T1}
    v_lshl_add_u32 v4, v2, 13, v135
    s_mul_i32 {S_OFF}, {S_J}, 9
    s_add_u32 {S_OFF}, {S_OFF}, {S_WAVE}
    s_lshl_b32 {S_OFF}, {S_OFF}, 9
    s_add_u32 {S_OFF}, {S_OFF}, {S_T1}
    s_lshl_b32 {S_OFF}, {S_OFF}, 8
    s_mul_i32 {S_T2}, {S_WAVE}, 4608
    s_add_u32 m0, {S_T2}, {LY_WQ}
    s_cmp_eq_u32 {S_WAVE}, {LNW}
    s_cbranch_scc0 L_Y_nox
    s_mul_i32 {S_T1}, {S_J}, 288
    """)
    layernorm_loads(g, S_T1)
    g('L_Y_nox:')
    g('s_waitcnt lgkmcnt(0)')
    for u in range(4):
        g(f'buffer_load_dwordx4 v4, {SRD_B}, {S_OFF} offen {NT("qnt", 1)} lds')
        if u < 3:
            g('s_addk_i32 m0, 1152')
            g(f's_add_u32 {S_OFF}, {S_OFF}, {S_T3}')
    g('s_branch L_Y2')
    g('L_X:')
    r1, r2, r3 = 0, o.get('r2', 1), o.get('r3', 2)
    g(f"""
    s_cmp_eq_u32 {S_WAVE}, 0
    s_cbranch_scc0 L_nopf
    s_getpc_b64 {S_PC}
    s_bfe_u32 {S_T0}, s2, 0x20003
    s_mul_i32 {S_T0}, {S_T0}, 3456
    v_lshl_add_u32 v8, v0, 7, {S_T0}
    s_mov_b64 exec, 0x7ffffff
    global_load_dword v30, v8, {S_PC} offset:512
    s_mov_b64 exec, -1
    L_nopf:
    s_mov_b32 s22, {512*8192}
    s_bfe_u32 {S_J}, s2, 0x20003
    """)
    set_role(g, 0)
    g(f"""
    v_lshlrev_b32 v8, 2, v2
    v_xor_b32 v8, v8, v3
    v_lshlrev_b32 v8, 4, v8
    v_lshl_add_u32 v5, v2, 13, v8
    s_lshl3_add_u32 {S_T0}, {S_J}, {S_WAVE}
    s_lshl_b32 {S_T0}, {S_T0}, 9
    s_add_u32 {S_T0}, {S_T0}, {S_PH}
    s_lshl_b32 {S_OFF}, {S_T0}, 8
    s_mul_i32 {S_T0}, {S_WAVE}, 4160
    s_add_u32 m0, {S_T0}, {LX_WUK}
    """)
    xq = o.get('xq', 64)
    if xq:
        g(f"""
        s_cmp_lt_u32 {S_WAVE}, {xq//32}
        s_cbranch_scc0 L_X_noq
        s_load_dwordx2 s[8:9], s[0:1], 16
        s_mov_b32 s10, {576*8192}
        s_add_u32 {S_T1}, s2, {S_J}
        s_and_b32 {S_T1}, {S_T1}, 7
        s_lshl3_add_u32 {S_T1}, {S_J}, {S_T1}
        s_lshr_b32 {S_T0}, s2, 5
        s_mul_i32 {S_T0}, {S_T0}, 144
        s_lshl_b32 {S_T2}, {S_WAVE}, 5
        s_sub_u32 {S_T0}, {S_T0}, {S_T2}
        s_add_u32 {S_T0}, {S_T0}, 112
        s_lshl_b32 {S_T0}, {S_T0}, 5
        s_add_u32 {S_T0}, {S_T0}, {S_T1}
        s_lshl_b32 {S_T0}, {S_T0}, 8
        v_lshrrev_b32 v8, 1, v0
        v_and_b32 v9, 1, v0
        v_lshlrev_b32 v9, 7, v9
        v_lshl_add_u32 v8, v8, 13, v9
        s_waitcnt lgkmcnt(0)
        buffer_load_dword v31, v8, {SRD_A}, {S_T0} offen
        L_X_noq:
        """)
    g(f"""
    s_cmp_eq_u32 {S_WAVE}, 8
    s_waitcnt lgkmcnt(0)
    s_cbranch_scc1 L_X2
    """)
    xp = str(o.get('xp', '0'))
    for u in range(4):
        g(f'buffer_load_dwordx4 v5, {SRD_B}, {S_OFF} offen {NT("knt", 1)} lds')
        if u < len(xp) and xp[u] != '9':
            if o.get('xpc', 1):
                g(f's_and_b32 {S_T0}, {S_PH}, 3')
                g(f's_cmp_eq_u32 {S_T0}, 1')
                g(f's_cbranch_scc1 L_X_np{u}')
            g(f's_waitcnt vmcnt({xp[u]})')
            g(f'L_X_np{u}:')
        if u < 3:
            g('s_addk_i32 m0, 1040')
            g(f's_add_u32 {S_OFF}, {S_OFF}, {S_T3}')
    g('L_X2:')
    g.stamp(1)
    clear_stamps()
    post = []
    g(f's_load_dword {S_EP}, s[12:13], 0')
    g('s_load_dwordx2 s[8:9], s[0:1], 64')
    g('s_movk_i32 s10, 9216')
    post += srd(g, SRD_C, 32, 512 * 8192)
    post += srd(g, SRD_W1, 56, 0 if o.get('now1') else 576 * 9216)
    post += srd(g, SRD_O, 72, 4608 * 1152)
    post += srd(g, SRD_B2, 80, 1152)
    post += srd(g, SRD_OUT, 88, 2304)
    for p in post:
        g(p)
    misc_consts(g)
    g(f"""
    s_and_b32 {S_Y}, s2, 31
    s_mul_i32 {S_CG}, {S_Y}, 43
    s_lshr_b32 {S_CG}, {S_CG}, 7
    s_mul_i32 {S_RS}, {S_CG}, 3
    s_sub_u32 {S_RS}, {S_Y}, {S_RS}
    s_add_u32 {S_SPLIT}, {S_PH}, {r3}
    s_and_b32 {S_SPLIT}, {S_SPLIT}, 3
    s_lshl2_add_u32 {S_CG}, {S_CG}, {S_SPLIT}
    s_lshl2_add_u32 {S_SPLIT}, {S_SPLIT}, {S_Y}
    s_add_u32 {S_SPLIT}, {S_SPLIT}, 101
    v_lshlrev_b32 v136, 3, v0
    s_cmp_eq_u32 {S_WAVE}, 8
    s_cbranch_scc1 L_X_w8
    s_waitcnt lgkmcnt(0)
    """)
    make_tag(g)
    g(f"""
    s_cmp_lt_u32 {S_WAVE}, 4
    s_cbranch_scc0 L_X_h1
    """)
    g(f"""
    v_lshrrev_b32 v8, 2, v3
    v_mul_u32_u24 v8, 2080, v8
    v_and_b32 v9, 3, v0
    v_lshl_add_u32 v8, v9, 8, v8
    v_lshl_add_u32 v8, v2, 4, v8
    s_mul_i32 {S_T0}, {S_WAVE}, 8320
    s_add_u32 {S_T0}, {S_T0}, {LX_WUK}
    v_add_u32 v8, {S_T0}, v8
    v_lshlrev_b32 v9, 6, v9
    v_add_u32 v56, v8, v9
    v_xor_b32 v57, 64, v9
    v_add_u32 v57, v8, v57
    v_xor_b32 v58, 0x80, v9
    v_add_u32 v58, v8, v58
    v_xor_b32 v59, 0xc0, v9
    v_add_u32 v59, v8, v59
    v_and_b32 v8, 1, v0
    v_mul_u32_u24 v9, 272, v8
    v_lshl_add_u32 v9, v2, 4, v9
    v_add_u32 v61, {LX_QP}, v9
    v_lshlrev_b32 v8, 15, v8
    v_lshl_add_u32 v62, v2, 4, v8
    s_lshl2_add_u32 {S_T2}, {S_CU}, {S_WAVE}
    s_lshl_b32 {S_T2}, {S_T2}, 6
    s_add_u32 {S_T2}, {S_T2}, {WS_H2}
    s_mov_b32 s48, 0x00030003
    s_mov_b32 s49, 0x00030003
    """)
    set_role(g, r2)
    g(f"""
    v_lshl_add_u32 v4, v2, 17, v135
    s_lshl_b32 {S_OFF}, {S_J}, 5
    s_add_u32 {S_OFF}, {S_OFF}, {S_WAVE}
    s_lshl_b32 {S_OFF}, {S_OFF}, 7
    s_add_u32 {S_OFF}, {S_OFF}, {S_PH}
    s_lshl_b32 {S_OFF}, {S_OFF}, 8
    s_mul_i32 {S_T0}, {S_WAVE}, 9216
    s_add_u32 m0, {S_T0}, {LX_WUV}
    s_nop 0
    """)
    ne0 = o.get('ne0', 0)

    def wuv_dma(a, b):
        for u in range(a, b):
            g(f'buffer_load_dwordx4 v4, {SRD_C}, {S_OFF} offen {NT("x2nt", 1)} lds')
            if u < 7:
                g('s_addk_i32 m0, 1152')
                g(f's_add_u32 {S_OFF}, {S_OFF}, {61*8192 if u == 3 else 8192}')
    if ne0:
        g('s_waitcnt vmcnt(0)')
    wuv_dma(0, ne0)
    g(f's_waitcnt vmcnt({ne0})')
    g('s_barrier')
    areg = lambda s, t: 64 + 8 * s + 4 * t
    for s in range(4):
        for t in range(2):
            g(f'ds_read_b128 {R(areg(s,t))}, v{56+s} offset:{t*1040}')
    g.stwait()
    g('s_barrier')
    for s in range(4):
        g(f'ds_read_b128 {R(36+4*s)}, v61 offset:{s*64}')
    for s in range(4):
        g(f's_waitcnt lgkmcnt({3-s})')
        for t in range(2):
            c = '0' if s == 0 else R(20 + 4 * t)
            g(f'{MF} {R(20+4*t)}, {R(areg(s,t))}, {R(36+4*s)}, {c}')
    g(f"""
    s_nop 5
    s_mov_b64 exec, {S_EXC}
    v_cvt_pk_bf16_f32 v16, v20, v21
    v_cvt_pk_bf16_f32 v17, v22, v23
    v_cvt_pk_bf16_f32 v18, v24, v25
    v_cvt_pk_bf16_f32 v19, v26, v27
    """)
    for r in range(4):
        g(f'v_bfi_b32 v{16+r}, {S_MASK2}, v{16+r}, v6')
    g(f"""
    buffer_store_dwordx4 v[16:19], v62, {SRD_WS}, {S_T2} offen sc1
    s_mov_b64 exec, -1
    """)
    g.stamp(5)
    op = str(o.get('op', '0')).replace('x', '')
    for k, dch in enumerate(op):
        wuv_dma(ne0 + k, ne0 + k + 1)
        if dch != '9':
            opc = o.get('opc', 2)
            if opc:
                g(f's_and_b32 {S_T0}, {S_CG}, 3')
                g(f's_lshr_b32 {S_T0}, {opc}, {S_T0}')
                g(f's_and_b32 {S_T0}, {S_T0}, 1')
                g(f's_cbranch_scc1 L_X_nop{k}')
            g(f's_waitcnt vmcnt({dch})')
            g(f'L_X_nop{k}:')
    g('s_barrier')
    wuv_dma(ne0 + len(op), 8)
    g.stamp(6)
    g(f's_lshl_b32 {S_T0}, {S_WAVE}, 1')
    alpha_addr(g, 56, S_T0)
    g(f"""
    v_add_u32 v56, {LX_WUV}, v56
    v_xor_b32 v57, 32, v56
    s_lshl2_add_u32 {S_T4}, {S_H}, {S_WAVE}
    s_lshl2_add_u32 {S_T4}, {S_T4}, {S_J}
    s_lshl_b32 {S_T4}, {S_T4}, 8
    s_add_u32 {S_T4}, {S_T4}, {WS_H3P}
    v_and_b32 v8, 3, v0
    v_mul_u32_u24 v9, 272, v8
    v_lshl_add_u32 v9, v2, 4, v9
    v_add_u32 v60, {LX_CC}, v9
    s_and_b32 {S_B}, {S_WAVE}, 1
    s_lshr_b32 {S_HG}, {S_WAVE}, 1
    s_lshl1_add_u32 {S_B}, {S_B}, {S_HG}
    s_lshl2_add_u32 {S_T1}, {S_CU}, {S_B}
    s_lshl_b32 {S_T1}, {S_T1}, 12
    s_add_u32 {S_T1}, {S_T1}, {WS_H3}
    s_lshl_b32 {S_T0}, {S_B}, 6
    s_add_u32 {S_T0}, {S_T0}, {LX_WT}
    v_lshl_add_u32 v62, v2, 4, {S_T0}
    v_lshlrev_b32 v8, 4, v3
    v_lshl_add_u32 v96, v2, 10, v8
    v_lshl_add_u32 v8, v2, 3, v8
    s_mul_i32 {S_T5}, {S_WAVE}, 272
    s_add_u32 {S_T5}, {S_T5}, {LX_CC}
    v_add_u32 v97, {S_T5}, v8
    v_and_b32 v8, 1, v0
    v_lshlrev_b32 v8, 4, v8
    v_mov_b32 v9, 0xffff
    v_lshlrev_b32 v9, v8, v9
    """)
    for t in range(4):
        m = (3 << (2 * t)) * 0x01010101
        g(f's_mov_b32 vcc_lo, 0x{m:08x}')
        g(f's_mov_b32 vcc_hi, 0x{m:08x}')
        g(f'v_cndmask_b32 v{100+t}, 0, v9, vcc')
    mgate = o.get('mgate', 0)
    XR = [8, 9, 10, 20, 21, 22, 23, 28, 29, 30, 31, 60, 61, 62, 63, 96]
    if mgate:
        g(f"""
        s_lshr_b32 {S_T0}, {S_H}, 4
        s_lshl2_add_u32 {S_T0}, {S_T0}, {S_B}
        s_lshl_b32 {S_T0}, {S_T0}, 12
        s_and_b32 {S_T2}, {S_H}, 15
        s_lshl4_add_u32 {S_T0}, {S_T2}, {S_T0}
        s_add_u32 {S_T0}, {S_T0}, {WS_M + 8}
        s_add_u32 s54, s12, {S_T0}
        s_addc_u32 s55, s13, 0
        """)
    g('s_barrier')
    f1e = 1
    nxw = 0
    if f1e:
        g(f's_waitcnt vmcnt({nxw})')
        g('s_barrier')
        g.stamp(7)

    def h3_loads():
        for u in range(4):
            g(f'buffer_load_dwordx4 {R(36+4*u)}, v96, {SRD_WS}, {S_T1} offen offset:{u*256} sc1')
    if mgate:
        sflag_issue(g, XR, S_PC, 256)
        sflag_wait(g, XR, S_PC, 256)
    else:
        g('s_barrier')
    h3_loads()
    g.stamp(8)
    g('s_waitcnt vmcnt(4)')
    g('s_barrier')
    g('ds_read_b128 v[20:23], v62')
    for s in range(4):
        for t in range(2):
            g(f'ds_read_b64_tr_b16 {R(64+8*s+4*t,2)}, v{56+t} offset:{s*9216}')
            g(f'ds_read_b64_tr_b16 {R(66+8*s+4*t,2)}, v{56+t} offset:{s*9216+4608}')
    g.stwait()
    g('s_waitcnt lgkmcnt(15)')
    for u in range(4):
        for t in range(4):
            g(f'v_and_b32 v{104+4*u+t}, v{20+u}, v{100+t}')
    lp = g.lab('h3')
    lp2 = g.lab('h3in')
    g(f's_branch {lp2}')
    g(f'{lp}:')
    h3_loads()
    spin_check(g)
    g(f'{lp2}:')
    for u in range(4):
        g(f's_waitcnt vmcnt({3-u})')
        for r in range(4):
            g(f'v_xor_b32 v{36+4*u+r}, {S_TAG2}, v{36+4*u+r}')
        or_chain(g, 8, range(36 + 4 * u, 40 + 4 * u), u == 0)
        c = '0' if u == 0 else R(12)
        g(f'{MF} {R(12)}, {R(104+4*u)}, {R(36+4*u)}, {c}')
    g(f"""
    v_and_b32 v8, 0x10001, v8
    v_cmp_ne_u32 vcc, 0, v8
    s_nop 3
    s_cbranch_vccnz {lp}
    s_mov_b32 exec_hi, 0
    v_cvt_pk_bf16_f32 v12, v12, v13
    v_cvt_pk_bf16_f32 v13, v14, v15
    ds_write_b64 v97, v[12:13]
    s_mov_b32 exec_hi, -1
    """)
    g.stamp(9)
    g('s_waitcnt lgkmcnt(0)')
    g('s_barrier')
    for s in range(4):
        g(f'ds_read_b128 {R(36+4*s)}, v60 offset:{s*64}')
    g('s_mov_b32 vcc_lo, 0xffff0000')
    g('s_mov_b32 vcc_hi, 0')
    for s in range(4):
        g(f's_waitcnt lgkmcnt({3-s})')
        for t in range(2):
            c = '0' if s == 0 else R(12 + 4 * t)
            g(f'{MF} {R(12+4*t)}, {R(36+4*s)}, {R(64+8*s+4*t)}, {c}')
    g(f"""
    s_nop 5
    s_mov_b32 exec_hi, 0
    v_add_f32 v12, v12, v14
    v_add_f32 v13, v13, v15
    v_add_f32 v16, v16, v18
    v_add_f32 v17, v17, v19
    v_cndmask_b32 v12, v12, v16, vcc
    v_cndmask_b32 v13, v13, v17, vcc
    v_bfi_b32 v12, {S_MASK}, v12, v6
    v_bfi_b32 v13, {S_MASK}, v13, v6
    buffer_store_dwordx2 v[12:13], v136, {SRD_WS}, {S_T4} offen {'sc1' if o.get('noloc3') else ''}
    """)
    g.stamp(10)
    if o.get('one', 0):
        for k in range(o.get('rb', 2)):
            g('s_waitcnt vmcnt(0)')
            g(f'buffer_load_dwordx2 v[12:13], v136, {SRD_WS}, {S_T4} offen sc1')
        g('s_waitcnt vmcnt(0)')
    else:
        g(f's_or_b32 {S_T4}, {S_T4}, {WS_SLOW}')
    if not o.get('noloc3'):
        g(f'buffer_store_dwordx2 v[12:13], v136, {SRD_WS}, {S_T4} offen sc1')
    g('s_mov_b32 exec_hi, -1')
    g('s_branch L_X_post')
    g('L_X_h1:')
    f2pos = o.get('f2pos', 4)
    ne = o.get('ne', 0)
    flag_regs = f"""
    v_mov_b32 v32, v6
    v_mov_b32 v33, v6
    v_mov_b32 v34, v6
    v_mov_b32 v35, v6
    s_lshl_b32 {S_T4}, {S_CU}, 7
    s_add_u32 {S_T4}, {S_T4}, {WS_F2}
    """
    fl = f"""
    s_mov_b64 exec, 0xff
    buffer_store_dwordx4 v[32:35], v1, {SRD_WS}, {S_T4} offen sc1
    s_mov_b64 exec, -1
    """
    gather32_ldsaddr(g, 60, LX_QP - 256, 272)
    g(f"""
    v_lshl_add_u32 v60, {S_WAVE}, 6, v60
    v_lshlrev_b32 v8, 4, v3
    v_lshl_add_u32 v61, v2, 10, v8
    s_lshl4_add_u32 {S_T2}, {S_H}, {S_WAVE}
    s_lshl_b32 {S_T2}, {S_T2}, 8
    s_add_u32 {S_T2}, {S_T2}, {WS_H1 - 1024}
    s_sub_u32 {S_T5}, {S_WAVE}, 4
    s_mul_i32 {S_T0}, {S_T5}, 9
    """)
    omega_src(g, 64, 9, S_T0)
    g(f"""
    v_mul_u32_u24 v9, 9216, v2
    v_add_u32 v5, v135, v9
    s_cmp_lt_u32 {S_Y}, 27
    s_cbranch_scc1 L_X_a1
    s_lshl_b32 m0, {S_T0}, 10
    s_mul_i32 {S_OFF}, {S_SPLIT}, 36864
    s_add_u32 {S_OFF}, {S_OFF}, m0
    s_branch L_X_a2
    L_X_a1:
    s_mul_i32 {S_OFF}, {S_RS}, 48
    s_add_u32 {S_OFF}, {S_OFF}, {S_T5}
    s_mul_i32 {S_OFF}, {S_OFF}, {4*9216}
    s_lshl_b32 {S_T0}, {S_CG}, 8
    s_add_u32 {S_OFF}, {S_OFF}, {S_T0}
    s_mul_i32 m0, {S_T5}, 1152
    s_mov_b32 {S_T3}, {16*9216}
    L_X_a2:
    """)
    g(f"""
    v_and_b32 v8, 1, v0
    v_lshlrev_b32 v9, 9, v8
    v_lshl_add_u32 v10, v2, 4, v9
    v_add_u32 v10, {LX_XN}, v10
    s_waitcnt vmcnt(0)
    s_barrier
    """)
    g.stamp(12)
    gather32(g, 61, S_T2, 60, stamp=4, dual=True)
    g(f"""
    s_cmp_lt_u32 {S_Y}, 27
    s_waitcnt lgkmcnt(0)
    s_barrier
    s_cbranch_scc0 L_X_nof1
    """)
    for u in range(12):
        if u == ne:
            g('s_barrier')
        g(f'buffer_load_dwordx4 v5, {SRD_W1}, {S_OFF} offen {NT("x2nt", 1)} lds')
        if u < 11:
            g('s_addk_i32 m0, 4608')
            g(f's_add_u32 {S_OFF}, {S_OFF}, {S_T3}')
    g('s_barrier')
    g.stamp(6)
    g(f's_lshl_b32 {S_T0}, {S_T5}, 1')
    alpha_addr(g, 56, S_T0)
    for s in range(6):
        g(f'ds_read_b128 {R(140+4*s)}, v10 offset:{64*s}')
    g(f"""
    v_xor_b32 v57, 32, v56
    s_lshl2_add_u32 {S_T2}, {S_CG}, {S_T5}
    s_lshl2_add_u32 {S_T2}, {S_T2}, {S_RS}
    s_lshl_b32 {S_T2}, {S_T2}, 8
    s_add_u32 {S_T2}, {S_T2}, {WS_HF}
    """)
    if stamps and o.get('st7', 0):
        g('s_waitcnt vmcnt(0)')
        g.stamp(7)
    if not f1e:
        g('s_barrier')
    g('s_waitcnt vmcnt(0)')
    g('s_barrier')
    for s in range(6):
        for t in range(2):
            g(f'ds_read_b64_tr_b16 {R(80+8*s+4*t,2)}, v{56+t} offset:{s*9216}')
            g(f'ds_read_b64_tr_b16 {R(82+8*s+4*t,2)}, v{56+t} offset:{s*9216+4608}')
    f1pos = o.get('f1pos', 0)
    if f1pos == 1:
        g('s_barrier')
    g.stwait()
    for s in range(6):
        g(f's_waitcnt lgkmcnt({min(15, 20-4*s)})')
        for t in range(2):
            c = '0' if s == 0 else R(12 + 4 * t)
            g(f'{MF} {R(12+4*t)}, {R(140+4*s)}, {R(80+8*s+4*t)}, {c}')
    g(f"""
    s_mov_b32 vcc_lo, 0xffff0000
    s_mov_b32 vcc_hi, 0
    s_nop 4
    s_mov_b32 exec_hi, 0
    v_cndmask_b32 v12, v12, v16, vcc
    v_cndmask_b32 v13, v13, v17, vcc
    v_bfi_b32 v12, {S_MASK}, v12, v6
    v_bfi_b32 v13, {S_MASK}, v13, v6
    buffer_store_dwordx2 v[12:13], v136, {SRD_WS}, {S_T2} offen sc1
    s_mov_b32 exec_hi, -1
    """)
    g.stamp(11)
    if f1e:
        g('s_barrier')
        g('s_barrier')
    if f1pos == 0:
        g('s_barrier')
    g('s_branch L_X_post')
    g('L_X_nof1:')
    g(f"""
    s_cmp_lt_u32 {S_Y}, 31
    s_cbranch_scc0 L_EXIT
    L_X_f2s:
    """)
    for u in range(9):
        if u == ne:
            g('s_barrier')
        g(f'buffer_load_dwordx4 v{64+u}, {SRD_O}, {S_OFF} offen offset:{(u&3)*1024} {NT("x2nt", 1)} lds')
        if u & 3 == 3:
            g('s_addk_i32 m0, 4096')
            g(f's_addk_i32 {S_OFF}, 4096')

    def f2x_prep(nb):
        g(f's_lshl_b32 {S_CG}, {S_T5}, 1')
        omega_addr(g, 56, S_CG)
        for k in range(nb):
            omega_reads(g, 56, 80 + 16 * k, LX_WO + 128 * k)
        bias_prep(g, S_SPLIT, 63, SRD_A)
        g(f's_mov_b32 {S_RS}, {S_T1}')
        act_addr(g, 61, LX_ACT)
        gather32_ldsaddr(g, 60, LX_ACT, 64)
        g(f"""
        v_lshl_add_u32 v60, {S_T5}, 7, v60
        v_lshl_add_u32 v61, {S_T5}, 7, v61
        s_mul_i32 {S_T3}, {S_SPLIT}, 4608
        s_lshl_b32 {S_T4}, {S_T5}, 10
        s_add_u32 {S_T3}, {S_T3}, {S_T4}
        s_add_u32 {S_T3}, {S_T3}, {WS_H4}
        s_mov_b32 s98, 0xffff0000
        s_mov_b32 s99, 0xffff0000
        s_mov_b32 s48, 0
        s_mov_b32 s49, -1
        """)

    def f2x_run(nb):
        g('s_waitcnt vmcnt(0)')
        bias_unpack(g)
        gather32(g, 1, S_RS, 60, act=True, pre=lambda: g('s_barrier'))
        g('ds_read_b128 v[20:23], v61')
        g('s_waitcnt lgkmcnt(0)')
        for k in range(nb):
            for t in range(4):
                g(f'{MF} {R(112+16*k+4*t)}, {R(20)}, {R(80+16*k+4*t)}, 0')
        g('s_nop 7')
        for k in range(nb):
            a = 112 + 16 * k
            g(f"""
            v_cndmask_b32 v{a}, v{a}, v{a+4}, {S_CMP}
            v_cndmask_b32 v{a+1}, v{a+1}, v{a+5}, {S_CMP}
            v_cndmask_b32 v{a+8}, v{a+8}, v{a+12}, {S_CMP}
            v_cndmask_b32 v{a+9}, v{a+9}, v{a+13}, {S_CMP}
            v_cndmask_b32 v{a}, v{a}, v{a+8}, {S_EXC}
            v_cndmask_b32 v{a+1}, v{a+1}, v{a+9}, {S_EXC}
            v_bfi_b32 v{a}, {S_MASK}, v{a}, v6
            v_bfi_b32 v{a+1}, {S_MASK}, v{a+1}, v6
            buffer_store_dwordx2 v[{a}:{a+1}], v55, {SRD_WS}, {S_T3} offen offset:{512*k} sc1
            """)
        g.stamp(12)
        g('s_branch L_END')
    g(f"""
    v_mov_b32 v55, v136
    s_barrier
    s_waitcnt vmcnt(0)
    s_barrier
    """)
    f2x_prep(2)
    g('s_barrier')
    g('s_barrier')
    f2x_run(2)
    g('L_X_w8:')
    g(f"""
    s_and_b32 {S_T0}, s2, 7
    s_lshr_b32 {S_T1}, s2, 3
    s_lshl4_add_u32 {S_T0}, {S_T0}, {S_T1}
    s_lshl_b32 {S_T0}, {S_T0}, 10
    s_add_u32 {S_T1}, {S_T0}, {WS_H1}
    buffer_load_dwordx4 v[40:43], v1, {SRD_WS}, {S_T1} offen sc1
    s_add_u32 {S_T1}, {S_T0}, {WS_H3P}
    buffer_load_dwordx4 v[40:43], v1, {SRD_WS}, {S_T1} offen sc1
    s_lshl_b32 {S_T0}, s2, 10
    s_add_u32 {S_T1}, {S_T0}, {WS_HF}
    buffer_load_dwordx4 v[40:43], v1, {SRD_WS}, {S_T1} offen sc1
    """)
    if o.get('ptf2', 1) and o.get('gate2', 0):
        g(f"""
        s_lshr_b32 {S_T0}, s2, 3
        s_lshl_b32 {S_T0}, {S_T0}, 10
        s_add_u32 {S_T1}, {S_T0}, {WS_F2}
        buffer_load_dwordx4 v[40:43], v1, {SRD_WS}, {S_T1} offen sc1
        """)
    pt4 = o.get('pt4', 3)

    def touch4():
        g(f"""
        s_lshr_b32 {S_T0}, s2, 3
        s_mul_i32 {S_T0}, {S_T0}, {9*4608}
        s_add_u32 {S_T0}, {S_T0}, {WS_H4}
        s_and_b32 {S_T1}, s2, 7
        v_mul_u32_u24 v8, 52, v0
        v_lshrrev_b32 v8, 8, v8
        v_mul_u32_u24 v9, 5, v8
        v_sub_u32 v9, v0, v9
        v_lshl_add_u32 v9, v9, 3, {S_T1}
        v_cmp_gt_u32 vcc, 36, v9
        v_mul_u32_u24 v8, 4608, v8
        v_lshl_add_u32 v8, v9, 7, v8
        s_and_b32 exec_hi, vcc_hi, 0x1fff
        s_mov_b32 exec_lo, vcc_lo
        buffer_load_dword v45, v8, {SRD_WS}, {S_T0} offen sc1
        s_mov_b64 exec, -1
        """)
    if pt4 == 1:
        touch4()
    g(f's_mul_i32 {S_T1}, {S_RS}, 384')
    layernorm_loads(g, S_T1)
    make_tag(g)
    g(flag_regs)
    set_role(g, r2)
    layernorm_addr(g, LX_XN)
    g(f"""
    v_lshlrev_b32 v62, 8, v0
    s_lshr_b32 {S_T2}, {S_H}, 4
    s_lshl_b32 {S_T2}, {S_T2}, 14
    s_and_b32 {S_T1}, {S_H}, 15
    s_lshl4_add_u32 {S_T2}, {S_T1}, {S_T2}
    s_add_u32 {S_T2}, {S_T2}, {WS_M}
    """)
    if o.get('ptm', 1):
        g(f"""
        s_lshr_b32 {S_T0}, s2, 1
        s_and_b32 {S_T0}, {S_T0}, 60
        s_lshl_b64 exec, 15, {S_T0}
        buffer_load_dword v44, v62, {SRD_WS}, {S_T2} offen sc1
        s_mov_b64 exec, -1
        """)
    g(f"""
    s_waitcnt vmcnt(0)
    """)
    g('s_barrier')
    if f2pos == 1:
        g(fl)
    g('s_barrier')
    if pt4 == 3:
        touch4()
    if f2pos == 2:
        g(fl)
    g('s_barrier')
    if f2pos == 3:
        g(fl)
    if pt4 == 2:
        touch4()
    layernorm_stats(g)
    layernorm_slice(g, 22, 0)
    g('s_waitcnt lgkmcnt(0)')
    g('s_barrier')
    g('s_barrier')
    g(f"""
    v_mov_b32 v55, v136
    s_mov_b32 {S_T5}, 4
    s_sub_u32 {S_T0}, {S_Y}, 27
    s_cmp_lt_u32 {S_T0}, 4
    s_cbranch_scc0 L_X_w8n
    """)
    f2x_prep(1)
    g('L_X_w8n:')
    g('s_setprio 3')
    mls = o.get('mls', 8)
    if mls:
        if o.get('ml1', 1):
            g(f'''
            buffer_load_dwordx3 v[16:18], v62, {SRD_WS}, {S_T2} offen sc1
            s_waitcnt vmcnt(0)
            v_cmp_ne_u32 vcc, {S_EP}, v18
            s_nop 1
            s_cbranch_vccz L_X_mlok
            ''')
        lp = g.lab('ml0')
        m = 0
        for k in range(mls):
            m |= 1 << (k * (64 // mls))
        g(f'''
        s_lshr_b32 {S_T0}, s2, 3
        s_mul_i32 {S_T0}, {S_T0}, 5
        s_and_b32 {S_T0}, {S_T0}, {64 // mls - 1}
        s_mov_b32 exec_lo, 0x{m & 0xffffffff:x}
        s_mov_b32 exec_hi, 0x{m >> 32:x}
        s_lshl_b64 exec, exec, {S_T0}
        {lp}:
        buffer_load_dword v18, v62, {SRD_WS}, {S_T2} offen offset:8 sc1
        ''')
        spin_check(g)
        g(f'''
        s_waitcnt vmcnt(0)
        v_cmp_ne_u32 vcc, {S_EP}, v18
        s_nop 1
        s_cbranch_vccnz {lp}
        s_mov_b64 exec, -1
        ''')
    lp = g.lab('ml')
    g(f'''
    {lp}:
    {'s_sleep ' + str(o['slp']) if o.get('slp') else ''}
    buffer_load_dwordx3 v[16:18], v62, {SRD_WS}, {S_T2} offen sc1
    ''')
    spin_check(g)
    g(f'''
    s_waitcnt vmcnt(0)
    v_cmp_ne_u32 vcc, {S_EP}, v18
    s_nop 1
    s_and_b64 exec, exec, vcc
    s_cbranch_scc1 {lp}
    L_X_mlok:
    {'' if mgate else 's_barrier'}
    s_mov_b64 exec, -1
    v_max_f32_dpp v20, v16, v16 row_ror:1 {DPPF}
    v_lshlrev_b32 v8, 2, v0
    v_add_u32 v8, {LX_WT}, v8
    v_max_f32_dpp v20, v20, v20 row_ror:2 {DPPF}
    s_nop 1
    v_max_f32_dpp v20, v20, v20 row_ror:4 {DPPF}
    s_nop 1
    v_max_f32_dpp v21, v20, v20 row_ror:8 {DPPF}
    v_max_f32_dpp v20, v20, v20 row_ror:8 {DPPF}
    s_nop 1
    v_permlane16_swap_b32 v20, v21
    v_max_f32 v20, v20, v21
    v_sub_f32 v16, v16, v20
    v_exp_f32 v16, v16
    s_nop 0
    v_mul_f32 v17, v16, v17
    s_nop 1
    v_add_f32_dpp v17, v17, v17 row_ror:1 {DPPF}
    s_nop 1
    v_add_f32_dpp v17, v17, v17 row_ror:2 {DPPF}
    s_nop 1
    v_add_f32_dpp v17, v17, v17 row_ror:4 {DPPF}
    s_nop 1
    v_add_f32_dpp v21, v17, v17 row_ror:8 {DPPF}
    v_add_f32_dpp v17, v17, v17 row_ror:8 {DPPF}
    s_nop 1
    v_permlane16_swap_b32 v17, v21
    v_add_f32 v17, v17, v21
    v_rcp_f32 v17, v17
    s_nop 0
    v_mul_f32 v16, v16, v17
    v_cvt_pk_bf16_f32 v16, v16, v16
    ds_write_b32 v8, v16
    s_waitcnt lgkmcnt(0)
    s_barrier
    s_setprio 0
    s_sub_u32 {S_T0}, {S_Y}, 27
    s_cmp_lt_u32 {S_T0}, 4
    s_cbranch_scc0 L_X_w8e
    ''')
    f2x_run(1)
    g(f"""
    L_X_w8e:
    s_barrier
    L_X_post:
    s_cmp_lt_u32 {S_Y}, 16
    s_cbranch_scc0 L_END
    """)
    g('L_X_final:')
    g(f'''
    s_lshr_b32 {S_T0}, s2, 5
    s_lshl4_add_u32 {S_CU}, {S_T0}, {S_Y}
    s_cmp_lt_u32 {S_CU}, 36
    s_cbranch_scc0 L_END
    {'s_barrier' if o.get('rb', 1) else ''}
    v_lshrrev_b32 v8, 3, v0
    v_mul_u32_u24 v8, 4608, v8
    v_and_b32 v9, 7, v0
    v_lshl_add_u32 v10, v9, 4, v8
    s_mul_i32 {S_T0}, {S_WAVE}, {16*4608}
    s_lshl_b32 {S_T1}, {S_CU}, 7
    s_add_u32 {S_T0}, {S_T0}, {S_T1}
    s_add_u32 {S_T0}, {S_T0}, {WS_H4}
    s_add_u32 {S_T1}, {S_T0}, {8*4608}
    s_lshl_b32 {S_T4}, {S_CU}, 5
    v_lshlrev_b32 v55, 1, v3
    v_and_b32 v8, 1, v2
    v_mul_u32_u24 v56, 1152, v8
    v_add_u32 v56, v56, v55
    buffer_load_ushort v57, v56, {SRD_X}, {S_T4} offen
    buffer_load_ushort v58, v55, {SRD_B2}, {S_T4} offen
    v_lshl_add_u32 v8, v9, 1, v8
    v_lshrrev_b32 v59, 1, v2
    v_lshl_add_u32 v8, v59, 4, v8
    v_mul_u32_u24 v8, 48, v8
    v_lshl_add_u32 v8, {S_WAVE}, 2, v8
    v_and_b32 v11, 31, v0
    v_mul_u32_u24 v11, 48, v11
    v_add_u32 v61, {LX_FIN}, v11
    v_lshl_add_u32 v60, v59, 4, v61
    v_add_u32 v59, {LX_FIN}, v8
    ''')
    h4s = o.get('h4s', 0)
    if h4s:
        if h4s == 1:
            for u, sr in enumerate((S_T0, S_T1)):
                g(f'buffer_load_dwordx4 {R(16+4*u)}, v10, {SRD_WS}, {sr} offen sc1')
        lp = g.lab('h40')
        nl = o.get('h4n', 1)
        m = 0
        for k in range(nl):
            m |= 1 << (8 * k)
        g(f'''
        s_mov_b32 exec_lo, 0x{m & 0xffffffff:x}
        s_mov_b32 exec_hi, 0x{m >> 32:x}
        {lp}:
        buffer_load_dword v24, v10, {SRD_WS}, {S_T0} offen sc1
        ''')
        spin_check(g)
        g(f'''
        s_waitcnt vmcnt(0)
        v_and_b32 v24, 0xfff, v24
        v_cmp_ne_u32 vcc, {S_TAG}, v24
        s_nop 1
        s_cbranch_vccnz {lp}
        s_mov_b64 exec, -1
        ''')
    lp = g.lab('h4')
    g(f'{lp}:')
    for u, sr in enumerate((S_T0, S_T1)):
        g(f'buffer_load_dwordx4 {R(16+4*u)}, v10, {SRD_WS}, {sr} offen sc1')
    spin_check(g)
    g('s_waitcnt vmcnt(0)')
    tagged_check(g, range(16, 24), 8)
    g(f'''
    v_pk_add_f32 v[16:17], v[16:17], v[20:21]
    v_pk_add_f32 v[18:19], v[18:19], v[22:23]
    s_cbranch_vccnz {lp}
    ''')
    g.stamp(13)
    g(f'''
    v_permlane32_swap_b32 v16, v17
    v_permlane32_swap_b32 v18, v19
    v_add_f32 v16, v16, v17
    v_add_f32 v18, v18, v19
    v_lshlrev_b32 v57, 16, v57
    v_lshlrev_b32 v58, 16, v58
    v_permlane16_swap_b32 v16, v18
    v_add_f32 v16, v16, v18
    v_add_f32 v57, v57, v58
    s_cmp_eq_u32 {S_WAVE}, 0
    v_add_f32_dpp v16, v16, v16 row_ror:8 {DPPF}
    ds_write_b32 v59, v16
    s_waitcnt lgkmcnt(0)
    s_barrier
    s_cbranch_scc0 L_END
    ds_read_b128 v[16:19], v60
    ds_read_b32 v20, v61 offset:32
    s_waitcnt lgkmcnt(1)
    v_pk_add_f32 v[16:17], v[16:17], v[18:19]
    v_add_f32 v16, v16, v17
    v_mov_b32 v17, v16
    s_waitcnt lgkmcnt(0)
    v_add_f32 v57, v57, v20
    v_permlane32_swap_b32 v16, v17
    v_add_f32 v16, v16, v17
    v_add_f32 v16, v16, v57
    v_cvt_pk_bf16_f32 v16, v16, v16
    s_mov_b32 exec_hi, 0
    buffer_store_short v16, v56, {SRD_OUT}, {S_T4} offen {'sc1' if o.get('osc1') else ''}
    ''')
    if o.get('hold'):
        g(f'''
        s_and_b32 s94, s2, 7
        s_lshr_b32 s94, {o.get('holdm', 1)}, s94
        s_and_b32 s94, s94, 1
        s_cbranch_scc0 L_nohold
        L_hold:
        s_memrealtime s[94:95]
        s_waitcnt lgkmcnt(0)
        s_sub_u32 s94, s94, s92
        s_cmp_lt_u32 s94, {o['hold']}
        s_cbranch_scc1 L_hold
        L_nohold:
        ''')
    g(f'''
    s_cmp_eq_u32 s2, 0
    s_cbranch_scc0 L_END
    v_mov_b32 v17, {S_EP}
    v_mov_b32 v18, 0
    buffer_store_dword v17, v18, {SRD_WS}, 0 offen {'sc1' if o.get('osc1') else ''}
    s_branch L_END
    ''')

    g('L_Y2:')
    clear_stamps(1)
    g(f"""
    s_load_dword {S_EP}, s[12:13], 0
    s_mov_b32 s10, {2*4096*1024}
    s_sub_u32 {S_Y}, s2, 128
    s_bfe_u32 {S_HG}, s2, 0x10003
    s_and_b32 {S_T0}, s2, 7
    s_lshr_b32 {S_T1}, {S_Y}, 4
    s_lshl3_add_u32 {S_SPLIT}, {S_T0}, {S_T1}
    s_lshl1_add_u32 {S_OFF}, {S_SPLIT}, {S_HG}
    s_lshl2_add_u32 {S_OFF}, {S_OFF}, {S_WAVE}
    s_lshl_b32 {S_OFF}, {S_OFF}, 14
    s_mul_i32 m0, {S_WAVE}, 16896
    s_cmp_lt_u32 {S_WAVE}, 4
    s_barrier
    s_cbranch_scc0 L_Y_noc
    """)
    nc0 = o.get('nc0', 4)

    def ckv_dma(a, b, yp=''):
        for n in range(a, b):
            k, u = n >> 2, n & 3
            w = n - a < len(yp) and yp[n - a] != '9'
            if w:
                g(f's_waitcnt vmcnt({yp[n-a]})')
            g(f'buffer_load_dwordx4 v1, {SRD_A}, {S_OFF} offen offset:{u*1024} {cnt} lds')
            if u < 3:
                g('s_addk_i32 m0, 32')
                g('s_nop 0')
            elif k < 7:
                g(f's_add_u32 m0, m0, {4128 + (48*1056 if k == 3 else 0)}')
                if k == 3:
                    g(f's_xor_b32 {S_OFF}, {S_OFF}, {0x1c000 if o.get("rev", 1) else 0x13000}')
                    g('s_barrier')
                else:
                    g(f's_addk_i32 {S_OFF}, {-4096 if (k > 3 and o.get("rev", 1)) else 4096}')
    ckv_dma(0, nc0)
    g('L_Y_noc:')
    post = []
    post += srd(g, SRD_W1, 40, 0 if o.get('nowo') else 4096 * 1152)
    post += srd(g, SRD_C, 64, 9216)
    post += srd(g, SRD_O, 72, 0 if o.get('now2') else 4608 * 1152)
    for p in post:
        g(p)
    g(f"""
    s_lshr_b32 {S_B}, {S_SPLIT}, 5
    s_and_b32 {S_T0}, s2, 7
    s_lshr_b32 {S_T1}, {S_Y}, 3
    s_lshl4_add_u32 {S_CU}, {S_T0}, {S_T1}
    s_lshr_b32 {S_T2}, {S_T1}, 2
    """)
    phys_head(g, S_PH, S_T0, S_T2, S_T3)
    g(f"""
    s_and_b32 {S_T1}, {S_T1}, 3
    s_lshl2_add_u32 {S_PH}, {S_PH}, {S_T1}
    s_lshl2_add_u32 {S_H}, {S_T0}, {S_T1}
    """)
    misc_consts(g)
    g('s_waitcnt lgkmcnt(0)')
    make_tag(g)
    g(f"""
    s_lshl2_add_u32 {S_KEEP}, {S_H}, {S_J}
    s_cmp_eq_u32 {S_WAVE}, 8
    s_cbranch_scc1 L_Y_w8
    s_cmp_eq_u32 {S_WAVE}, {LNW}
    s_cbranch_scc0 L_Y_noln
    """)
    layernorm_addr(g, LY_XN)
    g('s_waitcnt vmcnt(4)')
    layernorm_stats(g)
    layernorm_slice(g, 22, 0)
    g('L_Y_noln:')
    alpha_addr(g, 56, S_WAVE)
    g(f"""
    v_add_u32 v56, {LY_WQ}, v56
    v_and_b32 v8, 1, v0
    v_lshlrev_b32 v9, 9, v8
    v_lshl_add_u32 v10, v2, 4, v9
    v_add_u32 v10, {LY_XN}, v10
    v_lshlrev_b32 v11, 3, v0
    v_mov_b32 v98, 0
    v_mov_b32 v99, 0
    s_lshl3_add_u32 {S_T4}, {S_KEEP}, {S_WAVE}
    s_lshl_b32 {S_T4}, {S_T4}, 7
    s_add_u32 {S_T4}, {S_T4}, {WS_H1}
    s_or_b32 {S_KEEP}, {S_T4}, {WS_SLOW}
    s_waitcnt lgkmcnt(0)
    s_barrier
    """)
    for s in range(5):
        g(f'ds_read_b128 {R(140+4*s)}, v10 offset:{64*s}')
    g(f"""
    s_cmp_lt_u32 {S_WAVE}, 4
    s_cbranch_scc1 L_Y_q1a
    s_waitcnt vmcnt(0)
    L_Y_q1a:
    s_waitcnt vmcnt({nc0})
    s_barrier
    """)
    g.stamp(13)
    for s in range(5):
        g(f'ds_read_b64_tr_b16 {R(80+4*s,2)}, v56 offset:{s*9216}')
        if s < 4:
            g(f'ds_read_b64_tr_b16 {R(82+4*s,2)}, v56 offset:{s*9216+4608}')
    g.stwait()
    for s in range(5):
        g(f's_waitcnt lgkmcnt({max(7-2*s, 0)})')
        c = '0' if s == 0 else R(16)
        g(f'{MF} {R(16)}, {R(140+4*s)}, {R(80+4*s)}, {c}')
    g(f"""
    s_nop 6
    s_mov_b64 exec, 0xffff
    v_bfi_b32 v16, {S_MASK}, v16, v6
    v_bfi_b32 v17, {S_MASK}, v17, v6
    buffer_store_dwordx2 v[16:17], v11, {SRD_WS}, {S_T4} offen
    """)
    g.stamp(14)
    g(f"""
    s_barrier
    buffer_store_dwordx2 v[16:17], v11, {SRD_WS}, {S_KEEP} offen sc1
    s_mov_b64 exec, -1
    s_cbranch_scc0 L_Y_nqk
    """)
    ckv_dma(nc0, 16, str(o.get('yp', '9')))
    g(f'''
    v_mul_u32_u24 v8, 1056, v3
    v_lshl_add_u32 v8, v2, 4, v8
    s_mul_i32 {S_T0}, {S_WAVE}, 16896
    v_add_u32 v4, {S_T0}, v8
    v_add_u32 v7, 67584, v4
    v_add_u32 v5, {LY_Q}, v8
    v_lshlrev_b32 v13, 4, v3
    v_add_u32 v11, {LY_MX}, v13
    v_lshl_add_u32 v10, {S_WAVE}, 2, v11
    s_lshl_b32 {S_T0}, {S_WAVE}, 10
    s_add_u32 {S_T0}, {S_T0}, {LY_P}
    v_add_u32 v12, {S_T0}, v1
    s_mov_b32 {S_T1}, 0x{f2u(SCALE):08x}
    ''')

    def kread(t, ks):
        g(f'ds_read_b128 {R(40+8*ks+4*t)}, v{7 if t else 4} offset:{ks*64}')
    hb = o.get('hb', 10)
    kb = o.get('kb', 4)
    ckv_dma(16, 16 + hb)
    g('s_barrier')
    ckv_dma(16 + hb, 32)
    g('s_waitcnt vmcnt(16)')
    g.stamp(1)
    g('s_barrier')
    for ks in range(16):
        kread(0, ks)
    g('s_waitcnt vmcnt(0) lgkmcnt(0)')
    g.stamp(2)
    g.stwait()
    for ks in range(kb):
        kread(1, ks)
    g('s_barrier')
    order = [('q', k) for k in range(4)]
    nk = kb
    pos = {}
    seq = []

    def issue(item):
        seq.append(item)
        pos[item] = len(seq)
        if item[0] == 'q':
            g(f'ds_read_b128 {R(16 + 4*(item[1] & 3))}, v5 offset:{item[1]*64}')
        else:
            kread(1, item[1])
    for k in range(4):
        issue(('q', k))
        if nk <= k + 1 and nk < 16:
            issue(('k', nk))
            nk += 1
    for ks in range(16):
        q = 16 + 4 * (ks & 3)
        need = max(pos[('q', ks)], pos.get(('k', ks), 0))
        g(f's_waitcnt lgkmcnt({len(seq) - need})')
        for t in range(2):
            c = '0' if ks == 0 else R(32 + 4 * t)
            g(f'{MF} {R(32+4*t)}, {R(40+8*ks+4*t)}, {R(q)}, {c}')
        if ks + 4 < 16:
            issue(('q', ks + 4))
        if nk < 16:
            issue(('k', nk))
            nk += 1
        assert nk > min(ks + 1, 15)
    g(f'''
    s_nop 6
    v_max3_f32 v8, v32, v33, v34
    v_max3_f32 v8, v8, v35, v36
    v_max3_f32 v8, v8, v37, v38
    v_max_f32 v9, v8, v39
    v_max_f32 v8, v8, v39
    s_nop 1
    v_permlane16_swap_b32 v8, v9
    v_max_f32 v15, v8, v9
    v_max_f32 v8, v8, v9
    s_nop 1
    v_permlane32_swap_b32 v8, v15
    v_max_f32 v8, v8, v15
    ds_write_b32 v10, v8
    s_waitcnt lgkmcnt(0)
    s_barrier
    ds_read_b128 v[16:19], v11
    s_waitcnt lgkmcnt(0)
    v_max3_f32 v8, v16, v17, v18
    v_max_f32 v8, v8, v19
    v_mul_f32 v24, {S_T1}, v8
    ''')
    for r in range(8):
        g(f'v_fma_f32 v{32+r}, v{32+r}, {S_T1}, -v24')
    for r in range(8):
        g(f'v_exp_f32 v{32+r}, v{32+r}')
    for r in range(4):
        g(f'v_cvt_pk_bf16_f32 v{16+r}, v{32+2*r}, v{33+2*r}')
    g(f'''
    ds_write_b128 v12, v[16:19]
    v_pk_add_f32 v[32:33], v[32:33], v[34:35]
    v_pk_add_f32 v[36:37], v[36:37], v[38:39]
    v_pk_add_f32 v[32:33], v[32:33], v[36:37]
    v_add_f32 v8, v32, v33
    v_add_f32 v9, v32, v33
    s_nop 1
    v_permlane16_swap_b32 v8, v9
    v_add_f32 v15, v8, v9
    v_add_f32 v8, v8, v9
    s_nop 1
    v_permlane32_swap_b32 v8, v15
    v_add_f32 v8, v8, v15
    ds_write_b32 v10, v8 offset:256
    s_waitcnt lgkmcnt(0)
    s_barrier
    ''')
    g.stamp(6)
    n1 = o.get('n1', 6)
    n2 = o.get('n2', 3)
    rest = 36 - 4 * (n1 + n2)
    assert rest >= 0 and rest % 4 == 0
    n3 = rest // 4

    def w2_batch(first_sgpr, n, vsrc):
        for u in range(n):
            if u % 4 == 0:
                g(f's_lshl_b32 {S_T4}, {first_sgpr}, 10')
                g(f's_add_u32 m0, {S_T4}, {LY_WOA + (u>>2)*4096}')
                g(f's_mul_i32 {S_OFF}, {S_Y}, 36864')
                g(f's_add_u32 {S_OFF}, {S_OFF}, m0')
            g(f'buffer_load_dwordx4 v{vsrc+u}, {SRD_O}, {S_OFF} offen offset:{(u&3)*1024} {NT("wnt", 1)} lds')
    if n2 + n3:
        g(f's_mul_i32 {S_T5}, {S_WAVE}, {n2 + n3}')
        g(f's_add_u32 {S_T5}, {S_T5}, {4*n1}')
        omega_src(g, 40, n2 + n3, S_T5)
        w2_batch(S_T5, n2, 40)
        g(f's_add_u32 {S_T5}, {S_T5}, {n2}')
    no = o.get('no', 0)
    if no:
        assert n3 == 0
        g(f's_lshl_b32 {S_T0}, {S_WAVE}, 2')
        omega_src(g, 24, 4, S_T0)
        g(f"""
        s_lshl_b32 {S_T0}, {S_WAVE}, 12
        s_add_u32 m0, {S_T0}, {LY_WOB}
        s_mul_i32 {S_OFF}, {S_PH}, 36864
        s_add_u32 {S_OFF}, {S_OFF}, {S_T0}
        """)
        for u in range(4):
            if u == no:
                g('s_barrier')
            g(f'buffer_load_dwordx4 v{24+u}, {SRD_W1}, {S_OFF} offen offset:{u*1024} {NT("wnt", 1)} lds')
        if no == 4:
            g('s_barrier')
        g('s_branch L_Y_b5b')
    else:
        g('s_barrier')
        w2_batch(S_T5, n3, 40 + n2)
        g('s_branch L_Y_b5')
    g('L_Y_nqk:')
    g(f"""
    s_sub_u32 {S_T5}, {S_WAVE}, 4
    s_mul_i32 {S_T5}, {S_T5}, {n1}
    """)

    def pv_setup():
        if n1:
            omega_src(g, 24, n1, S_T5)
        g(f"""
        v_lshrrev_b32 v8, 2, v0
        v_mul_u32_u24 v8, 1056, v8
        v_and_b32 v9, 3, v0
        v_lshl_add_u32 v8, v9, 3, v8
        s_lshl_b32 {S_T0}, {S_WAVE}, 8
        s_sub_u32 {S_T0}, {S_T0}, 1024
        v_add_u32 v4, {S_T0}, v8
        v_add_u32 v5, 67584, v4
        v_add_u32 v12, {LY_P}, v1
        v_lshlrev_b32 v8, 4, v3
        v_lshl_add_u32 v13, v2, 18, v8
        s_lshl_b32 {S_T0}, {S_HG}, 20
        s_lshl_b32 {S_T3}, {S_WAVE}, 14
        s_add_u32 {S_T0}, {S_T0}, {S_T3}
        s_lshl_b32 {S_T3}, {S_SPLIT}, 8
        s_add_u32 {S_T0}, {S_T0}, {S_T3}
        s_add_u32 {S_T0}, {S_T0}, {WS_H3 - 4*16384}
        s_add_u32 {S_T1}, {S_T0}, 0x10000
        s_add_u32 {S_T2}, {S_T0}, 0x20000
        s_add_u32 {S_T3}, {S_T0}, 0x30000
        """)
    pv_setup()

    def vreads(t, c0, c1, s0=0, s1=4):
        for ct in range(c0, c1):
            for s in range(s0, s1):
                g(f'ds_read_b64_tr_b16 {R(40+16*ct+4*s+2*t,2)}, v{4+t} offset:{s*16896 + ct*32}')
    g(f"""
    s_lshl2_add_u32 {S_T4}, {S_HG}, {S_WAVE}
    s_lshl3_add_u32 {S_KEEP}, {S_B}, {S_T4}
    s_lshl_b32 {S_KEEP}, {S_KEEP}, 12
    s_add_u32 {S_KEEP}, {S_KEEP}, {WS_H2 - 16384}
    s_mul_i32 {S_OFF}, {S_WAVE}, 4224
    s_add_u32 {S_OFF}, {S_OFF}, {LY_Q - 4*4224}
    v_add_u32 v14, {S_OFF}, v1
    s_setprio 3
    s_barrier
    s_barrier
    """)
    HR = [16, 20, 32, 36]

    def h2_loads():
        for u in range(4):
            g(f'buffer_load_dwordx4 {R(HR[u])}, v1, {SRD_WS}, {S_KEEP} offen offset:{u*1024} sc1')
    g.stamp(4)
    h2_loads()
    g('s_setprio 0')
    v0s = o.get('v0s', 2)
    v0p = o.get('v0p', 0)
    assert v0s * 16896 >= 4096 * n1
    g('s_barrier')
    if v0p == 0:
        vreads(0, 0, 8, 0, v0s)
    lp = g.lab('h2')
    g(f's_branch {lp}_in')
    g(f'{lp}:')
    h2_loads()
    spin_check(g)
    g(f'{lp}_in:')
    for u in range(4):
        g(f's_waitcnt vmcnt({3-u})')
        for r in range(4):
            g(f'v_xor_b32 v{HR[u]+r}, {S_TAG2}, v{HR[u]+r}')
        g(f'ds_write_b128 v14, {R(HR[u])} offset:{u*1056}')
        or_chain(g, 8, range(HR[u], HR[u] + 4), u == 0)
    g(f"""
    v_and_b32 v8, 0x10001, v8
    v_cmp_ne_u32 vcc, 0, v8
    s_waitcnt lgkmcnt(0)
    s_nop 0
    s_cbranch_vccnz {lp}
    """)
    if v0p == 1:
        vreads(0, 0, 8, 0, v0s)
        g('s_waitcnt lgkmcnt(0)')
    g.stamp(5)
    g('s_barrier')
    g.stamp(3)
    assert n1 <= 8
    vs = o.get('vs', 2)
    w2_batch(S_T5, n1, 24)
    vreads(0, 0, 8, v0s, 4)
    vreads(1, 0, vs)
    g('s_barrier')
    vreads(1, vs, 8)
    g('s_waitcnt lgkmcnt(0)')
    g('s_setprio 2')
    g('s_barrier')
    PR = 16
    for s in range(4):
        g(f'ds_read_b128 {R(PR+4*s)}, v12 offset:{s*1024}')

    def accreg(u):
        return 32 if u == 0 else 40 + 32 * (u - 1)
    PK = 56

    def pack(u):
        a = accreg(u)
        return [f'v_cvt_pk_bf16_f32 v{PK+4*r+u}, v{a+r}, v{a+4+r}' for r in range(4)] + \
               [f'v_bfi_b32 v{PK+4*r+u}, {S_MASK2}, v{PK+4*r+u}, v6' for r in range(4)]
    pend = []
    for u in range(4):
        a = accreg(u)
        n = 0
        for s in range(4):
            if u == 0:
                g(f's_waitcnt lgkmcnt({3-s})')
            for t in range(2):
                ct = 2 * u + t
                c = '0' if s == 0 else R(a + 4 * t)
                g(f'{MF} {R(a+4*t)}, {R(PR+4*s)}, {R(40+16*ct+4*s)}, {c}')
                n += 1
                if u >= 2 and pend:
                    g(pend.pop(0))
        if u >= 1:
            pend += pack(u - 1)
    for e in pend:
        g(e)
    a = accreg(3)
    for r, sr in enumerate((S_T0, S_T1, S_T2, S_T3)):
        g(f'v_cvt_pk_bf16_f32 v{PK+4*r+3}, v{a+r}, v{a+4+r}')
        g(f'v_bfi_b32 v{PK+4*r+3}, {S_MASK2}, v{PK+4*r+3}, v6')
        g(f'buffer_store_dwordx4 {R(PK+4*r)}, v13, {SRD_WS}, {sr} offen sc1')
    g('s_setprio 0')
    g.stamp(7)
    g(f's_waitcnt vmcnt({o.get("swait", 4)})')
    g('s_barrier')
    g('s_branch L_Y_b5')
    g('L_Y_w8:')
    if o.get('yt', 0):
        g(f"""
        s_load_dwordx2 s[32:33], s[0:1], 56
        s_mov_b32 s34, {576*9216}
        s_mov_b32 s35, s11
        s_and_b32 {S_T0}, s2, 31
        s_mul_i32 {S_CG}, {S_T0}, 43
        s_lshr_b32 {S_CG}, {S_CG}, 7
        s_mul_i32 {S_RS}, {S_CG}, 3
        s_sub_u32 {S_RS}, {S_T0}, {S_RS}
        s_add_u32 {S_T1}, s2, {S_J}
        s_add_u32 {S_T1}, {S_T1}, {r3}
        s_and_b32 {S_T1}, {S_T1}, 3
        s_lshl2_add_u32 {S_CG}, {S_CG}, {S_T1}
        s_mul_i32 {S_RS}, {S_RS}, {192*9216}
        s_lshl_b32 {S_CG}, {S_CG}, 8
        s_add_u32 {S_RS}, {S_RS}, {S_CG}
        s_add_u32 {S_RS}, {S_RS}, {160*9216}
        s_cmp_lt_u32 {S_T0}, 27
        s_cselect_b32 {S_RS}, {S_RS}, -1
        """)
        if o.get('ytc', 0):
            g(f's_cmp_eq_u32 {S_T1}, 1')
            g(f's_cselect_b32 {S_RS}, {S_RS}, -1')
        g(f"""
        v_lshrrev_b32 v8, 1, v0
        v_mul_u32_u24 v8, 9216, v8
        v_and_b32 v9, 1, v0
        v_lshl_add_u32 v28, v9, 7, v8
        s_waitcnt lgkmcnt(0)
        """)
    g(f"""
    v_add_u32 v11, {LY_MX}, v1
    s_lshl_b32 {S_T0}, {S_HG}, 6
    s_add_u32 {S_T0}, {S_T0}, {S_SPLIT}
    s_lshl_b32 {S_T0}, {S_T0}, 8
    s_add_u32 {S_T0}, {S_T0}, {WS_M}
    s_mov_b32 {S_T1}, 0x{f2u(SCALE):08x}
    v_mov_b32 v22, v6
    v_mov_b32 v23, v6
    v_lshlrev_b32 v7, 7, v0
    s_lshl_b32 {S_T3}, {S_HG}, 13
    s_add_u32 {S_T3}, {S_T3}, {WS_F2}
    s_setprio 3
    """)
    g(f"""
    v_mov_b32 v24, v6
    v_mov_b32 v25, v6
    s_lshl_b32 {S_T4}, {S_KEEP}, 7
    s_add_u32 {S_T4}, {S_T4}, {WS_F2}
    s_barrier
    s_waitcnt vmcnt(0)
    s_barrier
    """)
    yfl = f"""
    s_mov_b64 exec, 0xff
    buffer_store_dwordx4 v[22:25], v1, {SRD_WS}, {S_T4} offen sc1
    s_mov_b64 exec, -1
    """
    if f2pos == 5:
        g(yfl)
    g('s_barrier')
    if f2pos == 4 and o.get('gate2', 0):
        g(yfl)
    g('s_barrier')
    g.stamp(14)
    g('s_barrier')
    g('s_barrier')
    g('s_barrier')
    g('s_mov_b64 exec, 0xffff')
    g('s_barrier')
    g(f"""
    ds_read_b128 v[16:19], v11
    s_waitcnt lgkmcnt(0)
    v_max3_f32 v8, v16, v17, v18
    v_max_f32 v8, v8, v19
    v_mul_f32 v20, {S_T1}, v8
    s_barrier
    ds_read_b128 v[16:19], v11 offset:256
    s_waitcnt lgkmcnt(0)
    v_add_f32 v16, v16, v17
    v_add_f32 v18, v18, v19
    v_add_f32 v21, v16, v18
    buffer_store_dwordx4 v[20:23], v1, {SRD_WS}, {S_T0} offen sc1
    s_mov_b64 exec, -1
    s_setprio 0
    """)
    g.stamp(13)
    g('s_barrier')
    g('L_Y_b5:')
    GW = o.get('gw', 7)
    g(f"""
    s_cmp_eq_u32 {S_WAVE}, {GW}
    s_cbranch_scc0 L_Y_nh
    """)
    bias_prep(g, S_Y, 63)
    g(f"""
    s_mov_b32 exec_hi, 0xffff
    buffer_load_dwordx4 v[16:19], v1, {SRD_WS}, {S_T1} offen sc1
    s_mov_b32 exec_hi, -1
    L_Y_nh:
    """)
    if o.get('pt3', 0):
        g(f"""
        s_cmp_eq_u32 {S_WAVE}, {GW+1}
        s_cbranch_scc0 L_Y_npt
        s_lshl_b32 {S_T2}, {S_CU}, 10
        s_add_u32 {S_T2}, {S_T2}, {WS_H3P}
        buffer_load_dwordx4 v[16:19], v1, {SRD_WS}, {S_T2} offen sc1
        L_Y_npt:
        """)
    g(f's_lshl_b32 {S_T0}, {S_WAVE}, 2')
    omega_src(g, 24, 4, S_T0)
    g(f"""
    s_lshl_b32 {S_T0}, {S_WAVE}, 12
    s_add_u32 m0, {S_T0}, {LY_WOB}
    s_mul_i32 {S_OFF}, {S_PH}, 36864
    s_add_u32 {S_OFF}, {S_OFF}, {S_T0}
    """)
    for u in range(4):
        g(f'buffer_load_dwordx4 v{24+u}, {SRD_W1}, {S_OFF} offen offset:{u*1024} {NT("wnt", 1)} lds')
    g('L_Y_b5b:')
    g.stamp(8)
    omega_addr(g, 56)
    act_addr(g, 61, LY_ACT)
    h4_soff(g, S_Y)
    gather32_ldsaddr(g, 60, LY_ACT, 64)
    g(f"""
    v_lshlrev_b32 v62, 3, v0
    s_lshl_b32 {S_T2}, {S_CU}, 10
    s_add_u32 {S_T2}, {S_T2}, {WS_H3P}
    s_mov_b32 s98, 0xffff0000
    s_mov_b32 s99, 0xffff0000
    s_mov_b32 s48, 0
    s_mov_b32 s49, -1
    s_cmp_eq_u32 {S_WAVE}, {GW}
    s_cbranch_scc0 L_Y_nh2
    s_waitcnt vmcnt(4)
    s_mov_b32 exec_lo, 0
    s_mov_b32 exec_hi, 0xffff0000
    """)
    bias_unpack(g)
    g('s_mov_b32 exec_lo, -1')
    gather32(g, 1, S_T1, 60, act=True, stamp=10, have=True)
    g(f"""
    L_Y_nh2:
    s_cmp_eq_u32 {S_WAVE}, {GW+1}
    s_cbranch_scc1 L_Y_ctx
    s_waitcnt vmcnt(0) lgkmcnt(0)
    """)

    def block_a():
        g.stamp(9)
        g('s_barrier')
        g('ds_read_b128 v[20:23], v61')
        omega_reads(g, 56, 80, LY_WOA)
        omega_reads(g, 56, 96, LY_WOB)

    def mfma_a():
        for t in range(4):
            g(f'{MF} {R(36+4*t)}, {R(20)}, {R(80+4*t)}, 0')
    block_a()
    g('s_waitcnt lgkmcnt(8)')
    g.stwait()
    mfma_a()
    g(f"""
    s_branch L_Y_c
    L_Y_ctx:
    s_setprio 2
    s_waitcnt vmcnt({o.get('cw', 1)})
    """)

    def pre():
        g('s_waitcnt vmcnt(1)')
        block_a()
        g('s_waitcnt lgkmcnt(8)')
        g.stwait()
        mfma_a()
    gather32(g, 1, S_T2, 60, lds_off=128, stamp=11, dual=True, pre=pre)
    g(f"""
    L_Y_c:
    s_waitcnt lgkmcnt(0)
    s_barrier
    ds_read_b128 v[24:27], v61 offset:128
    s_waitcnt lgkmcnt(0)
    """)
    for t in range(4):
        g(f'{MF} {R(36+4*t)}, {R(24)}, {R(96+4*t)}, {R(36+4*t)}')
    g(f"""
    s_nop 5
    v_cndmask_b32 v36, v36, v40, {S_CMP}
    v_cndmask_b32 v37, v37, v41, {S_CMP}
    v_cndmask_b32 v44, v44, v48, {S_CMP}
    v_cndmask_b32 v45, v45, v49, {S_CMP}
    v_cndmask_b32 v36, v36, v44, {S_EXC}
    v_cndmask_b32 v37, v37, v45, {S_EXC}
    v_bfi_b32 v36, {S_MASK}, v36, v6
    v_bfi_b32 v37, {S_MASK}, v37, v6
    buffer_store_dwordx2 v[36:37], v62, {SRD_WS}, {S_T3} offen sc1
    """)
    g.stamp(12)
    g('L_END:')
    if stamps:
        g.stamp(15)
        g(f'''
        s_sleep 127
        s_sleep 127
        s_mov_b64 exec, 1
        s_mul_i32 {S_T0}, s2, 9
        s_add_u32 {S_T0}, {S_T0}, {S_WAVE}
        s_lshl_b32 {S_T0}, {S_T0}, 6
        s_add_u32 {S_T0}, {S_T0}, {WS_ST}
        v_mov_b32 v8, 0
        s_waitcnt lgkmcnt(0)
        ''')
        for k in range(16):
            g(f'v_mov_b32 v9, s{64+2*k}')
            g(f'buffer_store_dword v9, v8, {SRD_WS}, {S_T0} offen offset:{4*k}')
    g('L_EXIT:')
    g('s_endpgm')
    g.L.append('.fill 1200, 4, 0xbf810000')
    g.L.append('.section .rodata,"a"')
    g.L.append('.p2align 6')
    g.L.append(f'.amdhsa_kernel {NAME}_kernel')
    g.L.append('  .amdhsa_next_free_vgpr 168')
    g.L.append('  .amdhsa_next_free_sgpr 102')
    g.L.append('  .amdhsa_accum_offset 168')
    g.L.append('  .amdhsa_group_segment_fixed_size 0')
    g.L.append('  .amdhsa_kernarg_size 112')
    g.L.append('  .amdhsa_user_sgpr_count 2')
    g.L.append('  .amdhsa_user_sgpr_kernarg_segment_ptr 1')
    g.L.append('  .amdhsa_system_sgpr_workgroup_id_x 1')
    g.L.append('.end_amdhsa_kernel')
    return g.text()


def parse_opts(args):
    o = {}
    for a in args:
        if '=' in a:
            k, v = a.split('=')
            o[k] = v if k in ('yp', 'xp', 'op') else int(v)
    return o


if __name__ == '__main__':
    out = sys.argv[1]
    stamps = 'stamps' in sys.argv[2:]
    nt = '' if 'nont' in sys.argv[2:] else 'nt'
    open(out, 'w').write(gen(stamps, nt, parse_opts(sys.argv[2:])))
```

```python
import sys, math, struct

NAME = 'parallel_sum__compressed_kv_cla__dense_activation_squared_relu__decode'

WS_H1 = 0x10000
WS_H2 = 0x30000
WS_H3P = 0x40000
WS_HF = 0x60000
WS_M = 0x90000
WS_F2 = 0xA0000
WS_H4 = 0x100000
WS_H3 = 0x300000
WS_SLOW = 0x500000
WS_ST = 0x600000
WS_SIZE = 0x800000

LX_W1 = 0
LX_WO = 0
LX_WUK = 55296
LX_WUV = 89088
LX_XN = LX_WUV + 36864
LX_QP = LX_XN + 2048
LX_CC = LX_QP + 1024
LX_FIN = LX_CC + 1280
LX_ACT = LX_FIN + 1536
LX_WT = LX_ACT + 640
LX_END = LX_WT + 256
LY_CKV = 0
LY_Q = 135168
LY_P = LY_Q + 16896
LY_MX = LY_P + 4096
LY_LX = LY_MX + 256
LY_ACT = LY_LX + 256
LY_END = LY_ACT + 256
LY_WQ = 67584
LY_XN = LY_P
LY_WOA = 0
LY_WOB = 36864
LDS_BYTES = max(LX_END, LY_END)

SCALE = (128 ** -0.5) * math.log2(math.e)


def f2u(x):
    return struct.unpack('<I', struct.pack('<f', x))[0]


class G:
    def __init__(self, stamps=False, nt='nt', opts=None):
        self.L = []
        self.stamps = stamps
        self.nt = nt
        self.o = opts or {}
        self.nlab = 0

    def __call__(self, s):
        for line in s.strip('\n').split('\n'):
            line = line.strip()
            if not line:
                continue
            if line.endswith(':'):
                self.L.append(line)
            else:
                self.L.append('    ' + line)

    def lab(self, p):
        self.nlab += 1
        return f'L_{p}_{self.nlab}'

    def stamp(self, k):
        if self.stamps:
            self(f's_memrealtime s[{64+2*k}:{65+2*k}]')

    def stwait(self):
        if self.stamps:
            self('s_waitcnt lgkmcnt(0)')

    def text(self):
        return '\n'.join(self.L) + '\n'


S_WAVE = 's3'
S_CU = 's4'
S_H = 's5'
S_J = 's6'
S_T0 = 's7'
SRD_A = 's[8:11]'
SRD_WS = 's[12:15]'
SRD_X = 's[16:19]'
SRD_B = 's[20:23]'
SRD_C = 's[24:27]'
SRD_O = 's[28:31]'
SRD_B2 = 's[32:35]'
SRD_OUT = 's[36:39]'
S_TAG = 's40'
S_EP = 's41'
S_SPIN = 's42'
S_MASK = 's43'
S_OFF = 's44'
S_T1 = 's45'
S_T2 = 's46'
S_T3 = 's47'
S_EXC = 's[48:49]'
S_B = 's50'
S_SPLIT = 's51'
S_HG = 's52'
S_Y = 's53'
S_PC = 's[54:55]'
S_TAG2 = 's56'
S_MASK2 = 's57'
S_T4 = 's58'
S_T5 = 's59'
SRD_W1 = 's[60:63]'
S_CG = 's96'
S_RS = 's97'
S_CMP = 's[98:99]'
S_PH = 's100'
S_KEEP = 's101'
DPPF = 'row_mask:0xf bank_mask:0xf'
MF = 'v_mfma_f32_16x16x32_bf16'


def R(a, n=4):
    return f'v[{a}:{a+n-1}]'


def srd(g, name, karg_off, nbytes):
    n = int(name[2:name.index(':')])
    g(f's_load_dwordx2 s[{n}:{n+1}], s[0:1], {karg_off}')
    return [f's_mov_b32 s{n+2}, {nbytes}', f's_mov_b32 s{n+3}, s11']


def spin_check(g):
    g(f's_sub_u32 {S_SPIN}, {S_SPIN}, 1')
    g('s_cbranch_scc1 L_END')


def or_chain(g, acc, rs, first):
    rs = list(rs)
    if first:
        g(f'v_or3_b32 v{acc}, v{rs[0]}, v{rs[1]}, v{rs[2]}')
        rs = rs[3:]
    while len(rs) >= 2:
        g(f'v_or3_b32 v{acc}, v{acc}, v{rs[0]}, v{rs[1]}')
        rs = rs[2:]
    if rs:
        g(f'v_or_b32 v{acc}, v{acc}, v{rs[0]}')


def tagged_check(g, regs, acc):
    for r in regs:
        g(f'v_xor_b32 v{r}, {S_TAG}, v{r}')
    or_chain(g, acc, regs, True)
    g(f'v_and_b32 v{acc}, 0xfff, v{acc}')
    g(f'v_cmp_ne_u32 vcc, 0, v{acc}')


def slow_toggle(g, soff, extra):
    if g.o.get('one', 0):
        if callable(extra):
            g(f's_and_b32 {S_T0}, {S_SPIN}, 31')
            extra()
        return
    g(f'''
    s_andn2_b32 {soff}, {soff}, {WS_SLOW}
    s_and_b32 {S_T0}, {S_SPIN}, 31
    s_cselect_b32 {S_T0}, 0, {WS_SLOW}
    s_add_u32 {soff}, {soff}, {S_T0}
    ''')
    if callable(extra):
        g(f's_cmp_eq_u32 {S_T0}, 0')
        extra()


def gather32(g, vaddr, soff, vlds, lds_off=0, act=False, stamp=None, pre=None, dual=False, firstwait=0, have=False):
    lp = g.lab('g32')
    if dual:
        g(f's_or_b32 {S_SPIN}, {S_SPIN}, 31')
    if act:
        g('s_mov_b32 exec_hi, 0xffff')
    if have:
        g(f's_branch {lp}_chk')
    if pre is not None:
        g(f'buffer_load_dwordx4 v[16:19], v{vaddr}, {SRD_WS}, {soff} offen sc1')
        pre()
        if firstwait:
            g(f'''
            s_cbranch_scc0 {lp}_in
            s_waitcnt vmcnt(1)
            s_branch {lp}_chk
            ''')
        else:
            g(f's_branch {lp}_in')
    g(f'''
    {lp}:
    buffer_load_dwordx4 v[16:19], v{vaddr}, {SRD_WS}, {soff} offen sc1
    ''')
    spin_check(g)
    if dual:
        slow_toggle(g, soff, dual)
    g(f'{lp}_in:')
    g('s_waitcnt vmcnt(0)')
    g(f'{lp}_chk:')
    tagged_check(g, range(16, 20), 8)
    if act:
        g('s_nop 1')
        g(f's_cbranch_vccnz {lp}')
        g('s_mov_b32 exec_hi, -1')
        g('v_permlane32_swap_b32 v16, v17')
        g('v_permlane32_swap_b32 v18, v19')
    else:
        g('v_permlane32_swap_b32 v16, v17')
        g('v_permlane32_swap_b32 v18, v19')
        g(f's_cbranch_vccnz {lp}')
    if stamp is not None:
        g.stamp(stamp)
    g(f'''
    v_add_f32 v16, v16, v17
    v_add_f32 v18, v18, v19
    s_nop 1
    v_permlane16_swap_b32 v16, v18
    v_add_f32 v16, v16, v18
    ''')
    if act:
        g('v_max_f32 v16, 0, v16')
        g('v_mul_f32 v16, v16, v16')
    g('v_cvt_pk_bf16_f32 v16, v16, v16')
    g(f'ds_write_b16 v{vlds}, v16 offset:{lds_off}')


def flag_poll(g, vaddr, soff, off=0):
    lp = g.lab('fp')
    g(f'{lp}:')
    if g.o.get('slp'):
        g(f's_sleep {g.o["slp"]}')
    g(f'buffer_load_dword v16, v{vaddr}, {SRD_WS}, {soff} offen offset:{off} sc1')
    spin_check(g)
    g(f"""
    s_waitcnt vmcnt(0)
    v_cmp_ne_u32 vcc, {S_EP}, v16
    s_nop 1
    s_and_b64 exec, exec, vcc
    s_cbranch_scc1 {lp}
    s_mov_b64 exec, -1
    """)


def sflag_issue(g, regs, base, stride, off=0):
    for k, r in enumerate(regs):
        g(f's_load_dword s{r}, {base}, {k*stride + off} glc')


def sflag_wait(g, regs, base, stride, off=0):
    lp = g.lab('sf')
    g(f's_branch {lp}_in')
    g(f'{lp}:')
    sflag_issue(g, regs, base, stride, off)
    spin_check(g)
    g(f'{lp}_in:')
    g(f's_mul_i32 {S_T0}, {S_EP}, {len(regs)}')
    g('s_waitcnt lgkmcnt(0)')
    for r in regs:
        g(f's_sub_u32 {S_T0}, {S_T0}, s{r}')
    g(f's_cmp_eq_u32 {S_T0}, 0')
    g(f's_cbranch_scc0 {lp}')


def gather32_ldsaddr(g, dst, base, bstride):
    g(f'''
    v_and_b32 v8, 1, v2
    v_lshl_add_u32 v8, v3, 1, v8
    v_lshrrev_b32 v9, 1, v2
    v_mul_u32_u24 v9, {bstride}, v9
    v_lshl_add_u32 v8, v8, 1, v9
    v_add_u32 v{dst}, {base}, v8
    ''')


def layernorm_loads(g, off_q, off_f):
    g(f'''
    v_lshrrev_b32 v8, 5, v0
    v_mul_u32_u24 v8, 1152, v8
    v_and_b32 v9, 31, v0
    v_lshl_add_u32 v8, v9, 4, v8
    v_cmp_gt_u32 vcc, 8, v9
    v_mov_b32 v9, 0x7fff0000
    s_nop 0
    v_cndmask_b32 v9, v9, v8, vcc
    s_waitcnt lgkmcnt(0)
    buffer_load_dwordx4 v[10:13], v8, {SRD_X}, 0 offen
    buffer_load_dwordx4 v[14:17], v8, {SRD_X}, 0 offen offset:512
    buffer_load_dwordx4 v[18:21], v9, {SRD_X}, 0 offen offset:1024
    buffer_load_dwordx4 v[22:25], v8, {SRD_X}, {off_q} offen
    buffer_load_dwordx4 v[128:131], v8, {SRD_X}, {off_f} offen
    ''')


def layernorm_stats(g):
    g(f's_mov_b32 {S_T1}, 0x3f803f80')
    g('v_mov_b32 v26, 0')
    g('v_mov_b32 v27, 0')
    for r in range(10, 22):
        g(f'v_dot2c_f32_bf16 v26, {S_T1}, v{r}')
        g(f'v_dot2c_f32_bf16 v27, v{r}, v{r}')
    g('s_nop 2')
    for k in (1, 2, 4, 8):
        g(f'v_add_f32_dpp v26, v26, v26 row_ror:{k} {DPPF}')
        g(f'v_add_f32_dpp v27, v27, v27 row_ror:{k} {DPPF}')
        g('s_nop 0')
    g(f'''
    v_mov_b32 v28, v26
    v_mov_b32 v29, v27
    s_nop 0
    v_permlane16_swap_b32 v26, v28
    v_permlane16_swap_b32 v27, v29
    v_add_f32 v26, v26, v28
    v_add_f32 v27, v27, v29
    v_mul_f32 v26, 0x{f2u(1.0/576):08x}, v26
    v_mul_f32 v27, 0x{f2u(1.0/576):08x}, v27
    v_fma_f32 v27, -v26, v26, v27
    v_max_f32 v27, 0, v27
    v_cvt_pk_bf16_f32 v26, v26, v27
    v_and_b32 v27, 0xffff0000, v26
    v_lshlrev_b32 v132, 16, v26
    v_add_f32 v27, 0x{f2u(1e-5):08x}, v27
    v_cvt_pk_bf16_f32 v27, v27, v27
    v_and_b32 v27, 0xffff0000, v27
    v_sqrt_f32 v27, v27
    s_nop 0
    v_cvt_pk_bf16_f32 v27, v27, v27
    v_and_b32 v27, 0xffff0000, v27
    v_rcp_f32 v133, v27
    ''')


def layernorm_addr(g, LX_XN):
    g(f'''
    v_lshrrev_b32 v8, 2, v0
    v_lshlrev_b32 v8, 6, v8
    v_and_b32 v9, 1, v0
    v_lshl_add_u32 v8, v9, 5, v8
    v_bfe_u32 v9, v0, 1, 1
    v_lshl_add_u32 v8, v9, 3, v8
    v_add_u32 v134, {LX_XN}, v8
    ''')


def layernorm_slice(g, r0, off8):
    for r in range(r0, r0 + 4):
        g(f'''
        v_lshlrev_b32 v28, 16, v{r}
        v_and_b32 v29, 0xffff0000, v{r}
        v_sub_f32 v28, v28, v132
        v_sub_f32 v29, v29, v132
        v_cvt_pk_bf16_f32 v29, v28, v29
        v_lshlrev_b32 v28, 16, v29
        v_and_b32 v29, 0xffff0000, v29
        v_mul_f32 v28, v28, v133
        v_mul_f32 v29, v29, v133
        v_cvt_pk_bf16_f32 v{r}, v28, v29
        ''')
    g(f'ds_write2_b64 v134, v[{r0}:{r0+1}], v[{r0+2}:{r0+3}] offset0:{off8} offset1:{off8+2}')


def alpha_addr(g, dst, tile_sgpr):
    g(f'''
    v_lshrrev_b32 v8, 2, v3
    v_bfe_u32 v9, v0, 1, 1
    v_lshl_add_u32 v9, {tile_sgpr}, 1, v9
    v_lshlrev_b32 v{dst}, 1, v8
    v_xor_b32 v9, v9, v{dst}
    v_lshlrev_b32 v9, 4, v9
    v_lshl_add_u32 v9, v8, 8, v9
    v_and_b32 v8, 1, v0
    v_lshl_add_u32 v9, v8, 3, v9
    v_mul_u32_u24 v8, 1152, v2
    v_add_u32 v{dst}, v8, v9
    ''')


def omega_src(g, dst, n, first_sgpr):
    g(f'''
    v_lshrrev_b32 v8, 3, v0
    v_lshl_add_u32 v8, {first_sgpr}, 3, v8
    v_mul_u32_u24 v8, 57, v8
    ''')
    for k in range(n):
        g(f'''
        v_bfe_u32 v9, v8, 10, 1
        v_bfe_u32 v{dst+k}, v8, 12, 1
        v_lshl_add_u32 v9, v{dst+k}, 1, v9
        v_lshlrev_b32 v9, 5, v9
        v_xor_b32 v{dst+k}, v9, v1
        ''')
        if k < n - 1:
            g('v_add_u32 v8, 456, v8')


def omega_addr(g, dst, cb=S_WAVE):
    g(f'''
    v_lshrrev_b32 v8, 2, v3
    v_lshl_add_u32 v9, v2, 3, v8
    v_mul_u32_u24 v9, 1152, v9
    v_lshl_add_u32 v9, {cb}, 7, v9
    v_and_b32 v{dst}, 3, v0
    v_lshl_add_u32 v9, v{dst}, 3, v9
    v_lshrrev_b32 v8, 1, v8
    v_and_b32 v{dst}, 1, v2
    v_lshl_add_u32 v8, v{dst}, 1, v8
    v_lshl_add_u32 v{dst}, v8, 5, v9
    v_xor_b32 v{dst+1}, 32, v{dst}
    v_xor_b32 v{dst+2}, 64, v{dst}
    v_xor_b32 v{dst+3}, 0x60, v{dst}
    ''')


def omega_reads(g, addr, dst, base):
    for t in range(4):
        g(f'ds_read_b64_tr_b16 {R(dst+4*t,2)}, v{addr+t} offset:{base}')
        g(f'ds_read_b64_tr_b16 {R(dst+4*t+2,2)}, v{addr+t} offset:{base+4608}')


def act_addr(g, dst, act):
    g(f'''
    v_and_b32 v8, 1, v0
    v_lshlrev_b32 v8, 6, v8
    v_lshl_add_u32 v8, v2, 4, v8
    v_add_u32 v{dst}, {act}, v8
    ''')


def omega_finish(g, aaddr, wregs, vaddr, soff, late=None):
    n = len(wregs)
    for k in range(n):
        g(f'ds_read_b128 {R(20+4*k)}, v{aaddr} offset:{128*k}')
    if late:
        late()
    g(f'''
    s_mov_b32 s98, 0xffff0000
    s_mov_b32 s99, 0xffff0000
    s_mov_b32 vcc_lo, 0
    s_mov_b32 vcc_hi, -1
    ''')
    g.stwait()
    for k in range(n):
        if not late:
            g(f's_waitcnt lgkmcnt({n-1-k})')
        elif k == 0:
            g('s_waitcnt lgkmcnt(9)')
        for t in range(4):
            if late and k == 1:
                g(f's_waitcnt lgkmcnt({6-2*t})')
            c = '0' if k == 0 else R(36 + 4 * t)
            g(f'{MF} {R(36+4*t)}, {R(20+4*k)}, {R(wregs[k]+4*t)}, {c}')
    g(f'''
    s_nop 5
    v_cndmask_b32 v36, v36, v40, {S_CMP}
    v_cndmask_b32 v37, v37, v41, {S_CMP}
    v_cndmask_b32 v44, v44, v48, {S_CMP}
    v_cndmask_b32 v45, v45, v49, {S_CMP}
    v_cndmask_b32 v36, v36, v44, vcc
    v_cndmask_b32 v37, v37, v45, vcc
    v_bfi_b32 v36, {S_MASK}, v36, v6
    v_bfi_b32 v37, {S_MASK}, v37, v6
    buffer_store_dwordx2 v[36:37], v{vaddr}, {SRD_WS}, {soff} offen sc1
    ''')


def h4_soff(g, prod):
    g(f'''
    s_mul_i32 {S_T3}, {prod}, 4608
    s_lshl_b32 {S_T4}, {S_WAVE}, 9
    s_add_u32 {S_T3}, {S_T3}, {S_T4}
    s_add_u32 {S_T3}, {S_T3}, {WS_H4}
    ''')


def phys_head(g, dst, x, k, tmp):
    hm = g.o.get('hmap', 4)
    if hm == 0:
        g(f's_lshl2_add_u32 {dst}, {x}, {k}')
    elif hm == 1:
        g(f's_lshl3_add_u32 {dst}, {k}, {x}')
    elif hm == 2:
        g(f"""
        s_and_b32 {tmp}, {k}, 1
        s_lshl1_add_u32 {dst}, {x}, {tmp}
        s_lshr_b32 {tmp}, {k}, 1
        s_lshl4_add_u32 {dst}, {tmp}, {dst}
        """)
    elif hm == 3:
        g(f"""
        s_and_b32 {tmp}, {x}, 3
        s_lshl2_add_u32 {dst}, {k}, {tmp}
        s_lshr_b32 {tmp}, {x}, 2
        s_lshl4_add_u32 {dst}, {tmp}, {dst}
        """)
    elif hm == 4:
        g(f"""
        s_add_u32 {tmp}, {x}, {k}
        s_and_b32 {tmp}, {tmp}, 7
        s_lshl3_add_u32 {dst}, {k}, {tmp}
        """)


def set_role(g, dk, ph_only=None):
    g(f's_lshr_b32 {S_T0}, s2, 5')
    if dk:
        g(f's_add_u32 {S_T0}, {S_T0}, {dk}')
        g(f's_and_b32 {S_T0}, {S_T0}, 3')
    g(f"""
    s_add_u32 {S_T1}, s2, {S_T0}
    s_and_b32 {S_T1}, {S_T1}, 7
    s_lshl3_add_u32 {S_PH}, {S_T0}, {S_T1}
    """)
    if not ph_only:
        g(f"""
        s_and_b32 {S_T1}, s2, 7
        s_lshl2_add_u32 {S_H}, {S_T1}, {S_T0}
        s_lshl2_add_u32 {S_CU}, {S_H}, {S_J}
        """)


def lane_consts(g):
    g(f'''
    v_lshrrev_b32 v1, 6, v0
    v_and_b32 v0, 63, v0
    v_readfirstlane_b32 {S_WAVE}, v1
    v_lshlrev_b32 v1, 4, v0
    v_lshrrev_b32 v2, 4, v0
    v_and_b32 v3, 15, v0
    ''')


def misc_consts(g):
    g(f'''
    s_mov_b32 {S_SPIN}, 0xfffff
    s_mov_b32 {S_MASK}, 0xfffff000
    s_mov_b32 {S_MASK2}, 0xfffefffe
    ''')


def make_tag(g):
    g(f'''
    s_add_u32 {S_EP}, {S_EP}, 1
    s_and_b32 {S_TAG}, {S_EP}, 0xfff
    s_andn2_b32 {S_TAG2}, {S_EP}, {S_MASK2}
    v_mov_b32 v6, {S_EP}
    ''')


def bias_prep(g, blk, va=62, SRD_C=SRD_C):
    g(f'''
    v_lshlrev_b32 v{va}, 2, v3
    s_lshl_b32 {S_T0}, {blk}, 6
    s_lshl_b32 {S_T1}, {blk}, 10
    s_add_u32 {S_T1}, {S_T1}, {WS_HF}
    buffer_load_dword v28, v{va}, {SRD_C}, {S_T0} offen
    ''')


def bias_unpack(g):
    g(f'''
    v_lshlrev_b32 v16, 16, v28
    v_lshlrev_b32 v17, 16, v28
    v_and_b32 v18, 0xffff0000, v28
    v_and_b32 v19, 0xffff0000, v28
    ''')


def gen(stamps=False, nt='nt', opts=None):
    g = G(stamps, nt, opts)
    o = g.o
    global WS_H1, WS_H2, WS_H3P, WS_HF
    WS_H1 = o.get('ah1', 0x10) << 12
    WS_H2 = o.get('ah2', 0x30) << 12
    WS_H3P = o.get('ah3p', 0x40) << 12
    WS_HF = o.get('ahf', 0x60) << 12
    hdr = open('cdna_kernels/' + NAME + '.s.ref').read().split('\n')
    for line in hdr:
        if line.startswith('; @launch'):
            break
        g.L.append(line)
    g.L.append(f'; @launch grid=(256,1,1) block=(576,1,1) lds={LDS_BYTES}')
    g.L.append('.amdgcn_target "amdgcn-amd-amdhsa--gfx950"')
    g.L.append('.text')
    g.L.append(f'.globl {NAME}_kernel')
    g.L.append('.p2align 12')
    g.L.append(f'.type {NAME}_kernel,@function')
    g.L.append(f'{NAME}_kernel:')
    LNW = o.get('lnw', 3)
    NT = lambda k, d=0: 'nt' if o.get(k, d) else ''
    if o.get('skew'):
        g('''
        s_and_b32 s3, s2, 7
        s_lshl_b32 s3, s3, 2
        s_lshr_b32 s3, 0x679b3000, s3
        s_and_b32 s3, s3, 15
        L_skew:
        s_cmp_eq_u32 s3, 0
        s_cbranch_scc1 L_skew2
        s_sleep 2
        s_sub_u32 s3, s3, 1
        s_branch L_skew
        L_skew2:
        ''')
    g.stamp(0)
    if o.get('hold'):
        g('s_memrealtime s[92:93]')

    def clear_stamps(k0=2):
        if stamps:
            for k in range(k0, 16):
                g(f's_mov_b32 s{64+2*k}, 0')
    g(f"""
    s_load_dwordx2 s[8:9], s[0:1], 16
    s_load_dwordx2 s[20:21], s[0:1], 24
    s_load_dwordx2 s[16:17], s[0:1], 0
    s_load_dwordx2 s[12:13], s[0:1], 104
    s_cmp_ge_u32 s2, 256
    s_cbranch_scc1 L_EXIT
    """)
    lane_consts(g)
    g(f"""
    s_mov_b32 s11, 0x20000
    s_mov_b32 s10, {576*8192}
    s_mov_b32 s23, s11
    s_mov_b32 s22, {512*8192}
    s_mov_b32 s15, s11
    s_mov_b32 s14, {WS_SIZE}
    s_cmp_ge_u32 s2, 128
    s_cbranch_scc1 L_Y
    """)
    r1, r2, r3 = o.get('r1', 3), o.get('r2', 1), o.get('r3', 2)
    g(f"""
    s_mov_b32 s19, s11
    s_movk_i32 s18, 2304
    s_bfe_u32 {S_J}, s2, 0x20003
    """)
    set_role(g, 0, ph_only=True)
    g(f"""
    v_lshlrev_b32 v8, 1, v2
    v_xor_b32 v8, v8, v3
    v_lshlrev_b32 v135, 4, v8
    v_lshl_add_u32 v4, v2, 13, v135
    s_mul_i32 {S_OFF}, {S_J}, 9
    s_add_u32 {S_OFF}, {S_OFF}, {S_WAVE}
    s_lshl_b32 {S_OFF}, {S_OFF}, 9
    s_add_u32 {S_OFF}, {S_OFF}, {S_PH}
    s_lshl_b32 {S_OFF}, {S_OFF}, 8
    s_mul_i32 m0, {S_WAVE}, 4608
    s_mov_b32 {S_T3}, 32768
    s_cmp_eq_u32 {S_WAVE}, {LNW}
    s_cbranch_scc0 L_X_nox
    s_and_b32 {S_Y}, s2, 31
    s_mul_i32 {S_CG}, {S_Y}, 43
    s_lshr_b32 {S_CG}, {S_CG}, 7
    s_mul_i32 {S_RS}, {S_CG}, 3
    s_sub_u32 {S_RS}, {S_Y}, {S_RS}
    s_mul_i32 {S_T1}, {S_J}, 288
    s_mul_i32 {S_T0}, {S_RS}, 384
    """)
    layernorm_loads(g, S_T1, S_T0)
    g('L_X_nox:')
    g('s_waitcnt lgkmcnt(0)')
    for u in range(4):
        g(f'buffer_load_dwordx4 v4, {SRD_A}, {S_OFF} offen {NT("qnt", 1)} lds')
        if u < 3:
            g('s_addk_i32 m0, 1152')
            g(f's_add_u32 {S_OFF}, {S_OFF}, {S_T3}')
    g('s_branch L_X2')
    g('L_Y:')
    cnt = 'nt' if o.get('cnt') else ''
    yk = o.get('yk', 32)
    yq = o.get('yq', 22)
    yqa = o.get('yqa', 10)
    lanes = lambda n: (f's_mov_b64 exec, {hex((1 << n) - 1)}' if n < 32 else f's_mov_b32 exec_hi, {hex((1 << (n-32)) - 1)}')
    g(f"""
    s_cmp_eq_u32 {S_WAVE}, 0
    s_cbranch_scc0 L_nopf
    s_getpc_b64 {S_PC}
    s_bfe_u32 {S_T0}, s2, 0x20003
    s_mul_i32 {S_T0}, {S_T0}, 3456
    v_lshl_add_u32 v8, v0, 7, {S_T0}
    s_mov_b64 exec, 0x7ffffff
    global_load_dword v30, v8, {S_PC} offset:512
    s_mov_b64 exec, -1
    L_nopf:
    v_lshrrev_b32 v8, 1, v0
    v_and_b32 v9, 1, v0
    v_lshlrev_b32 v9, 7, v9
    v_lshl_add_u32 v8, v8, 13, v9
    s_bfe_u32 {S_T2}, s2, 0x40003
    s_cmp_lt_u32 {S_WAVE}, 4
    s_cbranch_scc0 L_Y_nk
    s_add_u32 {S_T1}, s2, {S_WAVE}
    s_and_b32 {S_T1}, {S_T1}, 7
    s_lshl3_add_u32 {S_T1}, {S_WAVE}, {S_T1}
    s_and_b32 {S_T0}, {S_T1}, 3
    s_cmp_eq_u32 {S_T0}, 1
    s_cselect_b32 {S_T4}, {yq}, {yqa}
    s_lshr_b32 {S_T0}, {S_T2}, 2
    s_mul_i32 {S_T0}, {S_T0}, 144
    s_and_b32 {S_T3}, {S_T2}, 3
    s_sub_u32 {S_T3}, {S_T3}, 4
    s_mul_i32 {S_T3}, {S_T3}, {S_T4}
    s_add_u32 {S_T0}, {S_T0}, {S_T3}
    s_add_u32 {S_T0}, {S_T0}, 144
    s_lshl_b32 {S_T0}, {S_T0}, 5
    s_add_u32 {S_T0}, {S_T0}, {S_T1}
    s_lshl_b32 {S_T0}, {S_T0}, 8
    s_lshl_b32 {S_T4}, {S_T4}, 1
    s_bfm_b64 exec, {S_T4}, 0
    s_waitcnt lgkmcnt(0)
    s_cbranch_execz L_Y_nq0
    buffer_load_dword v31, v8, {SRD_A}, {S_T0} offen
    L_Y_nq0:
    s_mov_b64 exec, -1
    s_lshl_b32 {S_T0}, {S_T2}, 10
    s_add_u32 {S_T0}, {S_T0}, {S_T1}
    s_lshl_b32 {S_T0}, {S_T0}, 8
    {lanes(2*yk) if yk < 32 else ''}
    {f'buffer_load_dword v31, v8, {SRD_B}, {S_T0} offen' if yk else ''}
    L_Y_nk:
    """)
    g(f"""
    L_Y_nq:
    s_mov_b64 exec, -1
    s_waitcnt lgkmcnt(0)
    s_load_dwordx2 s[8:9], s[0:1], 8
    s_branch L_Y2
    """)
    g('L_X2:')
    set_role(g, r1, ph_only=True)
    g(f"""
    s_load_dword {S_EP}, s[12:13], 0
    v_lshlrev_b32 v8, 2, v2
    v_xor_b32 v8, v8, v3
    v_lshlrev_b32 v8, 4, v8
    v_lshl_add_u32 v5, v2, 13, v8
    s_cmp_eq_u32 {S_WAVE}, 8
    s_cselect_b32 {S_T1}, {LNW}, {S_WAVE}
    s_lshl3_add_u32 {S_T0}, {S_J}, {S_T1}
    s_lshl_b32 {S_T0}, {S_T0}, 9
    s_add_u32 {S_T0}, {S_T0}, {S_PH}
    s_lshl_b32 {S_OFF}, {S_T0}, 8
    s_mul_i32 {S_T0}, {S_T1}, 4160
    s_add_u32 m0, {S_T0}, {LX_WUK}
    s_cmp_eq_u32 {S_T1}, {LNW}
    s_barrier
    s_cbranch_scc1 L_X_nouk
    """)

    def wuk_dma():
        for u in range(4):
            g(f'buffer_load_dwordx4 v5, {SRD_B}, {S_OFF} offen {NT("knt", 1)} lds')
            if u < 3:
                g('s_addk_i32 m0, 1040')
                g(f's_add_u32 {S_OFF}, {S_OFF}, {S_T3}')
    xk = o.get('xk', 9)
    if xk != 9:
        g(f's_waitcnt vmcnt({xk})')
    wuk_dma()
    g('L_X_nouk:')
    g.stamp(1)
    clear_stamps()
    post = []
    g('s_load_dwordx2 s[8:9], s[0:1], 64')
    g('s_movk_i32 s10, 9216')
    post += srd(g, SRD_C, 32, 512 * 8192)
    post += srd(g, SRD_W1, 56, 0 if o.get('now1') else 576 * 9216)
    post += srd(g, SRD_O, 72, 4608 * 1152)
    post += srd(g, SRD_B2, 80, 1152)
    post += srd(g, SRD_OUT, 88, 2304)
    for p in post:
        g(p)
    misc_consts(g)
    set_role(g, 0)
    g(f"""
    s_and_b32 {S_Y}, s2, 31
    s_mul_i32 {S_CG}, {S_Y}, 43
    s_lshr_b32 {S_CG}, {S_CG}, 7
    s_mul_i32 {S_RS}, {S_CG}, 3
    s_sub_u32 {S_RS}, {S_Y}, {S_RS}
    s_add_u32 {S_SPLIT}, {S_PH}, {r3}
    s_and_b32 {S_SPLIT}, {S_SPLIT}, 3
    s_lshl2_add_u32 {S_CG}, {S_CG}, {S_SPLIT}
    s_lshl2_add_u32 {S_SPLIT}, {S_SPLIT}, {S_Y}
    s_add_u32 {S_SPLIT}, {S_SPLIT}, 101
    v_lshlrev_b32 v136, 3, v0
    s_lshl3_add_u32 {S_KEEP}, {S_CU}, {S_WAVE}
    s_lshl_b32 {S_KEEP}, {S_KEEP}, 7
    s_add_u32 {S_KEEP}, {S_KEEP}, {WS_H1}
    s_waitcnt lgkmcnt(0)
    """)
    make_tag(g)
    g(f"""
    s_cmp_eq_u32 {S_WAVE}, 8
    s_cbranch_scc1 L_X_w8
    s_cmp_eq_u32 {S_WAVE}, {LNW}
    s_cbranch_scc0 L_X_noln
    """)
    layernorm_addr(g, LX_XN)
    g('s_waitcnt vmcnt(4)')
    layernorm_stats(g)
    layernorm_slice(g, 22, 0)
    layernorm_slice(g, 128, 128)
    g('L_X_noln:')
    alpha_addr(g, 7, S_WAVE)
    set_role(g, r1)
    g(f"""
    v_and_b32 v8, 1, v0
    v_lshlrev_b32 v9, 9, v8
    v_lshl_add_u32 v10, v2, 4, v9
    v_add_u32 v10, {LX_XN}, v10
    v_mov_b32 v34, 0
    v_mov_b32 v35, 0
    s_waitcnt lgkmcnt(0)
    s_barrier
    """)
    for s in range(5):
        g(f'ds_read_b128 {R(36+4*s)}, v10 offset:{64*s}')

    def q1(lnw):
        if lnw:
            g(f"""
            s_cmp_eq_u32 {S_WAVE}, {LNW}
            s_cbranch_scc0 L_X_q1a
            s_waitcnt vmcnt(0)
            L_X_q1a:
            """)
        g('s_waitcnt vmcnt(4)')
        g('s_barrier')
        g.stamp(2)
        for s in range(5):
            g(f'ds_read_b64_tr_b16 {R(16+4*s,2)}, v7 offset:{s*9216}')
            if s < 4:
                g(f'ds_read_b64_tr_b16 {R(18+4*s,2)}, v7 offset:{s*9216+4608}')
        g.stwait()
        for s in range(5):
            g(f's_waitcnt lgkmcnt({max(7-2*s, 0)})')
            c = '0' if s == 0 else R(12)
            g(f'{MF} {R(12)}, {R(36+4*s)}, {R(16+4*s)}, {c}')
        g(f"""
        s_nop 6
        s_mov_b64 exec, 0xffff
        v_bfi_b32 v138, {S_MASK}, v12, v6
        v_bfi_b32 v139, {S_MASK}, v13, v6
        buffer_store_dwordx2 v[138:139], v136, {SRD_WS}, {S_KEEP} offen
        s_mov_b64 exec, -1
        s_or_b32 {S_KEEP}, {S_KEEP}, {WS_SLOW}
        """)
        g.stamp(3)
    slowst = f"""
    s_mov_b64 exec, 0xffff
    buffer_store_dwordx2 v[138:139], v136, {SRD_WS}, {S_KEEP} offen sc1
    s_mov_b64 exec, -1
    """
    assert LNW < 4
    g(f"""
    s_cmp_lt_u32 {S_WAVE}, 4
    s_cbranch_scc0 L_X_h1
    """)
    g(f"""
    v_lshrrev_b32 v8, 2, v3
    v_mul_u32_u24 v8, 2080, v8
    v_and_b32 v9, 3, v0
    v_lshl_add_u32 v8, v9, 8, v8
    v_lshl_add_u32 v8, v2, 4, v8
    s_mul_i32 {S_T0}, {S_WAVE}, 8320
    s_add_u32 {S_T0}, {S_T0}, {LX_WUK}
    v_add_u32 v8, {S_T0}, v8
    v_lshlrev_b32 v9, 6, v9
    v_add_u32 v56, v8, v9
    v_xor_b32 v57, 64, v9
    v_add_u32 v57, v8, v57
    v_xor_b32 v58, 0x80, v9
    v_add_u32 v58, v8, v58
    v_xor_b32 v59, 0xc0, v9
    v_add_u32 v59, v8, v59
    v_and_b32 v8, 1, v0
    v_mul_u32_u24 v9, 272, v8
    v_lshl_add_u32 v9, v2, 4, v9
    v_add_u32 v61, {LX_QP}, v9
    v_lshlrev_b32 v8, 15, v8
    v_lshl_add_u32 v62, v2, 4, v8
    s_lshl2_add_u32 {S_T2}, {S_CU}, {S_WAVE}
    s_lshl_b32 {S_T2}, {S_T2}, 6
    s_add_u32 {S_T2}, {S_T2}, {WS_H2}
    s_mov_b32 s48, 0x00030003
    s_mov_b32 s49, 0x00030003
    """)
    set_role(g, r2)
    g(f"""
    v_lshl_add_u32 v4, v2, 17, v135
    s_lshl_b32 {S_OFF}, {S_J}, 5
    s_add_u32 {S_OFF}, {S_OFF}, {S_WAVE}
    s_lshl_b32 {S_OFF}, {S_OFF}, 7
    s_add_u32 {S_OFF}, {S_OFF}, {S_PH}
    s_lshl_b32 {S_OFF}, {S_OFF}, 8
    s_mul_i32 {S_T0}, {S_WAVE}, 9216
    s_add_u32 m0, {S_T0}, {LX_WUV}
    s_nop 0
    """)
    ne0 = o.get('ne0', 0)

    def wuv_dma(a, b):
        for u in range(a, b):
            g(f'buffer_load_dwordx4 v4, {SRD_C}, {S_OFF} offen {NT("x2nt", 1)} lds')
            if u < 7:
                g('s_addk_i32 m0, 1152')
                g(f's_add_u32 {S_OFF}, {S_OFF}, {61*8192 if u == 3 else 8192}')
    q1(True)
    g('s_waitcnt vmcnt(0)')
    g('s_barrier')
    areg = lambda s, t: 64 + 8 * s + 4 * t
    for s in range(4):
        for t in range(2):
            g(f'ds_read_b128 {R(areg(s,t))}, v{56+s} offset:{t*1040}')
    g.stwait()
    g('s_barrier')
    for s in range(4):
        g(f'ds_read_b128 {R(36+4*s)}, v61 offset:{s*64}')
    for s in range(4):
        g(f's_waitcnt lgkmcnt({3-s})')
        for t in range(2):
            c = '0' if s == 0 else R(20 + 4 * t)
            g(f'{MF} {R(20+4*t)}, {R(areg(s,t))}, {R(36+4*s)}, {c}')
    g(f"""
    s_nop 5
    s_mov_b64 exec, {S_EXC}
    v_cvt_pk_bf16_f32 v16, v20, v21
    v_cvt_pk_bf16_f32 v17, v22, v23
    v_cvt_pk_bf16_f32 v18, v24, v25
    v_cvt_pk_bf16_f32 v19, v26, v27
    """)
    for r in range(4):
        g(f'v_bfi_b32 v{16+r}, {S_MASK2}, v{16+r}, v6')
    g(f"""
    buffer_store_dwordx4 v[16:19], v62, {SRD_WS}, {S_T2} offen sc1
    """)
    g.stamp(5)
    g(slowst)
    op = str(o.get('op', 'x')).replace('x', '')
    for k, dch in enumerate(op):
        wuv_dma(ne0 + k, ne0 + k + 1)
        if dch != '9':
            opc = o.get('opc', 2)
            if opc:
                g(f's_and_b32 {S_T0}, {S_CG}, 3')
                g(f's_lshr_b32 {S_T0}, {opc}, {S_T0}')
                g(f's_and_b32 {S_T0}, {S_T0}, 1')
                g(f's_cbranch_scc1 L_X_nop{k}')
            g(f's_waitcnt vmcnt({dch})')
            g(f'L_X_nop{k}:')
    g('s_barrier')
    w1f = o.get('w1f', 1)
    if w1f:
        g('s_barrier')
    wuv_dma(ne0 + len(op), 8)
    g.stamp(6)
    g(f's_lshl_b32 {S_T0}, {S_WAVE}, 1')
    alpha_addr(g, 56, S_T0)
    g(f"""
    v_add_u32 v56, {LX_WUV}, v56
    v_xor_b32 v57, 32, v56
    s_lshl2_add_u32 {S_T4}, {S_H}, {S_WAVE}
    s_lshl2_add_u32 {S_T4}, {S_T4}, {S_J}
    s_lshl_b32 {S_T4}, {S_T4}, 8
    s_add_u32 {S_T4}, {S_T4}, {WS_H3P}
    v_and_b32 v8, 3, v0
    v_mul_u32_u24 v9, 272, v8
    v_lshl_add_u32 v9, v2, 4, v9
    v_add_u32 v60, {LX_CC}, v9
    s_and_b32 {S_B}, {S_WAVE}, 1
    s_lshr_b32 {S_HG}, {S_WAVE}, 1
    s_lshl1_add_u32 {S_B}, {S_B}, {S_HG}
    s_lshl2_add_u32 {S_T1}, {S_CU}, {S_B}
    s_lshl_b32 {S_T1}, {S_T1}, 12
    s_add_u32 {S_T1}, {S_T1}, {WS_H3}
    s_lshl_b32 {S_T0}, {S_B}, 6
    s_add_u32 {S_T0}, {S_T0}, {LX_WT}
    v_lshl_add_u32 v62, v2, 4, {S_T0}
    v_lshlrev_b32 v8, 4, v3
    v_lshl_add_u32 v96, v2, 10, v8
    v_lshl_add_u32 v8, v2, 3, v8
    s_mul_i32 {S_T5}, {S_WAVE}, 272
    s_add_u32 {S_T5}, {S_T5}, {LX_CC}
    v_add_u32 v97, {S_T5}, v8
    v_and_b32 v8, 1, v0
    v_lshlrev_b32 v8, 4, v8
    v_mov_b32 v9, 0xffff
    v_lshlrev_b32 v9, v8, v9
    """)
    for t in range(4):
        m = (3 << (2 * t)) * 0x01010101
        g(f's_mov_b32 vcc_lo, 0x{m:08x}')
        g(f's_mov_b32 vcc_hi, 0x{m:08x}')
        g(f'v_cndmask_b32 v{100+t}, 0, v9, vcc')
    mgate = o.get('mgate', 0)
    XR = [8, 9, 10, 20, 21, 22, 23, 28, 29, 30, 31, 60, 61, 62, 63, 96]
    if mgate:
        g(f"""
        s_lshr_b32 {S_T0}, {S_H}, 4
        s_lshl2_add_u32 {S_T0}, {S_T0}, {S_B}
        s_lshl_b32 {S_T0}, {S_T0}, 12
        s_and_b32 {S_T2}, {S_H}, 15
        s_lshl4_add_u32 {S_T0}, {S_T2}, {S_T0}
        s_add_u32 {S_T0}, {S_T0}, {WS_M + 8}
        s_add_u32 s54, s12, {S_T0}
        s_addc_u32 s55, s13, 0
        """)
    g('s_barrier')
    f1e = 1
    nxw = 0
    if f1e:
        if w1f:
            g('s_barrier')
        g(f's_waitcnt vmcnt({nxw})')
        g('s_barrier')
        g.stamp(7)

    def h3_loads():
        for u in range(4):
            g(f'buffer_load_dwordx4 {R(36+4*u)}, v96, {SRD_WS}, {S_T1} offen offset:{u*256} sc1')
    if mgate:
        sflag_issue(g, XR, S_PC, 256)
        sflag_wait(g, XR, S_PC, 256)
    else:
        g('s_barrier')
    h3_loads()
    g.stamp(8)
    g('s_waitcnt vmcnt(4)')
    g('s_barrier')
    g('ds_read_b128 v[20:23], v62')
    for s in range(4):
        for t in range(2):
            g(f'ds_read_b64_tr_b16 {R(64+8*s+4*t,2)}, v{56+t} offset:{s*9216}')
            g(f'ds_read_b64_tr_b16 {R(66+8*s+4*t,2)}, v{56+t} offset:{s*9216+4608}')
    g.stwait()
    g('s_waitcnt lgkmcnt(15)')
    for u in range(4):
        for t in range(4):
            g(f'v_and_b32 v{104+4*u+t}, v{20+u}, v{100+t}')
    lp = g.lab('h3')
    lp2 = g.lab('h3in')
    g(f's_branch {lp2}')
    g(f'{lp}:')
    h3_loads()
    spin_check(g)
    g(f'{lp2}:')
    for u in range(4):
        g(f's_waitcnt vmcnt({3-u})')
        for r in range(4):
            g(f'v_xor_b32 v{36+4*u+r}, {S_TAG2}, v{36+4*u+r}')
        or_chain(g, 8, range(36 + 4 * u, 40 + 4 * u), u == 0)
        c = '0' if u == 0 else R(12)
        g(f'{MF} {R(12)}, {R(104+4*u)}, {R(36+4*u)}, {c}')
    g(f"""
    v_and_b32 v8, 0x10001, v8
    v_cmp_ne_u32 vcc, 0, v8
    s_nop 3
    s_cbranch_vccnz {lp}
    s_mov_b32 exec_hi, 0
    v_cvt_pk_bf16_f32 v12, v12, v13
    v_cvt_pk_bf16_f32 v13, v14, v15
    ds_write_b64 v97, v[12:13]
    s_mov_b32 exec_hi, -1
    """)
    g.stamp(9)
    g('s_waitcnt lgkmcnt(0)')
    g('s_barrier')
    for s in range(4):
        g(f'ds_read_b128 {R(36+4*s)}, v60 offset:{s*64}')
    g('s_mov_b32 vcc_lo, 0xffff0000')
    g('s_mov_b32 vcc_hi, 0')
    for s in range(4):
        g(f's_waitcnt lgkmcnt({3-s})')
        for t in range(2):
            c = '0' if s == 0 else R(12 + 4 * t)
            g(f'{MF} {R(12+4*t)}, {R(36+4*s)}, {R(64+8*s+4*t)}, {c}')
    g(f"""
    s_nop 5
    s_mov_b32 exec_hi, 0
    v_add_f32 v12, v12, v14
    v_add_f32 v13, v13, v15
    v_add_f32 v16, v16, v18
    v_add_f32 v17, v17, v19
    v_cndmask_b32 v12, v12, v16, vcc
    v_cndmask_b32 v13, v13, v17, vcc
    v_bfi_b32 v12, {S_MASK}, v12, v6
    v_bfi_b32 v13, {S_MASK}, v13, v6
    buffer_store_dwordx2 v[12:13], v136, {SRD_WS}, {S_T4} offen {'sc1' if o.get('noloc3') else ''}
    """)
    g.stamp(10)
    if o.get('one', 0):
        for k in range(o.get('rb', 2)):
            g('s_waitcnt vmcnt(0)')
            g(f'buffer_load_dwordx2 v[12:13], v136, {SRD_WS}, {S_T4} offen sc1')
        g('s_waitcnt vmcnt(0)')
    else:
        g(f's_or_b32 {S_T4}, {S_T4}, {WS_SLOW}')
    if not o.get('noloc3'):
        g(f'buffer_store_dwordx2 v[12:13], v136, {SRD_WS}, {S_T4} offen sc1')
    g('s_mov_b32 exec_hi, -1')
    g('s_branch L_X_post')
    g('L_X_h1:')
    xt = o.get('xt', 0)
    xtpos = o.get('xtpos', 0)

    def xtouch():
        g(f"""
        s_load_dwordx2 s[54:55], s[0:1], 8
        s_and_b32 {S_T0}, s2, 7
        s_lshr_b32 {S_T1}, s2, 4
        s_lshl3_add_u32 {S_T0}, {S_T0}, {S_T1}
        s_bfe_u32 {S_T1}, s2, 0x10003
        s_lshl1_add_u32 {S_T0}, {S_T0}, {S_T1}
        s_lshl2_add_u32 {S_T0}, {S_T0}, {S_WAVE}
        s_lshl_b32 {S_T0}, {S_T0}, 14
        s_sub_u32 {S_T0}, {S_T0}, {3*16384 + xt*1024}
        v_lshl_add_u32 v8, v0, 7, {S_T0}
        s_waitcnt lgkmcnt(0)
        """)
        left = xt * 8
        if left < 64:
            g(f's_mov_b64 exec, {hex((1 << left) - 1)}' if left < 32 else f's_mov_b32 exec_hi, {hex((1 << (left-32)) - 1)}')
        g('global_load_dword v30, v8, s[54:55]')
        g('s_mov_b64 exec, -1')
    if xt and xtpos == 0:
        xtouch()
    f2pos = o.get('f2pos', 4)
    ne = o.get('ne', 0)
    flag_regs = f"""
    v_mov_b32 v32, v6
    v_mov_b32 v33, v6
    v_mov_b32 v34, v6
    v_mov_b32 v35, v6
    s_lshl_b32 {S_T4}, {S_CU}, 7
    s_add_u32 {S_T4}, {S_T4}, {WS_F2}
    """
    fl = f"""
    s_mov_b64 exec, 0xff
    buffer_store_dwordx4 v[32:35], v1, {SRD_WS}, {S_T4} offen sc1
    s_mov_b64 exec, -1
    """
    gather32_ldsaddr(g, 60, LX_QP - 256, 272)
    g(f"""
    v_lshl_add_u32 v60, {S_WAVE}, 6, v60
    v_lshlrev_b32 v8, 4, v3
    v_lshl_add_u32 v61, v2, 10, v8
    s_lshl4_add_u32 {S_T2}, {S_H}, {S_WAVE}
    s_lshl_b32 {S_T2}, {S_T2}, 8
    s_add_u32 {S_T2}, {S_T2}, {WS_H1 - 1024}
    s_sub_u32 {S_T5}, {S_WAVE}, 4
    s_mul_i32 {S_T0}, {S_T5}, 9
    """)
    omega_src(g, 64, 9, S_T0)
    g(f"""
    v_mul_u32_u24 v9, 9216, v2
    v_add_u32 v5, v135, v9
    s_cmp_lt_u32 {S_Y}, 27
    s_cbranch_scc1 L_X_a1
    s_lshl_b32 m0, {S_T0}, 10
    s_mul_i32 {S_OFF}, {S_SPLIT}, 36864
    s_add_u32 {S_OFF}, {S_OFF}, m0
    s_branch L_X_a2
    L_X_a1:
    s_mul_i32 {S_OFF}, {S_RS}, 48
    s_add_u32 {S_OFF}, {S_OFF}, {S_T5}
    s_mul_i32 {S_OFF}, {S_OFF}, {4*9216}
    s_lshl_b32 {S_T0}, {S_CG}, 8
    s_add_u32 {S_OFF}, {S_OFF}, {S_T0}
    s_mul_i32 m0, {S_T5}, 1152
    s_mov_b32 {S_T3}, {16*9216}
    L_X_a2:
    """)
    q1(False)

    def h1_fallback():
        g(f"""
        s_cbranch_scc1 L_X_nfb
        s_waitcnt vmcnt(0)
        s_and_b32 {S_T1}, {S_KEEP}, 0xfffffc00
        s_lshl_b32 {S_T0}, {S_T5}, 8
        s_add_u32 {S_T1}, {S_T1}, {S_T0}
        s_andn2_b32 {S_T0}, {S_T1}, {WS_SLOW}
        s_mov_b64 exec, 0xffff
        buffer_load_dwordx4 v[20:23], v1, {SRD_WS}, {S_T0} offen sc1
        s_waitcnt vmcnt(0)
        buffer_store_dwordx4 v[20:23], v1, {SRD_WS}, {S_T1} offen sc1
        s_mov_b64 exec, -1
        L_X_nfb:
        """)
    h1e = o.get('h1e', 1)
    if h1e:
        def b1b():
            g('s_waitcnt vmcnt(1)')
            g('s_barrier')
            g.stamp(12)
        if h1e == 2:
            g('s_waitcnt vmcnt(1)')
        if h1e == 3:
            g('s_waitcnt vmcnt(0)')
        gather32(g, 61, S_T2, 60, stamp=4, dual=h1_fallback, pre=b1b)
    else:
        g('s_waitcnt vmcnt(0)')
        g('s_barrier')
        g.stamp(12)
        gather32(g, 61, S_T2, 60, stamp=4, dual=h1_fallback)
    g('s_waitcnt lgkmcnt(0)')
    g('s_barrier')
    g(slowst)
    if xt and xtpos == 1:
        xtouch()
    g(f's_cmp_lt_u32 {S_Y}, 27')
    g('s_cbranch_scc0 L_X_nof1')
    for u in range(12):
        if u == ne:
            g('s_barrier')
        g(f'buffer_load_dwordx4 v5, {SRD_W1}, {S_OFF} offen {NT("x2nt", 1)} lds')
        if u < 11:
            g('s_addk_i32 m0, 4608')
            g(f's_add_u32 {S_OFF}, {S_OFF}, {S_T3}')
    if w1f:
        g('s_barrier')
    g('s_barrier')
    g.stamp(6)
    g(f's_lshl_b32 {S_T0}, {S_T5}, 1')
    alpha_addr(g, 56, S_T0)
    for s in range(6):
        g(f'ds_read_b128 {R(140+4*s)}, v10 offset:{1024+64*s}')
    g(f"""
    v_xor_b32 v57, 32, v56
    s_lshl2_add_u32 {S_T2}, {S_CG}, {S_T5}
    s_lshl2_add_u32 {S_T2}, {S_T2}, {S_RS}
    s_lshl_b32 {S_T2}, {S_T2}, 8
    s_add_u32 {S_T2}, {S_T2}, {WS_HF}
    """)
    if stamps and o.get('st7', 0):
        g('s_waitcnt vmcnt(0)')
        g.stamp(7)
    if not f1e:
        g('s_barrier')
    g('s_waitcnt vmcnt(0)')
    g('s_barrier')
    for s in range(6):
        for t in range(2):
            g(f'ds_read_b64_tr_b16 {R(80+8*s+4*t,2)}, v{56+t} offset:{s*9216}')
            g(f'ds_read_b64_tr_b16 {R(82+8*s+4*t,2)}, v{56+t} offset:{s*9216+4608}')
    f1pos = o.get('f1pos', 0)
    if f1pos == 1:
        g('s_barrier')
    g.stwait()
    for s in range(6):
        g(f's_waitcnt lgkmcnt({min(15, 20-4*s)})')
        for t in range(2):
            c = '0' if s == 0 else R(12 + 4 * t)
            g(f'{MF} {R(12+4*t)}, {R(140+4*s)}, {R(80+8*s+4*t)}, {c}')
    g(f"""
    s_mov_b32 vcc_lo, 0xffff0000
    s_mov_b32 vcc_hi, 0
    s_nop 4
    s_mov_b32 exec_hi, 0
    v_cndmask_b32 v12, v12, v16, vcc
    v_cndmask_b32 v13, v13, v17, vcc
    v_bfi_b32 v12, {S_MASK}, v12, v6
    v_bfi_b32 v13, {S_MASK}, v13, v6
    buffer_store_dwordx2 v[12:13], v136, {SRD_WS}, {S_T2} offen sc1
    s_mov_b32 exec_hi, -1
    """)
    g.stamp(11)
    if w1f:
        g('s_barrier')
    if f1e:
        g('s_barrier')
        g('s_barrier')
    if f1pos == 0:
        g('s_barrier')
    g('s_branch L_X_post')
    g('L_X_nof1:')
    g(f"""
    s_cmp_lt_u32 {S_Y}, 31
    s_cbranch_scc0 L_EXIT
    L_X_f2s:
    """)
    for u in range(9):
        if u == ne:
            g('s_barrier')
        g(f'buffer_load_dwordx4 v{64+u}, {SRD_O}, {S_OFF} offen offset:{(u&3)*1024} {NT("x2nt", 1)} lds')
        if u & 3 == 3:
            g('s_addk_i32 m0, 4096')
            g(f's_addk_i32 {S_OFF}, 4096')

    def f2x_prep(nb):
        g(f's_lshl_b32 {S_CG}, {S_T5}, 1')
        omega_addr(g, 56, S_CG)
        for k in range(nb):
            omega_reads(g, 56, 80 + 16 * k, LX_WO + 128 * k)
        bias_prep(g, S_SPLIT, 63, SRD_A)
        g(f's_mov_b32 {S_RS}, {S_T1}')
        act_addr(g, 61, LX_ACT)
        gather32_ldsaddr(g, 60, LX_ACT, 64)
        g(f"""
        v_lshl_add_u32 v60, {S_T5}, 7, v60
        v_lshl_add_u32 v61, {S_T5}, 7, v61
        s_mul_i32 {S_T3}, {S_SPLIT}, 4608
        s_lshl_b32 {S_T4}, {S_T5}, 10
        s_add_u32 {S_T3}, {S_T3}, {S_T4}
        s_add_u32 {S_T3}, {S_T3}, {WS_H4}
        s_mov_b32 s98, 0xffff0000
        s_mov_b32 s99, 0xffff0000
        s_mov_b32 s48, 0
        s_mov_b32 s49, -1
        """)

    def f2x_run(nb):
        g('s_waitcnt vmcnt(0)')
        bias_unpack(g)
        gather32(g, 1, S_RS, 60, act=True, pre=lambda: g('s_barrier'))
        g('ds_read_b128 v[20:23], v61')
        g('s_waitcnt lgkmcnt(0)')
        for k in range(nb):
            for t in range(4):
                g(f'{MF} {R(112+16*k+4*t)}, {R(20)}, {R(80+16*k+4*t)}, 0')
        g('s_nop 7')
        for k in range(nb):
            a = 112 + 16 * k
            g(f"""
            v_cndmask_b32 v{a}, v{a}, v{a+4}, {S_CMP}
            v_cndmask_b32 v{a+1}, v{a+1}, v{a+5}, {S_CMP}
            v_cndmask_b32 v{a+8}, v{a+8}, v{a+12}, {S_CMP}
            v_cndmask_b32 v{a+9}, v{a+9}, v{a+13}, {S_CMP}
            v_cndmask_b32 v{a}, v{a}, v{a+8}, {S_EXC}
            v_cndmask_b32 v{a+1}, v{a+1}, v{a+9}, {S_EXC}
            v_bfi_b32 v{a}, {S_MASK}, v{a}, v6
            v_bfi_b32 v{a+1}, {S_MASK}, v{a+1}, v6
            buffer_store_dwordx2 v[{a}:{a+1}], v55, {SRD_WS}, {S_T3} offen offset:{512*k} sc1
            """)
        g.stamp(12)
        g('s_branch L_END')
    g(f"""
    v_mov_b32 v55, v136
    {'s_barrier' if w1f else ''}
    s_barrier
    s_waitcnt vmcnt(0)
    {'s_barrier' if w1f else ''}
    s_barrier
    """)
    f2x_prep(2)
    g('s_barrier')
    g('s_barrier')
    f2x_run(2)
    g('L_X_w8:')
    pt4 = o.get('pt4', 3)

    def touch4():
        g(f"""
        s_lshr_b32 {S_T0}, s2, 3
        s_mul_i32 {S_T0}, {S_T0}, {9*4608}
        s_add_u32 {S_T0}, {S_T0}, {WS_H4}
        s_and_b32 {S_T1}, s2, 7
        v_mul_u32_u24 v8, 52, v0
        v_lshrrev_b32 v8, 8, v8
        v_mul_u32_u24 v9, 5, v8
        v_sub_u32 v9, v0, v9
        v_lshl_add_u32 v9, v9, 3, {S_T1}
        v_cmp_gt_u32 vcc, 36, v9
        v_mul_u32_u24 v8, 4608, v8
        v_lshl_add_u32 v8, v9, 7, v8
        s_and_b32 exec_hi, vcc_hi, 0x1fff
        s_mov_b32 exec_lo, vcc_lo
        buffer_load_dword v45, v8, {SRD_WS}, {S_T0} offen sc1
        s_mov_b64 exec, -1
        """)
    set_role(g, r2)
    g(f"""
    v_lshlrev_b32 v62, 8, v0
    s_lshr_b32 {S_T2}, {S_H}, 4
    s_lshl_b32 {S_T2}, {S_T2}, 14
    s_and_b32 {S_T1}, {S_H}, 15
    s_lshl4_add_u32 {S_T2}, {S_T1}, {S_T2}
    s_add_u32 {S_T2}, {S_T2}, {WS_M}
    """)
    if o.get('k8', 0):
        wuk_dma()
        g('s_barrier')
        g('s_waitcnt vmcnt(4)')
        g('s_barrier')
    else:
        g('s_barrier')
        g('s_waitcnt vmcnt(0)')
        g('s_barrier')
        wuk_dma()
    g('s_waitcnt vmcnt(0)')
    g('s_barrier')
    g('s_barrier')
    touch4()
    g(f"""
    s_lshr_b32 {S_T0}, s2, 1
    s_and_b32 {S_T0}, {S_T0}, 60
    s_lshl_b64 exec, 15, {S_T0}
    buffer_load_dword v44, v62, {SRD_WS}, {S_T2} offen sc1
    s_and_b32 {S_T0}, s2, 7
    s_lshr_b32 {S_T1}, s2, 3
    s_lshl4_add_u32 {S_T0}, {S_T0}, {S_T1}
    s_lshl_b32 {S_T0}, {S_T0}, 10
    s_add_u32 {S_T1}, {S_T0}, {WS_H3P}
    s_mov_b64 exec, -1
    buffer_load_dwordx4 v[40:43], v1, {SRD_WS}, {S_T1} offen sc1
    s_lshl_b32 {S_T0}, s2, 10
    s_add_u32 {S_T1}, {S_T0}, {WS_HF}
    buffer_load_dwordx4 v[40:43], v1, {SRD_WS}, {S_T1} offen sc1
    s_barrier
    """)
    if w1f:
        g('s_barrier')
        g('s_barrier')
    g('s_barrier')
    g('s_barrier')
    g(f"""
    v_mov_b32 v55, v136
    s_mov_b32 {S_T5}, 4
    s_sub_u32 {S_T0}, {S_Y}, 27
    s_cmp_lt_u32 {S_T0}, 4
    s_cbranch_scc0 L_X_w8n
    """)
    f2x_prep(1)
    g('L_X_w8n:')
    g('s_setprio 3')
    mls = o.get('mls', 8)
    if mls:
        if o.get('ml1', 1):
            g(f'''
            buffer_load_dwordx3 v[16:18], v62, {SRD_WS}, {S_T2} offen sc1
            s_waitcnt vmcnt(0)
            v_cmp_ne_u32 vcc, {S_EP}, v18
            s_nop 1
            s_cbranch_vccz L_X_mlok
            ''')
        lp = g.lab('ml0')
        m = 0
        for k in range(mls):
            m |= 1 << (k * (64 // mls))
        g(f'''
        s_lshr_b32 {S_T0}, s2, 3
        s_mul_i32 {S_T0}, {S_T0}, 5
        s_and_b32 {S_T0}, {S_T0}, {64 // mls - 1}
        s_mov_b32 exec_lo, 0x{m & 0xffffffff:x}
        s_mov_b32 exec_hi, 0x{m >> 32:x}
        s_lshl_b64 exec, exec, {S_T0}
        {lp}:
        buffer_load_dword v18, v62, {SRD_WS}, {S_T2} offen offset:8 sc1
        ''')
        spin_check(g)
        g(f'''
        s_waitcnt vmcnt(0)
        v_cmp_ne_u32 vcc, {S_EP}, v18
        s_nop 1
        s_cbranch_vccnz {lp}
        s_mov_b64 exec, -1
        ''')
    lp = g.lab('ml')
    g(f'''
    {lp}:
    {'s_sleep ' + str(o['slp']) if o.get('slp') else ''}
    buffer_load_dwordx3 v[16:18], v62, {SRD_WS}, {S_T2} offen sc1
    ''')
    spin_check(g)
    g(f'''
    s_waitcnt vmcnt(0)
    v_cmp_ne_u32 vcc, {S_EP}, v18
    s_nop 1
    s_and_b64 exec, exec, vcc
    s_cbranch_scc1 {lp}
    L_X_mlok:
    {'' if mgate else 's_barrier'}
    s_mov_b64 exec, -1
    v_max_f32_dpp v20, v16, v16 row_ror:1 {DPPF}
    v_lshlrev_b32 v8, 2, v0
    v_add_u32 v8, {LX_WT}, v8
    v_max_f32_dpp v20, v20, v20 row_ror:2 {DPPF}
    s_nop 1
    v_max_f32_dpp v20, v20, v20 row_ror:4 {DPPF}
    s_nop 1
    v_max_f32_dpp v21, v20, v20 row_ror:8 {DPPF}
    v_max_f32_dpp v20, v20, v20 row_ror:8 {DPPF}
    s_nop 1
    v_permlane16_swap_b32 v20, v21
    v_max_f32 v20, v20, v21
    v_sub_f32 v16, v16, v20
    v_exp_f32 v16, v16
    s_nop 0
    v_mul_f32 v17, v16, v17
    s_nop 1
    v_add_f32_dpp v17, v17, v17 row_ror:1 {DPPF}
    s_nop 1
    v_add_f32_dpp v17, v17, v17 row_ror:2 {DPPF}
    s_nop 1
    v_add_f32_dpp v17, v17, v17 row_ror:4 {DPPF}
    s_nop 1
    v_add_f32_dpp v21, v17, v17 row_ror:8 {DPPF}
    v_add_f32_dpp v17, v17, v17 row_ror:8 {DPPF}
    s_nop 1
    v_permlane16_swap_b32 v17, v21
    v_add_f32 v17, v17, v21
    v_rcp_f32 v17, v17
    s_nop 0
    v_mul_f32 v16, v16, v17
    v_cvt_pk_bf16_f32 v16, v16, v16
    ds_write_b32 v8, v16
    s_waitcnt lgkmcnt(0)
    s_barrier
    s_setprio 0
    s_sub_u32 {S_T0}, {S_Y}, 27
    s_cmp_lt_u32 {S_T0}, 4
    s_cbranch_scc0 L_X_w8e
    ''')
    f2x_run(1)
    g(f"""
    L_X_w8e:
    s_barrier
    L_X_post:
    s_cmp_lt_u32 {S_Y}, 16
    s_cbranch_scc0 L_END
    """)
    g('L_X_final:')
    g(f'''
    s_lshr_b32 {S_T0}, s2, 5
    s_lshl4_add_u32 {S_CU}, {S_T0}, {S_Y}
    s_cmp_lt_u32 {S_CU}, 36
    s_cbranch_scc0 L_END
    {'s_barrier' if o.get('rb', 1) else ''}
    v_lshrrev_b32 v8, 3, v0
    v_mul_u32_u24 v8, 4608, v8
    v_and_b32 v9, 7, v0
    v_lshl_add_u32 v10, v9, 4, v8
    s_mul_i32 {S_T0}, {S_WAVE}, {16*4608}
    s_lshl_b32 {S_T1}, {S_CU}, 7
    s_add_u32 {S_T0}, {S_T0}, {S_T1}
    s_add_u32 {S_T0}, {S_T0}, {WS_H4}
    s_add_u32 {S_T1}, {S_T0}, {8*4608}
    s_lshl_b32 {S_T4}, {S_CU}, 5
    v_lshlrev_b32 v55, 1, v3
    v_and_b32 v8, 1, v2
    v_mul_u32_u24 v56, 1152, v8
    v_add_u32 v56, v56, v55
    buffer_load_ushort v57, v56, {SRD_X}, {S_T4} offen
    buffer_load_ushort v58, v55, {SRD_B2}, {S_T4} offen
    v_lshl_add_u32 v8, v9, 1, v8
    v_lshrrev_b32 v59, 1, v2
    v_lshl_add_u32 v8, v59, 4, v8
    v_mul_u32_u24 v8, 48, v8
    v_lshl_add_u32 v8, {S_WAVE}, 2, v8
    v_and_b32 v11, 31, v0
    v_mul_u32_u24 v11, 48, v11
    v_add_u32 v61, {LX_FIN}, v11
    v_lshl_add_u32 v60, v59, 4, v61
    v_add_u32 v59, {LX_FIN}, v8
    ''')
    h4s = o.get('h4s', 0)
    if h4s:
        if h4s == 1:
            for u, sr in enumerate((S_T0, S_T1)):
                g(f'buffer_load_dwordx4 {R(16+4*u)}, v10, {SRD_WS}, {sr} offen sc1')
        lp = g.lab('h40')
        nl = o.get('h4n', 1)
        m = 0
        for k in range(nl):
            m |= 1 << (8 * k)
        g(f'''
        s_mov_b32 exec_lo, 0x{m & 0xffffffff:x}
        s_mov_b32 exec_hi, 0x{m >> 32:x}
        {lp}:
        buffer_load_dword v24, v10, {SRD_WS}, {S_T0} offen sc1
        ''')
        spin_check(g)
        g(f'''
        s_waitcnt vmcnt(0)
        v_and_b32 v24, 0xfff, v24
        v_cmp_ne_u32 vcc, {S_TAG}, v24
        s_nop 1
        s_cbranch_vccnz {lp}
        s_mov_b64 exec, -1
        ''')
    lp = g.lab('h4')
    g(f'{lp}:')
    for u, sr in enumerate((S_T0, S_T1)):
        g(f'buffer_load_dwordx4 {R(16+4*u)}, v10, {SRD_WS}, {sr} offen sc1')
    spin_check(g)
    g('s_waitcnt vmcnt(0)')
    tagged_check(g, range(16, 24), 8)
    g(f'''
    v_pk_add_f32 v[16:17], v[16:17], v[20:21]
    v_pk_add_f32 v[18:19], v[18:19], v[22:23]
    s_cbranch_vccnz {lp}
    ''')
    g.stamp(13)
    g(f'''
    v_permlane32_swap_b32 v16, v17
    v_permlane32_swap_b32 v18, v19
    v_add_f32 v16, v16, v17
    v_add_f32 v18, v18, v19
    v_lshlrev_b32 v57, 16, v57
    v_lshlrev_b32 v58, 16, v58
    v_permlane16_swap_b32 v16, v18
    v_add_f32 v16, v16, v18
    v_add_f32 v57, v57, v58
    s_cmp_eq_u32 {S_WAVE}, 0
    v_add_f32_dpp v16, v16, v16 row_ror:8 {DPPF}
    ds_write_b32 v59, v16
    s_waitcnt lgkmcnt(0)
    s_barrier
    s_cbranch_scc0 L_END
    ds_read_b128 v[16:19], v60
    ds_read_b32 v20, v61 offset:32
    s_waitcnt lgkmcnt(1)
    v_pk_add_f32 v[16:17], v[16:17], v[18:19]
    v_add_f32 v16, v16, v17
    v_mov_b32 v17, v16
    s_waitcnt lgkmcnt(0)
    v_add_f32 v57, v57, v20
    v_permlane32_swap_b32 v16, v17
    v_add_f32 v16, v16, v17
    v_add_f32 v16, v16, v57
    v_cvt_pk_bf16_f32 v16, v16, v16
    s_mov_b32 exec_hi, 0
    buffer_store_short v16, v56, {SRD_OUT}, {S_T4} offen {'sc1' if o.get('osc1') else ''}
    ''')
    if o.get('hold'):
        g(f'''
        s_and_b32 s94, s2, 7
        s_lshr_b32 s94, {o.get('holdm', 1)}, s94
        s_and_b32 s94, s94, 1
        s_cbranch_scc0 L_nohold
        L_hold:
        s_memrealtime s[94:95]
        s_waitcnt lgkmcnt(0)
        s_sub_u32 s94, s94, s92
        s_cmp_lt_u32 s94, {o['hold']}
        s_cbranch_scc1 L_hold
        L_nohold:
        ''')
    g(f'''
    s_cmp_eq_u32 s2, 0
    s_cbranch_scc0 L_END
    v_mov_b32 v17, {S_EP}
    v_mov_b32 v18, 0
    buffer_store_dword v17, v18, {SRD_WS}, 0 offen {'sc1' if o.get('osc1') else ''}
    s_branch L_END
    ''')

    g('L_Y2:')
    clear_stamps(1)
    g(f"""
    s_mov_b32 s10, {2*4096*1024}
    s_sub_u32 {S_Y}, s2, 128
    s_bfe_u32 {S_HG}, s2, 0x10003
    s_and_b32 {S_T0}, s2, 7
    s_lshr_b32 {S_T1}, {S_Y}, 4
    s_lshl3_add_u32 {S_SPLIT}, {S_T0}, {S_T1}
    s_lshl1_add_u32 {S_OFF}, {S_SPLIT}, {S_HG}
    s_lshl2_add_u32 {S_OFF}, {S_OFF}, {S_WAVE}
    s_lshl_b32 {S_OFF}, {S_OFF}, 14
    s_mul_i32 m0, {S_WAVE}, 16896
    s_cmp_lt_u32 {S_WAVE}, 4
    s_waitcnt lgkmcnt(0)
    s_load_dword {S_EP}, s[12:13], 0
    s_cmp_eq_u32 {S_WAVE}, 5
    s_cbranch_scc0 L_Y_nh1
    s_lshr_b32 {S_T1}, {S_Y}, 3
    s_lshl4_add_u32 {S_T0}, {S_T0}, {S_T1}
    s_lshl_b32 {S_T0}, {S_T0}, 10
    s_add_u32 {S_T0}, {S_T0}, {WS_H1}
    buffer_load_dwordx4 v[16:19], v1, {SRD_WS}, {S_T0} offen sc1
    L_Y_nh1:
    s_cmp_lt_u32 {S_WAVE}, 4
    s_barrier
    s_cbranch_scc0 L_Y_noc
    """)
    nc0 = o.get('nc0', 8)

    def ckv_dma(a, b, yp=''):
        for n in range(a, b):
            k, u = n >> 2, n & 3
            w = n - a < len(yp) and yp[n - a] != '9'
            if w:
                g(f's_waitcnt vmcnt({yp[n-a]})')
            g(f'buffer_load_dwordx4 v1, {SRD_A}, {S_OFF} offen offset:{u*1024} {cnt} lds')
            if u < 3:
                g('s_addk_i32 m0, 32')
                g('s_nop 0')
            elif k < 7:
                g(f's_add_u32 m0, m0, {4128 + (48*1056 if k == 3 else 0)}')
                if k == 3:
                    g(f's_xor_b32 {S_OFF}, {S_OFF}, {0x1c000 if o.get("rev", 1) else 0x13000}')
                    g('s_barrier')
                else:
                    g(f's_addk_i32 {S_OFF}, {-4096 if (k > 3 and o.get("rev", 1)) else 4096}')
    ckv_dma(0, nc0, str(o.get('yp', '9')))
    g('L_Y_noc:')
    post = []
    post += srd(g, SRD_W1, 40, 0 if o.get('nowo') else 4096 * 1152)
    post += srd(g, SRD_C, 64, 9216)
    post += srd(g, SRD_O, 72, 0 if o.get('now2') else 4608 * 1152)
    for p in post:
        g(p)
    g(f"""
    s_lshr_b32 {S_B}, {S_SPLIT}, 5
    s_and_b32 {S_T0}, s2, 7
    s_lshr_b32 {S_T1}, {S_Y}, 3
    s_lshl4_add_u32 {S_CU}, {S_T0}, {S_T1}
    s_lshr_b32 {S_T2}, {S_T1}, 2
    """)
    phys_head(g, S_PH, S_T0, S_T2, S_T3)
    g(f"""
    s_and_b32 {S_T1}, {S_T1}, 3
    s_lshl2_add_u32 {S_PH}, {S_PH}, {S_T1}
    s_lshl2_add_u32 {S_H}, {S_T0}, {S_T1}
    """)
    misc_consts(g)
    g('s_waitcnt lgkmcnt(0)')
    make_tag(g)
    g(f"""
    s_cmp_eq_u32 {S_WAVE}, 8
    s_cbranch_scc1 L_Y_w8
    s_cmp_lt_u32 {S_WAVE}, 4
    s_cbranch_scc0 L_Y_nqk
    """)
    ckv_dma(nc0, 16)
    g(f'''
    v_mul_u32_u24 v8, 1056, v3
    v_lshl_add_u32 v8, v2, 4, v8
    s_mul_i32 {S_T0}, {S_WAVE}, 16896
    v_add_u32 v4, {S_T0}, v8
    v_add_u32 v7, 67584, v4
    v_add_u32 v5, {LY_Q}, v8
    v_lshlrev_b32 v13, 4, v3
    v_add_u32 v11, {LY_MX}, v13
    v_lshl_add_u32 v10, {S_WAVE}, 2, v11
    s_lshl_b32 {S_T0}, {S_WAVE}, 10
    s_add_u32 {S_T0}, {S_T0}, {LY_P}
    v_add_u32 v12, {S_T0}, v1
    s_mov_b32 {S_T1}, 0x{f2u(SCALE):08x}
    ''')

    def kread(t, ks):
        g(f'ds_read_b128 {R(40+8*ks+4*t)}, v{7 if t else 4} offset:{ks*64}')
    hb = o.get('hb', 16)
    kb = o.get('kb', 4)
    ckv_dma(16, 32)
    g('s_waitcnt vmcnt(16)')
    g.stamp(1)
    g('s_barrier')
    for ks in range(16):
        kread(0, ks)
    g(f's_waitcnt vmcnt({o.get("hw", 8)})')
    g('s_barrier')
    g('s_waitcnt vmcnt(0) lgkmcnt(0)')
    g.stamp(2)
    g.stwait()
    for ks in range(kb):
        kread(1, ks)
    g('s_barrier')
    order = [('q', k) for k in range(4)]
    nk = kb
    pos = {}
    seq = []

    def issue(item):
        seq.append(item)
        pos[item] = len(seq)
        if item[0] == 'q':
            g(f'ds_read_b128 {R(16 + 4*(item[1] & 3))}, v5 offset:{item[1]*64}')
        else:
            kread(1, item[1])
    for k in range(4):
        issue(('q', k))
        if nk <= k + 1 and nk < 16:
            issue(('k', nk))
            nk += 1
    for ks in range(16):
        q = 16 + 4 * (ks & 3)
        need = max(pos[('q', ks)], pos.get(('k', ks), 0))
        g(f's_waitcnt lgkmcnt({len(seq) - need})')
        for t in range(2):
            c = '0' if ks == 0 else R(32 + 4 * t)
            g(f'{MF} {R(32+4*t)}, {R(40+8*ks+4*t)}, {R(q)}, {c}')
        if ks + 4 < 16:
            issue(('q', ks + 4))
        if nk < 16:
            issue(('k', nk))
            nk += 1
        assert nk > min(ks + 1, 15)
    g(f'''
    s_nop 6
    v_max3_f32 v8, v32, v33, v34
    v_max3_f32 v8, v8, v35, v36
    v_max3_f32 v8, v8, v37, v38
    v_max_f32 v9, v8, v39
    v_max_f32 v8, v8, v39
    s_nop 1
    v_permlane16_swap_b32 v8, v9
    v_max_f32 v15, v8, v9
    v_max_f32 v8, v8, v9
    s_nop 1
    v_permlane32_swap_b32 v8, v15
    v_max_f32 v8, v8, v15
    ds_write_b32 v10, v8
    s_waitcnt lgkmcnt(0)
    s_barrier
    ds_read_b128 v[16:19], v11
    s_waitcnt lgkmcnt(0)
    v_max3_f32 v8, v16, v17, v18
    v_max_f32 v8, v8, v19
    v_mul_f32 v24, {S_T1}, v8
    ''')
    for r in range(8):
        g(f'v_fma_f32 v{32+r}, v{32+r}, {S_T1}, -v24')
    for r in range(8):
        g(f'v_exp_f32 v{32+r}, v{32+r}')
    for r in range(4):
        g(f'v_cvt_pk_bf16_f32 v{16+r}, v{32+2*r}, v{33+2*r}')
    g(f'''
    ds_write_b128 v12, v[16:19]
    v_pk_add_f32 v[32:33], v[32:33], v[34:35]
    v_pk_add_f32 v[36:37], v[36:37], v[38:39]
    v_pk_add_f32 v[32:33], v[32:33], v[36:37]
    v_add_f32 v8, v32, v33
    v_add_f32 v9, v32, v33
    s_nop 1
    v_permlane16_swap_b32 v8, v9
    v_add_f32 v15, v8, v9
    v_add_f32 v8, v8, v9
    s_nop 1
    v_permlane32_swap_b32 v8, v15
    v_add_f32 v8, v8, v15
    ds_write_b32 v10, v8 offset:256
    s_waitcnt lgkmcnt(0)
    s_barrier
    ''')
    g.stamp(6)
    n1 = o.get('n1', 6)
    n2 = o.get('n2', 3)
    rest = 36 - 4 * (n1 + n2)
    assert rest >= 0 and rest % 4 == 0
    n3 = rest // 4

    def w2_batch(first_sgpr, n, vsrc):
        for u in range(n):
            if u % 4 == 0:
                g(f's_lshl_b32 {S_T4}, {first_sgpr}, 10')
                g(f's_add_u32 m0, {S_T4}, {LY_WOA + (u>>2)*4096}')
                g(f's_mul_i32 {S_OFF}, {S_Y}, 36864')
                g(f's_add_u32 {S_OFF}, {S_OFF}, m0')
            g(f'buffer_load_dwordx4 v{vsrc+u}, {SRD_O}, {S_OFF} offen offset:{(u&3)*1024} {NT("wnt", 1)} lds')
    if n2 + n3:
        g(f's_mul_i32 {S_T5}, {S_WAVE}, {n2 + n3}')
        g(f's_add_u32 {S_T5}, {S_T5}, {4*n1}')
        omega_src(g, 40, n2 + n3, S_T5)
        w2_batch(S_T5, n2, 40)
        g(f's_add_u32 {S_T5}, {S_T5}, {n2}')
    no = o.get('no', 0)
    if no:
        assert n3 == 0
        g(f's_lshl_b32 {S_T0}, {S_WAVE}, 2')
        omega_src(g, 24, 4, S_T0)
        g(f"""
        s_lshl_b32 {S_T0}, {S_WAVE}, 12
        s_add_u32 m0, {S_T0}, {LY_WOB}
        s_mul_i32 {S_OFF}, {S_PH}, 36864
        s_add_u32 {S_OFF}, {S_OFF}, {S_T0}
        """)
        for u in range(4):
            if u == no:
                g('s_barrier')
            g(f'buffer_load_dwordx4 v{24+u}, {SRD_W1}, {S_OFF} offen offset:{u*1024} {NT("wnt", 1)} lds')
        if no == 4:
            g('s_barrier')
        g('s_branch L_Y_b5b')
    else:
        g('s_barrier')
        w2_batch(S_T5, n3, 40 + n2)
        g('s_branch L_Y_b5')
    g('L_Y_nqk:')
    g(f"""
    s_sub_u32 {S_T5}, {S_WAVE}, 4
    s_mul_i32 {S_T5}, {S_T5}, {n1}
    """)

    def pv_setup():
        if n1:
            omega_src(g, 24, n1, S_T5)
        g(f"""
        v_lshrrev_b32 v8, 2, v0
        v_mul_u32_u24 v8, 1056, v8
        v_and_b32 v9, 3, v0
        v_lshl_add_u32 v8, v9, 3, v8
        s_lshl_b32 {S_T0}, {S_WAVE}, 8
        s_sub_u32 {S_T0}, {S_T0}, 1024
        v_add_u32 v4, {S_T0}, v8
        v_add_u32 v5, 67584, v4
        v_add_u32 v12, {LY_P}, v1
        v_lshlrev_b32 v8, 4, v3
        v_lshl_add_u32 v13, v2, 18, v8
        s_lshl_b32 {S_T0}, {S_HG}, 20
        s_lshl_b32 {S_T3}, {S_WAVE}, 14
        s_add_u32 {S_T0}, {S_T0}, {S_T3}
        s_lshl_b32 {S_T3}, {S_SPLIT}, 8
        s_add_u32 {S_T0}, {S_T0}, {S_T3}
        s_add_u32 {S_T0}, {S_T0}, {WS_H3 - 4*16384}
        s_add_u32 {S_T1}, {S_T0}, 0x10000
        s_add_u32 {S_T2}, {S_T0}, 0x20000
        s_add_u32 {S_T3}, {S_T0}, 0x30000
        """)
    pv_setup()

    def vreads(t, c0, c1, s0=0, s1=4):
        for ct in range(c0, c1):
            for s in range(s0, s1):
                g(f'ds_read_b64_tr_b16 {R(40+16*ct+4*s+2*t,2)}, v{4+t} offset:{s*16896 + ct*32}')
    g(f"""
    s_lshl2_add_u32 {S_T4}, {S_HG}, {S_WAVE}
    s_lshl3_add_u32 {S_KEEP}, {S_B}, {S_T4}
    s_lshl_b32 {S_KEEP}, {S_KEEP}, 12
    s_add_u32 {S_KEEP}, {S_KEEP}, {WS_H2 - 16384}
    s_mul_i32 {S_OFF}, {S_WAVE}, 4224
    s_add_u32 {S_OFF}, {S_OFF}, {LY_Q - 4*4224}
    v_add_u32 v14, {S_OFF}, v1
    s_barrier
    s_barrier
    """)
    HR = [16, 20, 32, 36]

    def h2_loads():
        for u in range(4):
            g(f'buffer_load_dwordx4 {R(HR[u])}, v1, {SRD_WS}, {S_KEEP} offen offset:{u*1024} sc1')
    v0a = o.get('v0a', 0)
    v0s = o.get('v0s', 4)
    v0p = 0
    assert v0s * 16896 >= 4096 * n1
    vreads(0, 0, 8, 0, v0a)
    g('s_barrier')
    g.stamp(4)
    h2_loads()
    vreads(0, 0, 8, v0a, v0s)
    lp = g.lab('h2')
    g(f's_branch {lp}_in')
    g(f'{lp}:')
    if o.get('h2m', 1):
        g('s_mov_b64 exec, vcc')
    h2_loads()
    spin_check(g)
    g(f'{lp}_in:')
    for u in range(4):
        g(f's_waitcnt vmcnt({3-u})')
        for r in range(4):
            g(f'v_xor_b32 v{HR[u]+r}, {S_TAG2}, v{HR[u]+r}')
        g(f'ds_write_b128 v14, {R(HR[u])} offset:{u*1056}')
        or_chain(g, 8, range(HR[u], HR[u] + 4), u == 0)
    g(f"""
    v_and_b32 v8, 0x10001, v8
    v_cmp_ne_u32 vcc, 0, v8
    s_waitcnt lgkmcnt(0)
    s_nop 0
    s_cbranch_vccnz {lp}
    s_mov_b64 exec, -1
    """)
    if v0p == 1:
        vreads(0, 0, 8, 0, v0s)
        g('s_waitcnt lgkmcnt(0)')
    g.stamp(5)
    g('s_barrier')
    g.stamp(3)
    assert n1 <= 8
    vs = o.get('vs', 2)
    n1a = o.get('n1a', n1)
    w2_batch(S_T5, n1a, 24)
    vreads(0, 0, 8, v0s, 4)
    vreads(1, 0, vs)
    g('s_barrier')
    if n1a < n1:
        g(f's_add_u32 {S_T5}, {S_T5}, {n1a}')
        w2_batch(S_T5, n1 - n1a, 24 + n1a)
    vreads(1, vs, 8)
    g('s_waitcnt lgkmcnt(0)')
    g('s_setprio 2')
    g('s_barrier')
    PR = 16
    for s in range(4):
        g(f'ds_read_b128 {R(PR+4*s)}, v12 offset:{s*1024}')

    def accreg(u):
        return 32 if u == 0 else 40 + 32 * (u - 1)
    PK = 56

    def pack(u):
        a = accreg(u)
        return [f'v_cvt_pk_bf16_f32 v{PK+4*r+u}, v{a+r}, v{a+4+r}' for r in range(4)] + \
               [f'v_bfi_b32 v{PK+4*r+u}, {S_MASK2}, v{PK+4*r+u}, v6' for r in range(4)]
    pend = []
    for u in range(4):
        a = accreg(u)
        n = 0
        for s in range(4):
            if u == 0:
                g(f's_waitcnt lgkmcnt({3-s})')
            for t in range(2):
                ct = 2 * u + t
                c = '0' if s == 0 else R(a + 4 * t)
                g(f'{MF} {R(a+4*t)}, {R(PR+4*s)}, {R(40+16*ct+4*s)}, {c}')
                n += 1
                if u >= 2 and pend:
                    g(pend.pop(0))
        if u >= 1:
            pend += pack(u - 1)
    for e in pend:
        g(e)
    a = accreg(3)
    for r, sr in enumerate((S_T0, S_T1, S_T2, S_T3)):
        g(f'v_cvt_pk_bf16_f32 v{PK+4*r+3}, v{a+r}, v{a+4+r}')
        g(f'v_bfi_b32 v{PK+4*r+3}, {S_MASK2}, v{PK+4*r+3}, v6')
        g(f'buffer_store_dwordx4 {R(PK+4*r)}, v13, {SRD_WS}, {sr} offen sc1')
    g('s_setprio 0')
    g.stamp(7)
    g(f's_waitcnt vmcnt({o.get("swait", 4)})')
    g('s_barrier')
    g('s_branch L_Y_b5')
    g('L_Y_w8:')
    if o.get('yt', 0):
        g(f"""
        s_load_dwordx2 s[32:33], s[0:1], 56
        s_mov_b32 s34, {576*9216}
        s_mov_b32 s35, s11
        s_and_b32 {S_T0}, s2, 31
        s_mul_i32 {S_CG}, {S_T0}, 43
        s_lshr_b32 {S_CG}, {S_CG}, 7
        s_mul_i32 {S_RS}, {S_CG}, 3
        s_sub_u32 {S_RS}, {S_T0}, {S_RS}
        s_bfe_u32 {S_J}, s2, 0x20005
        s_add_u32 {S_T1}, s2, {S_J}
        s_add_u32 {S_T1}, {S_T1}, {r3}
        s_and_b32 {S_T1}, {S_T1}, 3
        s_lshl2_add_u32 {S_CG}, {S_CG}, {S_T1}
        s_mul_i32 {S_RS}, {S_RS}, {192*9216}
        s_lshl_b32 {S_CG}, {S_CG}, 8
        s_add_u32 {S_RS}, {S_RS}, {S_CG}
        s_add_u32 {S_RS}, {S_RS}, {160*9216}
        s_cmp_lt_u32 {S_T0}, 27
        s_cselect_b32 {S_RS}, {S_RS}, -1
        """)
        if o.get('ytc', 0):
            g(f's_cmp_eq_u32 {S_T1}, 1')
            g(f's_cselect_b32 {S_RS}, {S_RS}, -1')
        g(f"""
        v_lshrrev_b32 v8, 1, v0
        v_mul_u32_u24 v8, 9216, v8
        v_and_b32 v9, 1, v0
        v_lshl_add_u32 v28, v9, 7, v8
        s_waitcnt lgkmcnt(0)
        """)
    g(f"""
    v_add_u32 v11, {LY_MX}, v1
    s_lshl_b32 {S_T0}, {S_HG}, 6
    s_add_u32 {S_T0}, {S_T0}, {S_SPLIT}
    s_lshl_b32 {S_T0}, {S_T0}, 8
    s_add_u32 {S_T0}, {S_T0}, {WS_M}
    s_mov_b32 {S_T1}, 0x{f2u(SCALE):08x}
    v_mov_b32 v22, v6
    v_mov_b32 v23, v6
    v_lshlrev_b32 v7, 7, v0
    s_lshl_b32 {S_T3}, {S_HG}, 13
    s_add_u32 {S_T3}, {S_T3}, {WS_F2}
    s_setprio 3
    """)
    g('s_barrier')
    g.stamp(14)
    g('s_barrier')
    g('s_barrier')
    g('s_barrier')
    if o.get('yt', 0):
        g(f"""
        s_cmp_lt_u32 {S_RS}, 0x10000000
        s_cbranch_scc0 L_Y_nyt
        """)
        for k in range(o['yt'] // 32):
            g(f'buffer_load_dword v30, v28, {SRD_B2}, {S_RS} offen')
            g(f's_sub_u32 {S_RS}, {S_RS}, {32*9216}')
        g('L_Y_nyt:')
    g('s_mov_b64 exec, 0xffff')
    g('s_barrier')
    g(f"""
    ds_read_b128 v[16:19], v11
    s_waitcnt lgkmcnt(0)
    v_max3_f32 v8, v16, v17, v18
    v_max_f32 v8, v8, v19
    v_mul_f32 v20, {S_T1}, v8
    s_barrier
    ds_read_b128 v[16:19], v11 offset:256
    s_waitcnt lgkmcnt(0)
    v_add_f32 v16, v16, v17
    v_add_f32 v18, v18, v19
    v_add_f32 v21, v16, v18
    buffer_store_dwordx4 v[20:23], v1, {SRD_WS}, {S_T0} offen sc1
    s_mov_b64 exec, -1
    s_setprio 0
    """)
    g.stamp(13)
    g('s_barrier')
    g('L_Y_b5:')
    GW = o.get('gw', 7)
    g(f"""
    s_cmp_eq_u32 {S_WAVE}, {GW}
    s_cbranch_scc0 L_Y_nh
    """)
    bias_prep(g, S_Y, 63)
    g(f"""
    s_mov_b32 exec_hi, 0xffff
    buffer_load_dwordx4 v[16:19], v1, {SRD_WS}, {S_T1} offen sc1
    s_mov_b32 exec_hi, -1
    L_Y_nh:
    """)
    if o.get('pt3', 0):
        g(f"""
        s_cmp_eq_u32 {S_WAVE}, {GW+1}
        s_cbranch_scc0 L_Y_npt
        s_lshl_b32 {S_T2}, {S_CU}, 10
        s_add_u32 {S_T2}, {S_T2}, {WS_H3P}
        buffer_load_dwordx4 v[16:19], v1, {SRD_WS}, {S_T2} offen sc1
        L_Y_npt:
        """)
    g(f's_lshl_b32 {S_T0}, {S_WAVE}, 2')
    omega_src(g, 24, 4, S_T0)
    g(f"""
    s_lshl_b32 {S_T0}, {S_WAVE}, 12
    s_add_u32 m0, {S_T0}, {LY_WOB}
    s_mul_i32 {S_OFF}, {S_PH}, 36864
    s_add_u32 {S_OFF}, {S_OFF}, {S_T0}
    """)
    for u in range(4):
        g(f'buffer_load_dwordx4 v{24+u}, {SRD_W1}, {S_OFF} offen offset:{u*1024} {NT("wnt", 1)} lds')
    g('L_Y_b5b:')
    g.stamp(8)
    omega_addr(g, 56)
    act_addr(g, 61, LY_ACT)
    h4_soff(g, S_Y)
    gather32_ldsaddr(g, 60, LY_ACT, 64)
    g(f"""
    v_lshlrev_b32 v62, 3, v0
    s_lshl_b32 {S_T2}, {S_CU}, 10
    s_add_u32 {S_T2}, {S_T2}, {WS_H3P}
    s_mov_b32 s98, 0xffff0000
    s_mov_b32 s99, 0xffff0000
    s_mov_b32 s48, 0
    s_mov_b32 s49, -1
    s_cmp_eq_u32 {S_WAVE}, {GW}
    s_cbranch_scc0 L_Y_nh2
    s_waitcnt vmcnt(4)
    s_mov_b32 exec_lo, 0
    s_mov_b32 exec_hi, 0xffff0000
    """)
    bias_unpack(g)
    g('s_mov_b32 exec_lo, -1')
    gather32(g, 1, S_T1, 60, act=True, stamp=10, have=True)
    g(f"""
    L_Y_nh2:
    s_cmp_eq_u32 {S_WAVE}, {GW+1}
    s_cbranch_scc1 L_Y_ctx
    s_waitcnt vmcnt(0) lgkmcnt(0)
    """)

    def block_a():
        g.stamp(9)
        g('s_barrier')
        g('ds_read_b128 v[20:23], v61')
        omega_reads(g, 56, 80, LY_WOA)
        omega_reads(g, 56, 96, LY_WOB)

    def mfma_a():
        for t in range(4):
            g(f'{MF} {R(36+4*t)}, {R(20)}, {R(80+4*t)}, 0')
    block_a()
    g('s_waitcnt lgkmcnt(8)')
    g.stwait()
    mfma_a()
    g(f"""
    s_branch L_Y_c
    L_Y_ctx:
    s_setprio 2
    s_waitcnt vmcnt({o.get('cw', 1)})
    """)

    def pre():
        g('s_waitcnt vmcnt(1)')
        block_a()
        g('s_waitcnt lgkmcnt(8)')
        g.stwait()
        mfma_a()
    gather32(g, 1, S_T2, 60, lds_off=128, stamp=11, dual=True, pre=pre)
    g(f"""
    L_Y_c:
    s_waitcnt lgkmcnt(0)
    s_barrier
    ds_read_b128 v[24:27], v61 offset:128
    s_waitcnt lgkmcnt(0)
    """)
    for t in range(4):
        g(f'{MF} {R(36+4*t)}, {R(24)}, {R(96+4*t)}, {R(36+4*t)}')
    g(f"""
    s_nop 5
    v_cndmask_b32 v36, v36, v40, {S_CMP}
    v_cndmask_b32 v37, v37, v41, {S_CMP}
    v_cndmask_b32 v44, v44, v48, {S_CMP}
    v_cndmask_b32 v45, v45, v49, {S_CMP}
    v_cndmask_b32 v36, v36, v44, {S_EXC}
    v_cndmask_b32 v37, v37, v45, {S_EXC}
    v_bfi_b32 v36, {S_MASK}, v36, v6
    v_bfi_b32 v37, {S_MASK}, v37, v6
    buffer_store_dwordx2 v[36:37], v62, {SRD_WS}, {S_T3} offen sc1
    """)
    g.stamp(12)
    g('L_END:')
    if stamps:
        g.stamp(15)
        g(f'''
        s_sleep 127
        s_sleep 127
        s_mov_b64 exec, 1
        s_mul_i32 {S_T0}, s2, 9
        s_add_u32 {S_T0}, {S_T0}, {S_WAVE}
        s_lshl_b32 {S_T0}, {S_T0}, 6
        s_add_u32 {S_T0}, {S_T0}, {WS_ST}
        v_mov_b32 v8, 0
        s_waitcnt lgkmcnt(0)
        ''')
        for k in range(16):
            g(f'v_mov_b32 v9, s{64+2*k}')
            g(f'buffer_store_dword v9, v8, {SRD_WS}, {S_T0} offen offset:{4*k}')
    g('L_EXIT:')
    g('s_endpgm')
    g.L.append('.fill 1200, 4, 0xbf810000')
    g.L.append('.section .rodata,"a"')
    g.L.append('.p2align 6')
    g.L.append(f'.amdhsa_kernel {NAME}_kernel')
    g.L.append('  .amdhsa_next_free_vgpr 168')
    g.L.append('  .amdhsa_next_free_sgpr 102')
    g.L.append('  .amdhsa_accum_offset 168')
    g.L.append('  .amdhsa_group_segment_fixed_size 0')
    g.L.append('  .amdhsa_kernarg_size 112')
    g.L.append('  .amdhsa_user_sgpr_count 2')
    g.L.append('  .amdhsa_user_sgpr_kernarg_segment_ptr 1')
    g.L.append('  .amdhsa_system_sgpr_workgroup_id_x 1')
    g.L.append('.end_amdhsa_kernel')
    return g.text()


def parse_opts(args):
    o = {}
    for a in args:
        if '=' in a:
            k, v = a.split('=')
            o[k] = v if k in ('yp', 'xp', 'op') else int(v)
    return o


if __name__ == '__main__':
    out = sys.argv[1]
    stamps = 'stamps' in sys.argv[2:]
    nt = '' if 'nont' in sys.argv[2:] else 'nt'
    open(out, 'w').write(gen(stamps, nt, parse_opts(sys.argv[2:])))
```

```python
import sys, math, struct

NAME = 'parallel_sum__compressed_kv_cla__dense_activation_squared_relu__decode'

WS_H1 = 0x10000
WS_H2 = 0x30000
WS_H3P = 0x40000
WS_HF = 0x60000
WS_M = 0x90000
WS_F2 = 0xA0000
WS_H4 = 0x100000
H4S = 2432
H4U = 0
WS_H3 = 0x300000
WS_SLOW = 0x500000
WS_ST = 0x600000
WS_SIZE = 0x800000

LX_W1 = 0
LX_WO = 0
LX_WUK = 55296
LX_WUV = 89088
LX_XN = LX_WUV + 36864
LX_QP = LX_XN + 2048
LX_CC = LX_QP + 1024
LX_FIN = LX_CC + 1280
LX_ACT = LX_FIN + 1536
LX_WT = LX_ACT + 640
LX_END = LX_WT + 256
LY_CKV = 0
LY_Q = 135168
LY_P = LY_Q + 16896
LY_MX = LY_P + 4096
LY_LX = LY_MX + 256
LY_ACT = LY_LX + 256
LY_END = LY_ACT + 256
LY_WQ = 67584
LY_XN = LY_P
LY_WOA = 0
LY_WOB = 36864
LDS_BYTES = max(LX_END, LY_END)

SCALE = (128 ** -0.5) * math.log2(math.e)


def f2u(x):
    return struct.unpack('<I', struct.pack('<f', x))[0]


class G:
    def __init__(self, stamps=False, nt='nt', opts=None):
        self.L = []
        self.stamps = stamps
        self.nt = nt
        self.o = opts or {}
        self.nlab = 0

    def __call__(self, s):
        for line in s.strip('\n').split('\n'):
            line = line.strip()
            if not line:
                continue
            if line.endswith(':'):
                self.L.append(line)
            else:
                self.L.append('    ' + line)

    def lab(self, p):
        self.nlab += 1
        return f'L_{p}_{self.nlab}'

    def stamp(self, k):
        if self.stamps:
            self(f's_memrealtime s[{64+2*k}:{65+2*k}]')

    def stwait(self):
        if self.stamps:
            self('s_waitcnt lgkmcnt(0)')

    def text(self):
        return '\n'.join(self.L) + '\n'


S_WAVE = 's3'
S_CU = 's4'
S_H = 's5'
S_J = 's6'
S_T0 = 's7'
SRD_A = 's[8:11]'
SRD_WS = 's[12:15]'
SRD_X = 's[16:19]'
SRD_B = 's[20:23]'
SRD_C = 's[24:27]'
SRD_O = 's[28:31]'
SRD_B2 = 's[32:35]'
SRD_OUT = 's[36:39]'
S_TAG = 's40'
S_EP = 's41'
S_SPIN = 's42'
S_MASK = 's43'
S_OFF = 's44'
S_T1 = 's45'
S_T2 = 's46'
S_T3 = 's47'
S_EXC = 's[48:49]'
S_B = 's50'
S_SPLIT = 's51'
S_HG = 's52'
S_Y = 's53'
S_PC = 's[54:55]'
S_TAG2 = 's56'
S_MASK2 = 's57'
S_T4 = 's58'
S_T5 = 's59'
SRD_W1 = 's[60:63]'
S_CG = 's96'
S_RS = 's97'
S_CMP = 's[98:99]'
S_PH = 's100'
S_KEEP = 's101'
DPPF = 'row_mask:0xf bank_mask:0xf'
MF = 'v_mfma_f32_16x16x32_bf16'


def R(a, n=4):
    return f'v[{a}:{a+n-1}]'


def srd(g, name, karg_off, nbytes):
    n = int(name[2:name.index(':')])
    g(f's_load_dwordx2 s[{n}:{n+1}], s[0:1], {karg_off}')
    return [f's_mov_b32 s{n+2}, {nbytes}', f's_mov_b32 s{n+3}, s11']


def spin_check(g):
    g(f's_sub_u32 {S_SPIN}, {S_SPIN}, 1')
    g('s_cbranch_scc1 L_END')


def or_chain(g, acc, rs, first):
    rs = list(rs)
    if first:
        g(f'v_or3_b32 v{acc}, v{rs[0]}, v{rs[1]}, v{rs[2]}')
        rs = rs[3:]
    while len(rs) >= 2:
        g(f'v_or3_b32 v{acc}, v{acc}, v{rs[0]}, v{rs[1]}')
        rs = rs[2:]
    if rs:
        g(f'v_or_b32 v{acc}, v{acc}, v{rs[0]}')


def tagged_check(g, regs, acc):
    for r in regs:
        g(f'v_xor_b32 v{r}, {S_TAG}, v{r}')
    or_chain(g, acc, regs, True)
    g(f'v_and_b32 v{acc}, 0xfff, v{acc}')
    g(f'v_cmp_ne_u32 vcc, 0, v{acc}')


def slow_toggle(g, soff, extra):
    if g.o.get('one', 0):
        if callable(extra):
            g(f's_and_b32 {S_T0}, {S_SPIN}, 31')
            extra()
        return
    g(f'''
    s_andn2_b32 {soff}, {soff}, {WS_SLOW}
    s_and_b32 {S_T0}, {S_SPIN}, 31
    s_cselect_b32 {S_T0}, 0, {WS_SLOW}
    s_add_u32 {soff}, {soff}, {S_T0}
    ''')
    if callable(extra):
        g(f's_cmp_eq_u32 {S_T0}, 0')
        extra()


def gather32(g, vaddr, soff, vlds, lds_off=0, act=False, stamp=None, pre=None, dual=False, firstwait=0, have=False):
    lp = g.lab('g32')
    if dual:
        g(f's_or_b32 {S_SPIN}, {S_SPIN}, 31')
    if act:
        g('s_mov_b32 exec_hi, 0xffff')
    if have:
        g(f's_branch {lp}_chk')
    if pre is not None:
        g(f'buffer_load_dwordx4 v[16:19], v{vaddr}, {SRD_WS}, {soff} offen sc1')
        pre()
        if firstwait:
            g(f'''
            s_cbranch_scc0 {lp}_in
            s_waitcnt vmcnt(1)
            s_branch {lp}_chk
            ''')
        else:
            g(f's_branch {lp}_in')
    g(f'''
    {lp}:
    buffer_load_dwordx4 v[16:19], v{vaddr}, {SRD_WS}, {soff} offen sc1
    ''')
    spin_check(g)
    if dual:
        slow_toggle(g, soff, dual)
    g(f'{lp}_in:')
    g('s_waitcnt vmcnt(0)')
    g(f'{lp}_chk:')
    tagged_check(g, range(16, 20), 8)
    if act:
        g('s_nop 1')
        g(f's_cbranch_vccnz {lp}')
        g('s_mov_b32 exec_hi, -1')
        g('v_permlane32_swap_b32 v16, v17')
        g('v_permlane32_swap_b32 v18, v19')
    else:
        g('v_permlane32_swap_b32 v16, v17')
        g('v_permlane32_swap_b32 v18, v19')
        g(f's_cbranch_vccnz {lp}')
    if stamp is not None:
        g.stamp(stamp)
    g(f'''
    v_add_f32 v16, v16, v17
    v_add_f32 v18, v18, v19
    s_nop 1
    v_permlane16_swap_b32 v16, v18
    v_add_f32 v16, v16, v18
    ''')
    if act:
        g('v_max_f32 v16, 0, v16')
        g('v_mul_f32 v16, v16, v16')
    g('v_cvt_pk_bf16_f32 v16, v16, v16')
    g(f'ds_write_b16 v{vlds}, v16 offset:{lds_off}')


def flag_poll(g, vaddr, soff, off=0):
    lp = g.lab('fp')
    g(f'{lp}:')
    if g.o.get('slp'):
        g(f's_sleep {g.o["slp"]}')
    g(f'buffer_load_dword v16, v{vaddr}, {SRD_WS}, {soff} offen offset:{off} sc1')
    spin_check(g)
    g(f"""
    s_waitcnt vmcnt(0)
    v_cmp_ne_u32 vcc, {S_EP}, v16
    s_nop 1
    s_and_b64 exec, exec, vcc
    s_cbranch_scc1 {lp}
    s_mov_b64 exec, -1
    """)


def sflag_issue(g, regs, base, stride, off=0):
    for k, r in enumerate(regs):
        g(f's_load_dword s{r}, {base}, {k*stride + off} glc')


def sflag_wait(g, regs, base, stride, off=0):
    lp = g.lab('sf')
    g(f's_branch {lp}_in')
    g(f'{lp}:')
    sflag_issue(g, regs, base, stride, off)
    spin_check(g)
    g(f'{lp}_in:')
    g(f's_mul_i32 {S_T0}, {S_EP}, {len(regs)}')
    g('s_waitcnt lgkmcnt(0)')
    for r in regs:
        g(f's_sub_u32 {S_T0}, {S_T0}, s{r}')
    g(f's_cmp_eq_u32 {S_T0}, 0')
    g(f's_cbranch_scc0 {lp}')


def gather32_ldsaddr(g, dst, base, bstride):
    g(f'''
    v_and_b32 v8, 1, v2
    v_lshl_add_u32 v8, v3, 1, v8
    v_lshrrev_b32 v9, 1, v2
    v_mul_u32_u24 v9, {bstride}, v9
    v_lshl_add_u32 v8, v8, 1, v9
    v_add_u32 v{dst}, {base}, v8
    ''')


def layernorm_loads(g, off_q, off_f):
    g(f'''
    v_lshrrev_b32 v8, 5, v0
    v_mul_u32_u24 v8, 1152, v8
    v_and_b32 v9, 31, v0
    v_lshl_add_u32 v8, v9, 4, v8
    v_cmp_gt_u32 vcc, 8, v9
    v_mov_b32 v9, 0x7fff0000
    s_nop 0
    v_cndmask_b32 v9, v9, v8, vcc
    s_waitcnt lgkmcnt(0)
    buffer_load_dwordx4 v[10:13], v8, {SRD_X}, 0 offen
    buffer_load_dwordx4 v[14:17], v8, {SRD_X}, 0 offen offset:512
    buffer_load_dwordx4 v[18:21], v9, {SRD_X}, 0 offen offset:1024
    buffer_load_dwordx4 v[22:25], v8, {SRD_X}, {off_q} offen
    buffer_load_dwordx4 v[128:131], v8, {SRD_X}, {off_f} offen
    ''')


def layernorm_stats(g):
    g(f's_mov_b32 {S_T1}, 0x3f803f80')
    g('v_mov_b32 v26, 0')
    g('v_mov_b32 v27, 0')
    for r in range(10, 22):
        g(f'v_dot2c_f32_bf16 v26, {S_T1}, v{r}')
        g(f'v_dot2c_f32_bf16 v27, v{r}, v{r}')
    g('s_nop 2')
    for k in (1, 2, 4, 8):
        g(f'v_add_f32_dpp v26, v26, v26 row_ror:{k} {DPPF}')
        g(f'v_add_f32_dpp v27, v27, v27 row_ror:{k} {DPPF}')
        g('s_nop 0')
    g(f'''
    v_mov_b32 v28, v26
    v_mov_b32 v29, v27
    s_nop 0
    v_permlane16_swap_b32 v26, v28
    v_permlane16_swap_b32 v27, v29
    v_add_f32 v26, v26, v28
    v_add_f32 v27, v27, v29
    v_mul_f32 v26, 0x{f2u(1.0/576):08x}, v26
    v_mul_f32 v27, 0x{f2u(1.0/576):08x}, v27
    v_fma_f32 v27, -v26, v26, v27
    v_max_f32 v27, 0, v27
    v_cvt_pk_bf16_f32 v26, v26, v27
    v_and_b32 v27, 0xffff0000, v26
    v_lshlrev_b32 v132, 16, v26
    v_add_f32 v27, 0x{f2u(1e-5):08x}, v27
    v_cvt_pk_bf16_f32 v27, v27, v27
    v_and_b32 v27, 0xffff0000, v27
    v_sqrt_f32 v27, v27
    s_nop 0
    v_cvt_pk_bf16_f32 v27, v27, v27
    v_and_b32 v27, 0xffff0000, v27
    v_rcp_f32 v133, v27
    ''')


def layernorm_addr(g, LX_XN):
    g(f'''
    v_lshrrev_b32 v8, 2, v0
    v_lshlrev_b32 v8, 6, v8
    v_and_b32 v9, 1, v0
    v_lshl_add_u32 v8, v9, 5, v8
    v_bfe_u32 v9, v0, 1, 1
    v_lshl_add_u32 v8, v9, 3, v8
    v_add_u32 v134, {LX_XN}, v8
    ''')


def layernorm_slice(g, r0, off8):
    for r in range(r0, r0 + 4):
        g(f'''
        v_lshlrev_b32 v28, 16, v{r}
        v_and_b32 v29, 0xffff0000, v{r}
        v_sub_f32 v28, v28, v132
        v_sub_f32 v29, v29, v132
        v_cvt_pk_bf16_f32 v29, v28, v29
        v_lshlrev_b32 v28, 16, v29
        v_and_b32 v29, 0xffff0000, v29
        v_mul_f32 v28, v28, v133
        v_mul_f32 v29, v29, v133
        v_cvt_pk_bf16_f32 v{r}, v28, v29
        ''')
    g(f'ds_write2_b64 v134, v[{r0}:{r0+1}], v[{r0+2}:{r0+3}] offset0:{off8} offset1:{off8+2}')


def alpha_addr(g, dst, tile_sgpr):
    g(f'''
    v_lshrrev_b32 v8, 2, v3
    v_bfe_u32 v9, v0, 1, 1
    v_lshl_add_u32 v9, {tile_sgpr}, 1, v9
    v_lshlrev_b32 v{dst}, 1, v8
    v_xor_b32 v9, v9, v{dst}
    v_lshlrev_b32 v9, 4, v9
    v_lshl_add_u32 v9, v8, 8, v9
    v_and_b32 v8, 1, v0
    v_lshl_add_u32 v9, v8, 3, v9
    v_mul_u32_u24 v8, 1152, v2
    v_add_u32 v{dst}, v8, v9
    ''')


def omega_src(g, dst, n, first_sgpr):
    g(f'''
    v_lshrrev_b32 v8, 3, v0
    v_lshl_add_u32 v8, {first_sgpr}, 3, v8
    v_mul_u32_u24 v8, 57, v8
    ''')
    for k in range(n):
        g(f'''
        v_bfe_u32 v9, v8, 10, 1
        v_bfe_u32 v{dst+k}, v8, 12, 1
        v_lshl_add_u32 v9, v{dst+k}, 1, v9
        v_lshlrev_b32 v9, 5, v9
        v_xor_b32 v{dst+k}, v9, v1
        ''')
        if k < n - 1:
            g('v_add_u32 v8, 456, v8')


def omega_addr(g, dst, cb=S_WAVE):
    g(f'''
    v_lshrrev_b32 v8, 2, v3
    v_lshl_add_u32 v9, v2, 3, v8
    v_mul_u32_u24 v9, 1152, v9
    v_lshl_add_u32 v9, {cb}, 7, v9
    v_and_b32 v{dst}, 3, v0
    v_lshl_add_u32 v9, v{dst}, 3, v9
    v_lshrrev_b32 v8, 1, v8
    v_and_b32 v{dst}, 1, v2
    v_lshl_add_u32 v8, v{dst}, 1, v8
    v_lshl_add_u32 v{dst}, v8, 5, v9
    v_xor_b32 v{dst+1}, 32, v{dst}
    v_xor_b32 v{dst+2}, 64, v{dst}
    v_xor_b32 v{dst+3}, 0x60, v{dst}
    ''')


def omega_reads(g, addr, dst, base):
    for t in range(4):
        g(f'ds_read_b64_tr_b16 {R(dst+4*t,2)}, v{addr+t} offset:{base}')
        g(f'ds_read_b64_tr_b16 {R(dst+4*t+2,2)}, v{addr+t} offset:{base+4608}')


def act_addr(g, dst, act):
    g(f'''
    v_and_b32 v8, 1, v0
    v_lshlrev_b32 v8, 6, v8
    v_lshl_add_u32 v8, v2, 4, v8
    v_add_u32 v{dst}, {act}, v8
    ''')


def omega_finish(g, aaddr, wregs, vaddr, soff, late=None):
    n = len(wregs)
    for k in range(n):
        g(f'ds_read_b128 {R(20+4*k)}, v{aaddr} offset:{128*k}')
    if late:
        late()
    g(f'''
    s_mov_b32 s98, 0xffff0000
    s_mov_b32 s99, 0xffff0000
    s_mov_b32 vcc_lo, 0
    s_mov_b32 vcc_hi, -1
    ''')
    g.stwait()
    for k in range(n):
        if not late:
            g(f's_waitcnt lgkmcnt({n-1-k})')
        elif k == 0:
            g('s_waitcnt lgkmcnt(9)')
        for t in range(4):
            if late and k == 1:
                g(f's_waitcnt lgkmcnt({6-2*t})')
            c = '0' if k == 0 else R(36 + 4 * t)
            g(f'{MF} {R(36+4*t)}, {R(20+4*k)}, {R(wregs[k]+4*t)}, {c}')
    g(f'''
    s_nop 5
    v_cndmask_b32 v36, v36, v40, {S_CMP}
    v_cndmask_b32 v37, v37, v41, {S_CMP}
    v_cndmask_b32 v44, v44, v48, {S_CMP}
    v_cndmask_b32 v45, v45, v49, {S_CMP}
    v_cndmask_b32 v36, v36, v44, vcc
    v_cndmask_b32 v37, v37, v45, vcc
    v_bfi_b32 v36, {S_MASK}, v36, v6
    v_bfi_b32 v37, {S_MASK}, v37, v6
    buffer_store_dwordx2 v[36:37], v{vaddr}, {SRD_WS}, {soff} offen sc1
    ''')


def h4_soff(g, prod):
    g(f'''
    s_mul_i32 {S_T3}, {prod}, {H4S}
    s_lshl_b32 {S_T4}, {S_WAVE}, {8+H4U}
    s_add_u32 {S_T3}, {S_T3}, {S_T4}
    s_add_u32 {S_T3}, {S_T3}, {WS_H4}
    ''')


def phys_head(g, dst, x, k, tmp):
    hm = g.o.get('hmap', 4)
    if hm == 0:
        g(f's_lshl2_add_u32 {dst}, {x}, {k}')
    elif hm == 1:
        g(f's_lshl3_add_u32 {dst}, {k}, {x}')
    elif hm == 2:
        g(f"""
        s_and_b32 {tmp}, {k}, 1
        s_lshl1_add_u32 {dst}, {x}, {tmp}
        s_lshr_b32 {tmp}, {k}, 1
        s_lshl4_add_u32 {dst}, {tmp}, {dst}
        """)
    elif hm == 3:
        g(f"""
        s_and_b32 {tmp}, {x}, 3
        s_lshl2_add_u32 {dst}, {k}, {tmp}
        s_lshr_b32 {tmp}, {x}, 2
        s_lshl4_add_u32 {dst}, {tmp}, {dst}
        """)
    elif hm == 4:
        g(f"""
        s_add_u32 {tmp}, {x}, {k}
        s_and_b32 {tmp}, {tmp}, 7
        s_lshl3_add_u32 {dst}, {k}, {tmp}
        """)


def set_role(g, dk, ph_only=None):
    g(f's_lshr_b32 {S_T0}, s2, 5')
    if dk:
        g(f's_add_u32 {S_T0}, {S_T0}, {dk}')
        g(f's_and_b32 {S_T0}, {S_T0}, 3')
    g(f"""
    s_add_u32 {S_T1}, s2, {S_T0}
    s_and_b32 {S_T1}, {S_T1}, 7
    s_lshl3_add_u32 {S_PH}, {S_T0}, {S_T1}
    """)
    if not ph_only:
        g(f"""
        s_and_b32 {S_T1}, s2, 7
        s_lshl2_add_u32 {S_H}, {S_T1}, {S_T0}
        s_lshl2_add_u32 {S_CU}, {S_H}, {S_J}
        """)


def lane_consts(g):
    g(f'''
    v_lshrrev_b32 v1, 6, v0
    v_and_b32 v0, 63, v0
    v_readfirstlane_b32 {S_WAVE}, v1
    v_lshlrev_b32 v1, 4, v0
    v_lshrrev_b32 v2, 4, v0
    v_and_b32 v3, 15, v0
    ''')


def misc_consts(g):
    g(f'''
    s_mov_b32 {S_SPIN}, 0xfffff
    s_mov_b32 {S_MASK}, 0xfffff000
    s_mov_b32 {S_MASK2}, 0xfffefffe
    ''')


def make_tag(g):
    g(f'''
    s_add_u32 {S_EP}, {S_EP}, 1
    s_and_b32 {S_TAG}, {S_EP}, 0xfff
    s_andn2_b32 {S_TAG2}, {S_EP}, {S_MASK2}
    v_mov_b32 v6, {S_EP}
    ''')


def bias_prep(g, blk, va=62, SRD_C=SRD_C):
    g(f'''
    v_lshlrev_b32 v{va}, 2, v3
    s_lshl_b32 {S_T0}, {blk}, 6
    s_lshl_b32 {S_T1}, {blk}, 10
    s_add_u32 {S_T1}, {S_T1}, {WS_HF}
    buffer_load_dword v28, v{va}, {SRD_C}, {S_T0} offen
    ''')


def bias_unpack(g):
    g(f'''
    v_lshlrev_b32 v16, 16, v28
    v_lshlrev_b32 v17, 16, v28
    v_and_b32 v18, 0xffff0000, v28
    v_and_b32 v19, 0xffff0000, v28
    ''')


def gen(stamps=False, nt='nt', opts=None):
    g = G(stamps, nt, opts)
    o = g.o
    global WS_H1, WS_H2, WS_H3P, WS_HF, H4S, H4U
    H4U = o.get('h4u', 0)
    H4S = 37 * 128 if H4U else 19 * 128
    WS_H1 = o.get('ah1', 0x10) << 12
    WS_H2 = o.get('ah2', 0x30) << 12
    WS_H3P = o.get('ah3p', 0x40) << 12
    WS_HF = o.get('ahf', 0x60) << 12
    hdr = open('cdna_kernels/' + NAME + '.s.ref').read().split('\n')
    for line in hdr:
        if line.startswith('; @launch'):
            break
        g.L.append(line)
    g.L.append(f'; @launch grid=(256,1,1) block=(576,1,1) lds={LDS_BYTES}')
    g.L.append('.amdgcn_target "amdgcn-amd-amdhsa--gfx950"')
    g.L.append('.text')
    g.L.append(f'.globl {NAME}_kernel')
    g.L.append('.p2align 12')
    g.L.append(f'.type {NAME}_kernel,@function')
    g.L.append(f'{NAME}_kernel:')
    LNW = o.get('lnw', 3)
    NT = lambda k, d=0: 'nt' if o.get(k, d) else ''
    if o.get('skew'):
        g('''
        s_and_b32 s3, s2, 7
        s_lshl_b32 s3, s3, 2
        s_lshr_b32 s3, 0x679b3000, s3
        s_and_b32 s3, s3, 15
        L_skew:
        s_cmp_eq_u32 s3, 0
        s_cbranch_scc1 L_skew2
        s_sleep 2
        s_sub_u32 s3, s3, 1
        s_branch L_skew
        L_skew2:
        ''')
    g.stamp(0)
    if o.get('hold'):
        g('s_memrealtime s[92:93]')

    def clear_stamps(k0=2):
        if stamps:
            for k in range(k0, 16):
                g(f's_mov_b32 s{64+2*k}, 0')
    g(f"""
    s_load_dwordx2 s[8:9], s[0:1], 16
    s_load_dwordx2 s[20:21], s[0:1], 24
    s_load_dwordx2 s[16:17], s[0:1], 0
    s_load_dwordx2 s[12:13], s[0:1], 104
    s_cmp_ge_u32 s2, 256
    s_cbranch_scc1 L_EXIT
    """)
    lane_consts(g)
    g(f"""
    s_mov_b32 s11, 0x20000
    s_mov_b32 s10, {576*8192}
    s_mov_b32 s23, s11
    s_mov_b32 s22, {512*8192}
    s_mov_b32 s15, s11
    s_mov_b32 s14, {WS_SIZE}
    s_cmp_ge_u32 s2, 128
    s_cbranch_scc1 L_Y
    """)
    r1, r2, r3 = o.get('r1', 3), o.get('r2', 1), o.get('r3', 2)
    g(f"""
    s_mov_b32 s19, s11
    s_movk_i32 s18, 2304
    s_bfe_u32 {S_J}, s2, 0x20003
    """)
    set_role(g, 0, ph_only=True)
    g(f"""
    v_lshlrev_b32 v8, 1, v2
    v_xor_b32 v8, v8, v3
    v_lshlrev_b32 v135, 4, v8
    v_lshl_add_u32 v4, v2, 13, v135
    s_mul_i32 {S_OFF}, {S_J}, 9
    s_add_u32 {S_OFF}, {S_OFF}, {S_WAVE}
    s_lshl_b32 {S_OFF}, {S_OFF}, 9
    s_add_u32 {S_OFF}, {S_OFF}, {S_PH}
    s_lshl_b32 {S_OFF}, {S_OFF}, 8
    s_mul_i32 m0, {S_WAVE}, 4608
    s_mov_b32 {S_T3}, 32768
    s_cmp_eq_u32 {S_WAVE}, {LNW}
    s_cbranch_scc0 L_X_nox
    s_and_b32 {S_Y}, s2, 31
    s_mul_i32 {S_CG}, {S_Y}, 43
    s_lshr_b32 {S_CG}, {S_CG}, 7
    s_mul_i32 {S_RS}, {S_CG}, 3
    s_sub_u32 {S_RS}, {S_Y}, {S_RS}
    s_mul_i32 {S_T1}, {S_J}, 288
    s_mul_i32 {S_T0}, {S_RS}, 384
    """)
    layernorm_loads(g, S_T1, S_T0)
    g('L_X_nox:')
    g('s_waitcnt lgkmcnt(0)')
    for u in range(4):
        g(f'buffer_load_dwordx4 v4, {SRD_A}, {S_OFF} offen {NT("qnt", 1)} lds')
        if u < 3:
            g('s_addk_i32 m0, 1152')
            g(f's_add_u32 {S_OFF}, {S_OFF}, {S_T3}')
    g('s_branch L_X2')
    g('L_Y:')
    cnt = 'nt' if o.get('cnt') else ''
    yk = o.get('yk', 32)
    yq = o.get('yq', 22)
    yqa = o.get('yqa', 10)
    lanes = lambda n: (f's_mov_b64 exec, {hex((1 << n) - 1)}' if n < 32 else f's_mov_b32 exec_hi, {hex((1 << (n-32)) - 1)}')
    g(f"""
    s_cmp_eq_u32 {S_WAVE}, 0
    s_cbranch_scc0 L_nopf
    s_getpc_b64 {S_PC}
    s_bfe_u32 {S_T0}, s2, 0x20003
    s_mul_i32 {S_T0}, {S_T0}, 3456
    v_lshl_add_u32 v8, v0, 7, {S_T0}
    s_mov_b64 exec, 0x7ffffff
    global_load_dword v30, v8, {S_PC} offset:512
    s_mov_b64 exec, -1
    L_nopf:
    v_lshrrev_b32 v8, 1, v0
    v_and_b32 v9, 1, v0
    v_lshlrev_b32 v9, 7, v9
    v_lshl_add_u32 v8, v8, 13, v9
    s_bfe_u32 {S_T2}, s2, 0x40003
    s_cmp_lt_u32 {S_WAVE}, 4
    s_cbranch_scc0 L_Y_nk
    s_add_u32 {S_T1}, s2, {S_WAVE}
    s_and_b32 {S_T1}, {S_T1}, 7
    s_lshl3_add_u32 {S_T1}, {S_WAVE}, {S_T1}
    s_and_b32 {S_T0}, {S_T1}, 3
    s_cmp_eq_u32 {S_T0}, 1
    s_cselect_b32 {S_T4}, {yq}, {yqa}
    s_lshr_b32 {S_T0}, {S_T2}, 2
    s_mul_i32 {S_T0}, {S_T0}, 144
    s_and_b32 {S_T3}, {S_T2}, 3
    s_sub_u32 {S_T3}, {S_T3}, 4
    s_mul_i32 {S_T3}, {S_T3}, {S_T4}
    s_add_u32 {S_T0}, {S_T0}, {S_T3}
    s_add_u32 {S_T0}, {S_T0}, 144
    s_lshl_b32 {S_T0}, {S_T0}, 5
    s_add_u32 {S_T0}, {S_T0}, {S_T1}
    s_lshl_b32 {S_T0}, {S_T0}, 8
    s_lshl_b32 {S_T4}, {S_T4}, 1
    s_bfm_b64 exec, {S_T4}, 0
    s_waitcnt lgkmcnt(0)
    s_cbranch_execz L_Y_nq0
    buffer_load_dword v31, v8, {SRD_A}, {S_T0} offen
    L_Y_nq0:
    s_mov_b64 exec, -1
    s_lshl_b32 {S_T0}, {S_T2}, 10
    s_add_u32 {S_T0}, {S_T0}, {S_T1}
    s_lshl_b32 {S_T0}, {S_T0}, 8
    {lanes(2*yk) if yk < 32 else ''}
    {f'buffer_load_dword v31, v8, {SRD_B}, {S_T0} offen' if yk else ''}
    L_Y_nk:
    """)
    g(f"""
    L_Y_nq:
    s_mov_b64 exec, -1
    s_waitcnt lgkmcnt(0)
    s_load_dwordx2 s[8:9], s[0:1], 8
    s_branch L_Y2
    """)
    g('L_X2:')
    set_role(g, r1, ph_only=True)
    g(f"""
    s_load_dword {S_EP}, s[12:13], 0
    v_lshlrev_b32 v8, 2, v2
    v_xor_b32 v8, v8, v3
    v_lshlrev_b32 v8, 4, v8
    v_lshl_add_u32 v5, v2, 13, v8
    s_cmp_eq_u32 {S_WAVE}, 8
    s_cselect_b32 {S_T1}, {LNW}, {S_WAVE}
    s_lshl3_add_u32 {S_T0}, {S_J}, {S_T1}
    s_lshl_b32 {S_T0}, {S_T0}, 9
    s_add_u32 {S_T0}, {S_T0}, {S_PH}
    s_lshl_b32 {S_OFF}, {S_T0}, 8
    s_mul_i32 {S_T0}, {S_T1}, 4160
    s_add_u32 m0, {S_T0}, {LX_WUK}
    s_cmp_eq_u32 {S_T1}, {LNW}
    s_barrier
    s_cbranch_scc1 L_X_nouk
    """)

    def wuk_dma():
        for u in range(4):
            g(f'buffer_load_dwordx4 v5, {SRD_B}, {S_OFF} offen {NT("knt", 1)} lds')
            if u < 3:
                g('s_addk_i32 m0, 1040')
                g(f's_add_u32 {S_OFF}, {S_OFF}, {S_T3}')
    xk = o.get('xk', 9)
    if xk != 9:
        g(f's_waitcnt vmcnt({xk})')
    wuk_dma()
    g('L_X_nouk:')
    g.stamp(1)
    clear_stamps()
    post = []
    g('s_load_dwordx2 s[8:9], s[0:1], 64')
    g('s_movk_i32 s10, 9216')
    post += srd(g, SRD_C, 32, 512 * 8192)
    post += srd(g, SRD_W1, 56, 0 if o.get('now1') else 576 * 9216)
    post += srd(g, SRD_O, 72, 4608 * 1152)
    post += srd(g, SRD_B2, 80, 1152)
    post += srd(g, SRD_OUT, 88, 2304)
    for p in post:
        g(p)
    misc_consts(g)
    set_role(g, 0)
    g(f"""
    s_and_b32 {S_Y}, s2, 31
    s_mul_i32 {S_CG}, {S_Y}, 43
    s_lshr_b32 {S_CG}, {S_CG}, 7
    s_mul_i32 {S_RS}, {S_CG}, 3
    s_sub_u32 {S_RS}, {S_Y}, {S_RS}
    s_add_u32 {S_SPLIT}, {S_PH}, {r3}
    s_and_b32 {S_SPLIT}, {S_SPLIT}, 3
    s_lshl2_add_u32 {S_CG}, {S_CG}, {S_SPLIT}
    s_lshl2_add_u32 {S_SPLIT}, {S_SPLIT}, {S_Y}
    s_add_u32 {S_SPLIT}, {S_SPLIT}, 101
    v_lshlrev_b32 v136, 3, v0
    s_lshl3_add_u32 {S_KEEP}, {S_CU}, {S_WAVE}
    s_lshl_b32 {S_KEEP}, {S_KEEP}, 7
    s_add_u32 {S_KEEP}, {S_KEEP}, {WS_H1}
    s_waitcnt lgkmcnt(0)
    """)
    make_tag(g)
    g(f"""
    s_cmp_eq_u32 {S_WAVE}, 8
    s_cbranch_scc1 L_X_w8
    s_cmp_eq_u32 {S_WAVE}, {LNW}
    s_cbranch_scc0 L_X_noln
    """)
    layernorm_addr(g, LX_XN)
    g('s_waitcnt vmcnt(4)')
    layernorm_stats(g)
    layernorm_slice(g, 22, 0)
    layernorm_slice(g, 128, 128)
    g('L_X_noln:')
    alpha_addr(g, 7, S_WAVE)
    set_role(g, r1)
    g(f"""
    v_and_b32 v8, 1, v0
    v_lshlrev_b32 v9, 9, v8
    v_lshl_add_u32 v10, v2, 4, v9
    v_add_u32 v10, {LX_XN}, v10
    v_mov_b32 v34, 0
    v_mov_b32 v35, 0
    s_waitcnt lgkmcnt(0)
    s_barrier
    """)
    for s in range(5):
        g(f'ds_read_b128 {R(36+4*s)}, v10 offset:{64*s}')

    def q1(lnw):
        if lnw:
            g(f"""
            s_cmp_eq_u32 {S_WAVE}, {LNW}
            s_cbranch_scc0 L_X_q1a
            s_waitcnt vmcnt(0)
            L_X_q1a:
            """)
        g('s_waitcnt vmcnt(4)')
        g('s_barrier')
        g.stamp(2)
        for s in range(5):
            g(f'ds_read_b64_tr_b16 {R(16+4*s,2)}, v7 offset:{s*9216}')
            if s < 4:
                g(f'ds_read_b64_tr_b16 {R(18+4*s,2)}, v7 offset:{s*9216+4608}')
        g.stwait()
        for s in range(5):
            g(f's_waitcnt lgkmcnt({max(7-2*s, 0)})')
            c = '0' if s == 0 else R(12)
            g(f'{MF} {R(12)}, {R(36+4*s)}, {R(16+4*s)}, {c}')
        g(f"""
        s_nop 6
        s_mov_b64 exec, 0xffff
        v_bfi_b32 v138, {S_MASK}, v12, v6
        v_bfi_b32 v139, {S_MASK}, v13, v6
        buffer_store_dwordx2 v[138:139], v136, {SRD_WS}, {S_KEEP} offen
        s_mov_b64 exec, -1
        s_or_b32 {S_KEEP}, {S_KEEP}, {WS_SLOW}
        """)
        g.stamp(3)
    slowst = f"""
    s_mov_b64 exec, 0xffff
    buffer_store_dwordx2 v[138:139], v136, {SRD_WS}, {S_KEEP} offen sc1
    s_mov_b64 exec, -1
    """
    assert LNW < 4
    g(f"""
    s_cmp_lt_u32 {S_WAVE}, 4
    s_cbranch_scc0 L_X_h1
    """)
    g(f"""
    v_lshrrev_b32 v8, 2, v3
    v_mul_u32_u24 v8, 2080, v8
    v_and_b32 v9, 3, v0
    v_lshl_add_u32 v8, v9, 8, v8
    v_lshl_add_u32 v8, v2, 4, v8
    s_mul_i32 {S_T0}, {S_WAVE}, 8320
    s_add_u32 {S_T0}, {S_T0}, {LX_WUK}
    v_add_u32 v8, {S_T0}, v8
    v_lshlrev_b32 v9, 6, v9
    v_add_u32 v56, v8, v9
    v_xor_b32 v57, 64, v9
    v_add_u32 v57, v8, v57
    v_xor_b32 v58, 0x80, v9
    v_add_u32 v58, v8, v58
    v_xor_b32 v59, 0xc0, v9
    v_add_u32 v59, v8, v59
    v_and_b32 v8, 1, v0
    v_mul_u32_u24 v9, 272, v8
    v_lshl_add_u32 v9, v2, 4, v9
    v_add_u32 v61, {LX_QP}, v9
    v_lshlrev_b32 v8, 15, v8
    v_lshl_add_u32 v62, v2, 4, v8
    s_lshl2_add_u32 {S_T2}, {S_CU}, {S_WAVE}
    s_lshl_b32 {S_T2}, {S_T2}, 6
    s_add_u32 {S_T2}, {S_T2}, {WS_H2}
    s_mov_b32 s48, 0x00030003
    s_mov_b32 s49, 0x00030003
    """)
    set_role(g, r2)
    g(f"""
    v_lshl_add_u32 v4, v2, 17, v135
    s_lshl_b32 {S_OFF}, {S_J}, 5
    s_add_u32 {S_OFF}, {S_OFF}, {S_WAVE}
    s_lshl_b32 {S_OFF}, {S_OFF}, 7
    s_add_u32 {S_OFF}, {S_OFF}, {S_PH}
    s_lshl_b32 {S_OFF}, {S_OFF}, 8
    s_mul_i32 {S_T0}, {S_WAVE}, 9216
    s_add_u32 m0, {S_T0}, {LX_WUV}
    s_nop 0
    """)
    ne0 = o.get('ne0', 0)

    def wuv_dma(a, b):
        for u in range(a, b):
            g(f'buffer_load_dwordx4 v4, {SRD_C}, {S_OFF} offen {NT("x2nt", 1)} lds')
            if u < 7:
                g('s_addk_i32 m0, 1152')
                g(f's_add_u32 {S_OFF}, {S_OFF}, {61*8192 if u == 3 else 8192}')
    q1(True)
    g('s_waitcnt vmcnt(0)')
    g('s_barrier')
    areg = lambda s, t: 64 + 8 * s + 4 * t
    for s in range(4):
        for t in range(2):
            g(f'ds_read_b128 {R(areg(s,t))}, v{56+s} offset:{t*1040}')
    g.stwait()
    g('s_barrier')
    for s in range(4):
        g(f'ds_read_b128 {R(36+4*s)}, v61 offset:{s*64}')
    for s in range(4):
        g(f's_waitcnt lgkmcnt({3-s})')
        for t in range(2):
            c = '0' if s == 0 else R(20 + 4 * t)
            g(f'{MF} {R(20+4*t)}, {R(areg(s,t))}, {R(36+4*s)}, {c}')
    g(f"""
    s_nop 5
    s_mov_b64 exec, {S_EXC}
    v_cvt_pk_bf16_f32 v16, v20, v21
    v_cvt_pk_bf16_f32 v17, v22, v23
    v_cvt_pk_bf16_f32 v18, v24, v25
    v_cvt_pk_bf16_f32 v19, v26, v27
    """)
    for r in range(4):
        g(f'v_bfi_b32 v{16+r}, {S_MASK2}, v{16+r}, v6')
    g(f"""
    buffer_store_dwordx4 v[16:19], v62, {SRD_WS}, {S_T2} offen sc1
    """)
    g.stamp(5)
    g(slowst)
    op = str(o.get('op', 'x')).replace('x', '')
    for k, dch in enumerate(op):
        wuv_dma(ne0 + k, ne0 + k + 1)
        if dch != '9':
            opc = o.get('opc', 2)
            if opc:
                g(f's_and_b32 {S_T0}, {S_CG}, 3')
                g(f's_lshr_b32 {S_T0}, {opc}, {S_T0}')
                g(f's_and_b32 {S_T0}, {S_T0}, 1')
                g(f's_cbranch_scc1 L_X_nop{k}')
            g(f's_waitcnt vmcnt({dch})')
            g(f'L_X_nop{k}:')
    g('s_barrier')
    w1f = o.get('w1f', 1)
    if w1f:
        g('s_barrier')
    wuv_dma(ne0 + len(op), 8)
    g.stamp(6)
    g(f's_lshl_b32 {S_T0}, {S_WAVE}, 1')
    alpha_addr(g, 56, S_T0)
    g(f"""
    v_add_u32 v56, {LX_WUV}, v56
    v_xor_b32 v57, 32, v56
    s_lshl2_add_u32 {S_T4}, {S_H}, {S_WAVE}
    s_lshl2_add_u32 {S_T4}, {S_T4}, {S_J}
    s_lshl_b32 {S_T4}, {S_T4}, 8
    s_add_u32 {S_T4}, {S_T4}, {WS_H3P}
    v_and_b32 v8, 3, v0
    v_mul_u32_u24 v9, 272, v8
    v_lshl_add_u32 v9, v2, 4, v9
    v_add_u32 v60, {LX_CC}, v9
    s_and_b32 {S_B}, {S_WAVE}, 1
    s_lshr_b32 {S_HG}, {S_WAVE}, 1
    s_lshl1_add_u32 {S_B}, {S_B}, {S_HG}
    s_lshl2_add_u32 {S_T1}, {S_CU}, {S_B}
    s_lshl_b32 {S_T1}, {S_T1}, 12
    s_add_u32 {S_T1}, {S_T1}, {WS_H3}
    s_lshl_b32 {S_T0}, {S_B}, 6
    s_add_u32 {S_T0}, {S_T0}, {LX_WT}
    v_lshl_add_u32 v62, v2, 4, {S_T0}
    v_lshlrev_b32 v8, 4, v3
    v_lshl_add_u32 v96, v2, 10, v8
    v_lshl_add_u32 v8, v2, 3, v8
    s_mul_i32 {S_T5}, {S_WAVE}, 272
    s_add_u32 {S_T5}, {S_T5}, {LX_CC}
    v_add_u32 v97, {S_T5}, v8
    v_and_b32 v8, 1, v0
    v_lshlrev_b32 v8, 4, v8
    v_mov_b32 v9, 0xffff
    v_lshlrev_b32 v9, v8, v9
    """)
    for t in range(4):
        m = (3 << (2 * t)) * 0x01010101
        g(f's_mov_b32 vcc_lo, 0x{m:08x}')
        g(f's_mov_b32 vcc_hi, 0x{m:08x}')
        g(f'v_cndmask_b32 v{100+t}, 0, v9, vcc')
    mgate = o.get('mgate', 0)
    XR = [8, 9, 10, 20, 21, 22, 23, 28, 29, 30, 31, 60, 61, 62, 63, 96]
    if mgate:
        g(f"""
        s_lshr_b32 {S_T0}, {S_H}, 4
        s_lshl2_add_u32 {S_T0}, {S_T0}, {S_B}
        s_lshl_b32 {S_T0}, {S_T0}, 12
        s_and_b32 {S_T2}, {S_H}, 15
        s_lshl4_add_u32 {S_T0}, {S_T2}, {S_T0}
        s_add_u32 {S_T0}, {S_T0}, {WS_M + 8}
        s_add_u32 s54, s12, {S_T0}
        s_addc_u32 s55, s13, 0
        """)
    g('s_barrier')
    f1e = 1
    nxw = 0
    if f1e:
        if w1f:
            g('s_barrier')
        g(f's_waitcnt vmcnt({nxw})')
        g('s_barrier')
        g.stamp(7)

    def h3_loads():
        for u in range(4):
            g(f'buffer_load_dwordx4 {R(36+4*u)}, v96, {SRD_WS}, {S_T1} offen offset:{u*256} sc1')
    if mgate:
        sflag_issue(g, XR, S_PC, 256)
        sflag_wait(g, XR, S_PC, 256)
    else:
        g('s_barrier')
    h3_loads()
    g.stamp(8)
    g('s_waitcnt vmcnt(4)')
    g('s_barrier')
    g('ds_read_b128 v[20:23], v62')
    for s in range(4):
        for t in range(2):
            g(f'ds_read_b64_tr_b16 {R(64+8*s+4*t,2)}, v{56+t} offset:{s*9216}')
            g(f'ds_read_b64_tr_b16 {R(66+8*s+4*t,2)}, v{56+t} offset:{s*9216+4608}')
    g.stwait()
    g('s_waitcnt lgkmcnt(15)')
    for u in range(4):
        for t in range(4):
            g(f'v_and_b32 v{104+4*u+t}, v{20+u}, v{100+t}')
    lp = g.lab('h3')
    lp2 = g.lab('h3in')
    g(f's_branch {lp2}')
    g(f'{lp}:')
    h3_loads()
    spin_check(g)
    g(f'{lp2}:')
    for u in range(4):
        g(f's_waitcnt vmcnt({3-u})')
        for r in range(4):
            g(f'v_xor_b32 v{36+4*u+r}, {S_TAG2}, v{36+4*u+r}')
        or_chain(g, 8, range(36 + 4 * u, 40 + 4 * u), u == 0)
        c = '0' if u == 0 else R(12)
        g(f'{MF} {R(12)}, {R(104+4*u)}, {R(36+4*u)}, {c}')
    g(f"""
    v_and_b32 v8, 0x10001, v8
    v_cmp_ne_u32 vcc, 0, v8
    s_nop 3
    s_cbranch_vccnz {lp}
    s_mov_b32 exec_hi, 0
    v_cvt_pk_bf16_f32 v12, v12, v13
    v_cvt_pk_bf16_f32 v13, v14, v15
    ds_write_b64 v97, v[12:13]
    s_mov_b32 exec_hi, -1
    """)
    g.stamp(9)
    g('s_waitcnt lgkmcnt(0)')
    g('s_barrier')
    for s in range(4):
        g(f'ds_read_b128 {R(36+4*s)}, v60 offset:{s*64}')
    g('s_mov_b32 vcc_lo, 0xffff0000')
    g('s_mov_b32 vcc_hi, 0')
    for s in range(4):
        g(f's_waitcnt lgkmcnt({3-s})')
        for t in range(2):
            c = '0' if s == 0 else R(12 + 4 * t)
            g(f'{MF} {R(12+4*t)}, {R(36+4*s)}, {R(64+8*s+4*t)}, {c}')
    g(f"""
    s_nop 5
    s_mov_b32 exec_hi, 0
    v_add_f32 v12, v12, v14
    v_add_f32 v13, v13, v15
    v_add_f32 v16, v16, v18
    v_add_f32 v17, v17, v19
    v_cndmask_b32 v12, v12, v16, vcc
    v_cndmask_b32 v13, v13, v17, vcc
    v_bfi_b32 v12, {S_MASK}, v12, v6
    v_bfi_b32 v13, {S_MASK}, v13, v6
    buffer_store_dwordx2 v[12:13], v136, {SRD_WS}, {S_T4} offen {'sc1' if o.get('noloc3') else ''}
    """)
    g.stamp(10)
    if o.get('one', 0):
        for k in range(o.get('rb', 2)):
            g('s_waitcnt vmcnt(0)')
            g(f'buffer_load_dwordx2 v[12:13], v136, {SRD_WS}, {S_T4} offen sc1')
        g('s_waitcnt vmcnt(0)')
    else:
        g(f's_or_b32 {S_T4}, {S_T4}, {WS_SLOW}')
    if not o.get('noloc3'):
        g(f'buffer_store_dwordx2 v[12:13], v136, {SRD_WS}, {S_T4} offen sc1')
    g('s_mov_b32 exec_hi, -1')
    g('s_branch L_X_post')
    g('L_X_h1:')
    xt = o.get('xt', 0)
    xtpos = o.get('xtpos', 0)

    def xtouch():
        g(f"""
        s_load_dwordx2 s[54:55], s[0:1], 8
        s_and_b32 {S_T0}, s2, 7
        s_lshr_b32 {S_T1}, s2, 4
        s_lshl3_add_u32 {S_T0}, {S_T0}, {S_T1}
        s_bfe_u32 {S_T1}, s2, 0x10003
        s_lshl1_add_u32 {S_T0}, {S_T0}, {S_T1}
        s_lshl2_add_u32 {S_T0}, {S_T0}, {S_WAVE}
        s_lshl_b32 {S_T0}, {S_T0}, 14
        s_sub_u32 {S_T0}, {S_T0}, {3*16384 + xt*1024}
        v_lshl_add_u32 v8, v0, 7, {S_T0}
        s_waitcnt lgkmcnt(0)
        """)
        left = xt * 8
        if left < 64:
            g(f's_mov_b64 exec, {hex((1 << left) - 1)}' if left < 32 else f's_mov_b32 exec_hi, {hex((1 << (left-32)) - 1)}')
        g('global_load_dword v30, v8, s[54:55]')
        g('s_mov_b64 exec, -1')
    if xt and xtpos == 0:
        xtouch()
    f2pos = o.get('f2pos', 4)
    ne = o.get('ne', 0)
    flag_regs = f"""
    v_mov_b32 v32, v6
    v_mov_b32 v33, v6
    v_mov_b32 v34, v6
    v_mov_b32 v35, v6
    s_lshl_b32 {S_T4}, {S_CU}, 7
    s_add_u32 {S_T4}, {S_T4}, {WS_F2}
    """
    fl = f"""
    s_mov_b64 exec, 0xff
    buffer_store_dwordx4 v[32:35], v1, {SRD_WS}, {S_T4} offen sc1
    s_mov_b64 exec, -1
    """
    gather32_ldsaddr(g, 60, LX_QP - 256, 272)
    g(f"""
    v_lshl_add_u32 v60, {S_WAVE}, 6, v60
    v_lshlrev_b32 v8, 4, v3
    v_lshl_add_u32 v61, v2, 10, v8
    s_lshl4_add_u32 {S_T2}, {S_H}, {S_WAVE}
    s_lshl_b32 {S_T2}, {S_T2}, 8
    s_add_u32 {S_T2}, {S_T2}, {WS_H1 - 1024}
    s_sub_u32 {S_T5}, {S_WAVE}, 4
    s_mul_i32 {S_T0}, {S_T5}, 9
    """)
    omega_src(g, 64, 9, S_T0)
    g(f"""
    v_mul_u32_u24 v9, 9216, v2
    v_add_u32 v5, v135, v9
    s_cmp_lt_u32 {S_Y}, 27
    s_cbranch_scc1 L_X_a1
    s_lshl_b32 m0, {S_T0}, 10
    s_mul_i32 {S_OFF}, {S_SPLIT}, 36864
    s_add_u32 {S_OFF}, {S_OFF}, m0
    s_branch L_X_a2
    L_X_a1:
    s_mul_i32 {S_OFF}, {S_RS}, 48
    s_add_u32 {S_OFF}, {S_OFF}, {S_T5}
    s_mul_i32 {S_OFF}, {S_OFF}, {4*9216}
    s_lshl_b32 {S_T0}, {S_CG}, 8
    s_add_u32 {S_OFF}, {S_OFF}, {S_T0}
    s_mul_i32 m0, {S_T5}, 1152
    s_mov_b32 {S_T3}, {16*9216}
    L_X_a2:
    """)
    q1(False)

    def h1_fallback():
        g(f"""
        s_cbranch_scc1 L_X_nfb
        s_waitcnt vmcnt(0)
        s_and_b32 {S_T1}, {S_KEEP}, 0xfffffc00
        s_lshl_b32 {S_T0}, {S_T5}, 8
        s_add_u32 {S_T1}, {S_T1}, {S_T0}
        s_andn2_b32 {S_T0}, {S_T1}, {WS_SLOW}
        s_mov_b64 exec, 0xffff
        buffer_load_dwordx4 v[20:23], v1, {SRD_WS}, {S_T0} offen sc1
        s_waitcnt vmcnt(0)
        buffer_store_dwordx4 v[20:23], v1, {SRD_WS}, {S_T1} offen sc1
        s_mov_b64 exec, -1
        L_X_nfb:
        """)
    h1e = o.get('h1e', 1)
    if h1e:
        def b1b():
            g('s_waitcnt vmcnt(1)')
            g('s_barrier')
            g.stamp(12)
        if h1e == 2:
            g('s_waitcnt vmcnt(1)')
        if h1e == 3:
            g('s_waitcnt vmcnt(0)')
        gather32(g, 61, S_T2, 60, stamp=4, dual=h1_fallback, pre=b1b)
    else:
        g('s_waitcnt vmcnt(0)')
        g('s_barrier')
        g.stamp(12)
        gather32(g, 61, S_T2, 60, stamp=4, dual=h1_fallback)
    g('s_waitcnt lgkmcnt(0)')
    g('s_barrier')
    g(slowst)
    if xt and xtpos == 1:
        xtouch()
    g(f's_cmp_lt_u32 {S_Y}, 27')
    g('s_cbranch_scc0 L_X_nof1')
    for u in range(12):
        if u == ne:
            g('s_barrier')
        g(f'buffer_load_dwordx4 v5, {SRD_W1}, {S_OFF} offen {NT("x2nt", 1)} lds')
        if u < 11:
            g('s_addk_i32 m0, 4608')
            g(f's_add_u32 {S_OFF}, {S_OFF}, {S_T3}')
    if w1f:
        g('s_barrier')
    g('s_barrier')
    g.stamp(6)
    g(f's_lshl_b32 {S_T0}, {S_T5}, 1')
    alpha_addr(g, 56, S_T0)
    for s in range(6):
        g(f'ds_read_b128 {R(140+4*s)}, v10 offset:{1024+64*s}')
    g(f"""
    v_xor_b32 v57, 32, v56
    s_lshl2_add_u32 {S_T2}, {S_CG}, {S_T5}
    s_lshl2_add_u32 {S_T2}, {S_T2}, {S_RS}
    s_lshl_b32 {S_T2}, {S_T2}, 8
    s_add_u32 {S_T2}, {S_T2}, {WS_HF}
    """)
    if stamps and o.get('st7', 0):
        g('s_waitcnt vmcnt(0)')
        g.stamp(7)
    if not f1e:
        g('s_barrier')
    g('s_waitcnt vmcnt(0)')
    g('s_barrier')
    for s in range(6):
        for t in range(2):
            g(f'ds_read_b64_tr_b16 {R(80+8*s+4*t,2)}, v{56+t} offset:{s*9216}')
            g(f'ds_read_b64_tr_b16 {R(82+8*s+4*t,2)}, v{56+t} offset:{s*9216+4608}')
    f1pos = o.get('f1pos', 0)
    if f1pos == 1:
        g('s_barrier')
    g.stwait()
    for s in range(6):
        g(f's_waitcnt lgkmcnt({min(15, 20-4*s)})')
        for t in range(2):
            c = '0' if s == 0 else R(12 + 4 * t)
            g(f'{MF} {R(12+4*t)}, {R(140+4*s)}, {R(80+8*s+4*t)}, {c}')
    g(f"""
    s_mov_b32 vcc_lo, 0xffff0000
    s_mov_b32 vcc_hi, 0
    s_nop 4
    s_mov_b32 exec_hi, 0
    v_cndmask_b32 v12, v12, v16, vcc
    v_cndmask_b32 v13, v13, v17, vcc
    v_bfi_b32 v12, {S_MASK}, v12, v6
    v_bfi_b32 v13, {S_MASK}, v13, v6
    buffer_store_dwordx2 v[12:13], v136, {SRD_WS}, {S_T2} offen sc1
    s_mov_b32 exec_hi, -1
    """)
    g.stamp(11)
    if w1f:
        g('s_barrier')
    if f1e:
        g('s_barrier')
        g('s_barrier')
    if f1pos == 0:
        g('s_barrier')
    g('s_branch L_X_post')
    g('L_X_nof1:')
    g(f"""
    s_cmp_lt_u32 {S_Y}, 31
    s_cbranch_scc0 L_EXIT
    L_X_f2s:
    """)
    for u in range(9):
        if u == ne:
            g('s_barrier')
        g(f'buffer_load_dwordx4 v{64+u}, {SRD_O}, {S_OFF} offen offset:{(u&3)*1024} {NT("x2nt", 1)} lds')
        if u & 3 == 3:
            g('s_addk_i32 m0, 4096')
            g(f's_addk_i32 {S_OFF}, 4096')

    def f2x_prep(nb):
        g(f's_lshl_b32 {S_CG}, {S_T5}, 1')
        omega_addr(g, 56, S_CG)
        for k in range(nb):
            omega_reads(g, 56, 80 + 16 * k, LX_WO + 128 * k)
        bias_prep(g, S_SPLIT, 63, SRD_A)
        g(f's_mov_b32 {S_RS}, {S_T1}')
        act_addr(g, 61, LX_ACT)
        gather32_ldsaddr(g, 60, LX_ACT, 64)
        g(f"""
        v_lshl_add_u32 v60, {S_T5}, 7, v60
        v_lshl_add_u32 v61, {S_T5}, 7, v61
        s_mul_i32 {S_T3}, {S_SPLIT}, {H4S}
        s_lshl_b32 {S_T4}, {S_T5}, {9+H4U}
        s_add_u32 {S_T3}, {S_T3}, {S_T4}
        s_add_u32 {S_T3}, {S_T3}, {WS_H4}
        s_mov_b32 s98, 0xffff0000
        s_mov_b32 s99, 0xffff0000
        s_mov_b32 s48, 0
        s_mov_b32 s49, -1
        """)

    def f2x_run(nb):
        g('s_waitcnt vmcnt(0)')
        bias_unpack(g)
        gather32(g, 1, S_RS, 60, act=True, pre=lambda: g('s_barrier'))
        g('ds_read_b128 v[20:23], v61')
        g('s_waitcnt lgkmcnt(0)')
        for k in range(nb):
            for t in range(4):
                g(f'{MF} {R(112+16*k+4*t)}, {R(20)}, {R(80+16*k+4*t)}, 0')
        g('s_nop 7')
        for k in range(nb):
            a = 112 + 16 * k
            g(f"""
            v_cndmask_b32 v{a}, v{a}, v{a+4}, {S_CMP}
            v_cndmask_b32 v{a+1}, v{a+1}, v{a+5}, {S_CMP}
            v_cndmask_b32 v{a+8}, v{a+8}, v{a+12}, {S_CMP}
            v_cndmask_b32 v{a+9}, v{a+9}, v{a+13}, {S_CMP}
            v_cndmask_b32 v{a}, v{a}, v{a+8}, {S_EXC}
            v_cndmask_b32 v{a+1}, v{a+1}, v{a+9}, {S_EXC}
            v_add_u32 v{a}, 0x8000, v{a}
            v_add_u32 v{a+1}, 0x8000, v{a+1}
            v_cvt_pk_bf16_f32 v{a}, v{a}, v{a+1}
            v_bfi_b32 v{a}, {S_MASK2}, v{a}, v6
            buffer_store_dword v{a}, v55, {SRD_WS}, {S_T3} offen offset:{(256 << H4U)*k} sc1
            """)
        g.stamp(12)
        g('s_branch L_END')
    g(f"""
    v_lshlrev_b32 v55, 2, v0
    {'v_lshl_add_u32 v55, v2, 6, v55' if H4U else ''}
    {'s_barrier' if w1f else ''}
    s_barrier
    s_waitcnt vmcnt(0)
    {'s_barrier' if w1f else ''}
    s_barrier
    """)
    f2x_prep(2)
    g('s_barrier')
    g('s_barrier')
    f2x_run(2)
    g('L_X_w8:')
    pt4 = o.get('pt4', 3)

    def touch4():
        g(f"""
        s_lshr_b32 {S_T0}, s2, 3
        s_mul_i32 {S_T0}, {S_T0}, {9*H4S}
        s_add_u32 {S_T0}, {S_T0}, {WS_H4}
        s_and_b32 {S_T1}, s2, 7
        v_mul_u32_u24 v8, 43, v0
        v_lshrrev_b32 v8, 7, v8
        v_mul_u32_u24 v9, 3, v8
        v_sub_u32 v9, v0, v9
        v_lshl_add_u32 v9, v9, 3, {S_T1}
        v_cmp_gt_u32 vcc, 18, v9
        v_mul_u32_u24 v8, {H4S}, v8
        v_lshl_add_u32 v8, v9, {7+H4U}, v8
        s_and_b32 exec_lo, vcc_lo, 0x7ffffff
        s_mov_b32 exec_hi, 0
        buffer_load_dword v45, v8, {SRD_WS}, {S_T0} offen sc1
        {f'buffer_load_dword v45, v8, {SRD_WS}, {S_T0} offen offset:128 sc1' if H4U else ''}
        s_mov_b64 exec, -1
        """)
    set_role(g, r2)
    g(f"""
    """)
    if o.get('mlu', 1):
        g(f"""
        s_lshr_b32 {S_T1}, {S_H}, 2
        v_lshrrev_b32 v8, 2, v0
        v_add_u32 v8, {S_T1}, v8
        v_and_b32 v8, 3, v8
        v_lshl_add_u32 v8, v0, 2, v8
        v_lshlrev_b32 v62, 7, v8
        s_lshr_b32 {S_T2}, {S_H}, 4
        s_lshl_b32 {S_T2}, {S_T2}, 11
        s_and_b32 {S_T1}, {S_H}, 3
        s_add_u32 {S_T2}, {S_T2}, {S_T1}
        s_lshl_b32 {S_T2}, {S_T2}, 4
        """)
    else:
        g(f"""
        v_lshlrev_b32 v62, 8, v0
        s_lshr_b32 {S_T2}, {S_H}, 4
        s_lshl_b32 {S_T2}, {S_T2}, 14
        s_and_b32 {S_T1}, {S_H}, 15
        s_lshl4_add_u32 {S_T2}, {S_T1}, {S_T2}
        """)
    g(f"""
    s_add_u32 {S_T2}, {S_T2}, {WS_M}
    """)
    if o.get('k8', 0):
        wuk_dma()
        g('s_barrier')
        g('s_waitcnt vmcnt(4)')
        g('s_barrier')
    else:
        g('s_barrier')
        g('s_waitcnt vmcnt(0)')
        g('s_barrier')
        wuk_dma()
    g('s_waitcnt vmcnt(0)')
    g('s_barrier')
    g('s_barrier')
    touch4()
    g(f"""
    s_lshr_b32 {S_T0}, s2, 1
    s_and_b32 {S_T0}, {S_T0}, 60
    s_lshl_b64 exec, 15, {S_T0}
    buffer_load_dword v44, v62, {SRD_WS}, {S_T2} offen sc1
    s_and_b32 {S_T0}, s2, 7
    s_lshr_b32 {S_T1}, s2, 3
    s_lshl4_add_u32 {S_T0}, {S_T0}, {S_T1}
    s_lshl_b32 {S_T0}, {S_T0}, 10
    s_add_u32 {S_T1}, {S_T0}, {WS_H3P}
    s_mov_b64 exec, -1
    buffer_load_dwordx4 v[40:43], v1, {SRD_WS}, {S_T1} offen sc1
    s_lshl_b32 {S_T0}, s2, 10
    s_add_u32 {S_T1}, {S_T0}, {WS_HF}
    buffer_load_dwordx4 v[40:43], v1, {SRD_WS}, {S_T1} offen sc1
    s_barrier
    """)
    if w1f:
        g('s_barrier')
        g('s_barrier')
    g('s_barrier')
    g('s_barrier')
    g(f"""
    v_lshlrev_b32 v55, 2, v0
    {'v_lshl_add_u32 v55, v2, 6, v55' if H4U else ''}
    s_mov_b32 {S_T5}, 4
    s_sub_u32 {S_T0}, {S_Y}, 27
    s_cmp_lt_u32 {S_T0}, 4
    s_cbranch_scc0 L_X_w8n
    """)
    f2x_prep(1)
    g('L_X_w8n:')
    g('s_setprio 3')
    mls = o.get('mls', 8)
    if mls:
        if o.get('ml1', 1):
            g(f'''
            buffer_load_dwordx3 v[16:18], v62, {SRD_WS}, {S_T2} offen sc1
            s_waitcnt vmcnt(0)
            v_cmp_ne_u32 vcc, {S_EP}, v18
            s_nop 1
            s_cbranch_vccz L_X_mlok
            ''')
        lp = g.lab('ml0')
        m = 0
        for k in range(mls):
            m |= 1 << (k * (64 // mls))
        g(f'''
        s_lshr_b32 {S_T0}, s2, 3
        s_mul_i32 {S_T0}, {S_T0}, 5
        s_and_b32 {S_T0}, {S_T0}, {64 // mls - 1}
        s_mov_b32 exec_lo, 0x{m & 0xffffffff:x}
        s_mov_b32 exec_hi, 0x{m >> 32:x}
        s_lshl_b64 exec, exec, {S_T0}
        {lp}:
        buffer_load_dword v18, v62, {SRD_WS}, {S_T2} offen offset:8 sc1
        ''')
        spin_check(g)
        g(f'''
        s_waitcnt vmcnt(0)
        v_cmp_ne_u32 vcc, {S_EP}, v18
        s_nop 1
        s_cbranch_vccnz {lp}
        s_mov_b64 exec, -1
        ''')
    lp = g.lab('ml')
    g(f'''
    {lp}:
    {'s_sleep ' + str(o['slp']) if o.get('slp') else ''}
    buffer_load_dwordx3 v[16:18], v62, {SRD_WS}, {S_T2} offen sc1
    ''')
    spin_check(g)
    g(f'''
    s_waitcnt vmcnt(0)
    v_cmp_ne_u32 vcc, {S_EP}, v18
    s_nop 1
    s_and_b64 exec, exec, vcc
    s_cbranch_scc1 {lp}
    L_X_mlok:
    {'' if mgate else 's_barrier'}
    s_mov_b64 exec, -1
    v_max_f32_dpp v20, v16, v16 row_ror:1 {DPPF}
    v_lshlrev_b32 v8, 2, v0
    v_add_u32 v8, {LX_WT}, v8
    v_max_f32_dpp v20, v20, v20 row_ror:2 {DPPF}
    s_nop 1
    v_max_f32_dpp v20, v20, v20 row_ror:4 {DPPF}
    s_nop 1
    v_max_f32_dpp v21, v20, v20 row_ror:8 {DPPF}
    v_max_f32_dpp v20, v20, v20 row_ror:8 {DPPF}
    s_nop 1
    v_permlane16_swap_b32 v20, v21
    v_max_f32 v20, v20, v21
    v_sub_f32 v16, v16, v20
    v_exp_f32 v16, v16
    s_nop 0
    v_mul_f32 v17, v16, v17
    s_nop 1
    v_add_f32_dpp v17, v17, v17 row_ror:1 {DPPF}
    s_nop 1
    v_add_f32_dpp v17, v17, v17 row_ror:2 {DPPF}
    s_nop 1
    v_add_f32_dpp v17, v17, v17 row_ror:4 {DPPF}
    s_nop 1
    v_add_f32_dpp v21, v17, v17 row_ror:8 {DPPF}
    v_add_f32_dpp v17, v17, v17 row_ror:8 {DPPF}
    s_nop 1
    v_permlane16_swap_b32 v17, v21
    v_add_f32 v17, v17, v21
    v_rcp_f32 v17, v17
    s_nop 0
    v_mul_f32 v16, v16, v17
    v_cvt_pk_bf16_f32 v16, v16, v16
    ds_write_b32 v8, v16
    s_waitcnt lgkmcnt(0)
    s_barrier
    s_setprio 0
    s_sub_u32 {S_T0}, {S_Y}, 27
    s_cmp_lt_u32 {S_T0}, 4
    s_cbranch_scc0 L_X_w8e
    ''')
    f2x_run(1)
    g(f"""
    L_X_w8e:
    s_barrier
    L_X_post:
    s_cmp_lt_u32 {S_Y}, 16
    s_cbranch_scc0 L_END
    """)
    g('L_X_final:')
    g(f"""
    s_lshr_b32 {S_T0}, s2, 5
    s_and_b32 {S_T1}, s2, 7
    s_lshl3_add_u32 {S_T0}, {S_T0}, {S_T1}
    s_lshl1_add_u32 {S_CU}, {S_T0}, {S_J}
    s_cmp_lt_u32 {S_CU}, 36
    s_cbranch_scc0 L_END
    v_lshrrev_b32 v8, 2, v0
    v_mul_u32_u24 v8, {H4S}, v8
    v_and_b32 v9, 3, v0
    v_lshl_add_u32 v10, v9, 4, v8
    s_mul_i32 {S_T0}, {S_WAVE}, {16*H4S}
    s_lshl_b32 {S_T1}, {S_CU}, {6+H4U}
    s_add_u32 {S_T0}, {S_T0}, {S_T1}
    s_add_u32 {S_T0}, {S_T0}, {WS_H4}
    s_lshl_b32 {S_T4}, {S_CU}, 5
    v_lshlrev_b32 v55, 1, v3
    v_and_b32 v8, 1, v2
    v_mul_u32_u24 v56, 1152, v8
    v_add_u32 v56, v56, v55
    v_lshrrev_b32 v59, 1, v2
    v_lshl_add_u32 v8, v8, 1, v59
    v_lshl_add_u32 v8, v9, 2, v8
    v_mul_u32_u24 v8, 48, v8
    v_lshl_add_u32 v8, {S_WAVE}, 2, v8
    v_and_b32 v11, 31, v0
    v_mul_u32_u24 v11, 48, v11
    v_add_u32 v61, {LX_FIN}, v11
    v_lshl_add_u32 v60, v59, 4, v61
    v_add_u32 v59, {LX_FIN}, v8
    {'s_barrier' if o.get('rb', 0) else ''}
    s_cmp_eq_u32 {S_WAVE}, 8
    s_cbranch_scc0 L_X_nxb
    buffer_load_ushort v57, v56, {SRD_X}, {S_T4} offen
    buffer_load_ushort v58, v55, {SRD_B2}, {S_T4} offen
    L_X_nxb:
    """)
    lp = g.lab('h4')
    D = o.get('h4d', 1)
    if D == 1:
        g(f'{lp}:')
        g(f'buffer_load_dwordx4 {R(16)}, v10, {SRD_WS}, {S_T0} offen sc1')
        spin_check(g)
        g('s_waitcnt vmcnt(0)')
        for r in range(4):
            g(f'v_xor_b32 v{16+r}, {S_TAG2}, v{16+r}')
        or_chain(g, 8, range(16, 20), True)
        g(f"""
        v_and_b32 v8, 0x10001, v8
        v_cmp_ne_u32 vcc, 0, v8
        v_permlane32_swap_b32 v16, v17
        v_permlane32_swap_b32 v18, v19
        s_cbranch_vccnz {lp}
        """)
    else:
        for k in range(D - 1):
            g(f'buffer_load_dwordx4 {R(64+4*k)}, v10, {SRD_WS}, {S_T0} offen sc1')
        g(f'{lp}:')
        spin_check(g)
        for k in range(D):
            g(f'buffer_load_dwordx4 {R(64+4*((k+D-1) % D))}, v10, {SRD_WS}, {S_T0} offen sc1')
            g(f's_waitcnt vmcnt({D-1})')
            for r in range(4):
                g(f'v_xor_b32 v{16+r}, {S_TAG2}, v{64+4*k+r}')
            or_chain(g, 8, range(16, 20), True)
            g(f"""
            v_and_b32 v8, 0x10001, v8
            v_cmp_ne_u32 vcc, 0, v8
            v_permlane32_swap_b32 v16, v17
            v_permlane32_swap_b32 v18, v19
            s_cbranch_vccz {lp}_ok
            """)
            if o.get('h4p', 0):
                g(f's_sleep {o["h4p"]}')
        g(f's_branch {lp}')
        g(f'{lp}_ok:')
    g.stamp(13)
    g(f"""
    v_lshlrev_b32 v20, 16, v16
    v_and_b32 v21, 0xffff0000, v16
    v_lshlrev_b32 v22, 16, v17
    v_and_b32 v23, 0xffff0000, v17
    v_lshlrev_b32 v24, 16, v18
    v_and_b32 v25, 0xffff0000, v18
    v_lshlrev_b32 v26, 16, v19
    v_and_b32 v27, 0xffff0000, v19
    v_pk_add_f32 v[20:21], v[20:21], v[22:23]
    v_pk_add_f32 v[24:25], v[24:25], v[26:27]
    v_lshlrev_b32 v57, 16, v57
    v_lshlrev_b32 v58, 16, v58
    v_permlane16_swap_b32 v20, v24
    v_permlane16_swap_b32 v21, v25
    v_pk_add_f32 v[20:21], v[20:21], v[24:25]
    v_add_f32 v57, v57, v58
    s_cmp_eq_u32 {S_WAVE}, 8
    v_add_f32_dpp v20, v20, v20 row_ror:8 {DPPF}
    v_add_f32_dpp v21, v21, v21 row_ror:8 {DPPF}
    s_nop 0
    v_add_f32_dpp v20, v20, v20 row_ror:4 {DPPF}
    v_add_f32_dpp v21, v21, v21 row_ror:4 {DPPF}
    ds_write2_b32 v59, v20, v21 offset0:0 offset1:192
    s_waitcnt lgkmcnt(0)
    s_barrier
    s_cbranch_scc0 L_END
    ds_read_b128 v[16:19], v60
    ds_read_b32 v20, v61 offset:32
    s_waitcnt lgkmcnt(1)
    v_pk_add_f32 v[16:17], v[16:17], v[18:19]
    v_add_f32 v18, v16, v17
    v_add_f32 v16, v16, v17
    s_waitcnt lgkmcnt(0)
    v_add_f32 v57, v57, v20
    v_permlane32_swap_b32 v16, v18
    v_add3_u32 v8, 0, 0, 0
    v_add_f32 v16, v16, v18
    v_add_f32 v16, v16, v57
    v_cvt_pk_bf16_f32 v16, v16, v16
    s_mov_b32 exec_hi, 0
    buffer_store_short v16, v56, {SRD_OUT}, {S_T4} offen {'sc1' if o.get('osc1') else ''}
    """.replace("    v_add3_u32 v8, 0, 0, 0\n", ""))
    if o.get('hold'):
        g(f'''
        s_and_b32 s94, s2, 7
        s_lshr_b32 s94, {o.get('holdm', 1)}, s94
        s_and_b32 s94, s94, 1
        s_cbranch_scc0 L_nohold
        L_hold:
        s_memrealtime s[94:95]
        s_waitcnt lgkmcnt(0)
        s_sub_u32 s94, s94, s92
        s_cmp_lt_u32 s94, {o['hold']}
        s_cbranch_scc1 L_hold
        L_nohold:
        ''')
    g(f'''
    s_cmp_eq_u32 s2, 0
    s_cbranch_scc0 L_END
    v_mov_b32 v17, {S_EP}
    v_mov_b32 v18, 0
    buffer_store_dword v17, v18, {SRD_WS}, 0 offen {'sc1' if o.get('osc1') else ''}
    s_branch L_END
    ''')

    g('L_Y2:')
    clear_stamps(1)
    g(f"""
    s_mov_b32 s10, {2*4096*1024}
    s_sub_u32 {S_Y}, s2, 128
    s_bfe_u32 {S_HG}, s2, 0x10003
    s_and_b32 {S_T0}, s2, 7
    s_lshr_b32 {S_T1}, {S_Y}, 4
    s_lshl3_add_u32 {S_SPLIT}, {S_T0}, {S_T1}
    s_lshl1_add_u32 {S_OFF}, {S_SPLIT}, {S_HG}
    s_lshl2_add_u32 {S_OFF}, {S_OFF}, {S_WAVE}
    s_lshl_b32 {S_OFF}, {S_OFF}, 14
    s_mul_i32 m0, {S_WAVE}, 16896
    s_cmp_lt_u32 {S_WAVE}, 4
    s_waitcnt lgkmcnt(0)
    s_load_dword {S_EP}, s[12:13], 0
    s_cmp_eq_u32 {S_WAVE}, 5
    s_cbranch_scc0 L_Y_nh1
    s_lshr_b32 {S_T1}, {S_Y}, 3
    s_lshl4_add_u32 {S_T0}, {S_T0}, {S_T1}
    s_lshl_b32 {S_T0}, {S_T0}, 10
    s_add_u32 {S_T0}, {S_T0}, {WS_H1}
    buffer_load_dwordx4 v[16:19], v1, {SRD_WS}, {S_T0} offen sc1
    L_Y_nh1:
    s_cmp_lt_u32 {S_WAVE}, 4
    s_barrier
    s_cbranch_scc0 L_Y_noc
    """)
    nc0 = o.get('nc0', 8)

    def ckv_dma(a, b, yp=''):
        for n in range(a, b):
            k, u = n >> 2, n & 3
            w = n - a < len(yp) and yp[n - a] != '9'
            if w:
                g(f's_waitcnt vmcnt({yp[n-a]})')
            g(f'buffer_load_dwordx4 v1, {SRD_A}, {S_OFF} offen offset:{u*1024} {cnt} lds')
            if u < 3:
                g('s_addk_i32 m0, 32')
                g('s_nop 0')
            elif k < 7:
                g(f's_add_u32 m0, m0, {4128 + (48*1056 if k == 3 else 0)}')
                if k == 3:
                    g(f's_xor_b32 {S_OFF}, {S_OFF}, {0x1c000 if o.get("rev", 1) else 0x13000}')
                    g('s_barrier')
                else:
                    g(f's_addk_i32 {S_OFF}, {-4096 if (k > 3 and o.get("rev", 1)) else 4096}')
    ckv_dma(0, nc0, str(o.get('yp', '9')))
    g('L_Y_noc:')
    post = []
    post += srd(g, SRD_W1, 40, 0 if o.get('nowo') else 4096 * 1152)
    post += srd(g, SRD_C, 64, 9216)
    post += srd(g, SRD_O, 72, 0 if o.get('now2') else 4608 * 1152)
    for p in post:
        g(p)
    g(f"""
    s_lshr_b32 {S_B}, {S_SPLIT}, 5
    s_and_b32 {S_T0}, s2, 7
    s_lshr_b32 {S_T1}, {S_Y}, 3
    s_lshl4_add_u32 {S_CU}, {S_T0}, {S_T1}
    s_lshr_b32 {S_T2}, {S_T1}, 2
    """)
    phys_head(g, S_PH, S_T0, S_T2, S_T3)
    g(f"""
    s_and_b32 {S_T1}, {S_T1}, 3
    s_lshl2_add_u32 {S_PH}, {S_PH}, {S_T1}
    s_lshl2_add_u32 {S_H}, {S_T0}, {S_T1}
    """)
    misc_consts(g)
    g('s_waitcnt lgkmcnt(0)')
    make_tag(g)
    g(f"""
    s_cmp_eq_u32 {S_WAVE}, 8
    s_cbranch_scc1 L_Y_w8
    s_cmp_lt_u32 {S_WAVE}, 4
    s_cbranch_scc0 L_Y_nqk
    """)
    ckv_dma(nc0, 16)
    g(f'''
    v_mul_u32_u24 v8, 1056, v3
    v_lshl_add_u32 v8, v2, 4, v8
    s_mul_i32 {S_T0}, {S_WAVE}, 16896
    v_add_u32 v4, {S_T0}, v8
    v_add_u32 v7, 67584, v4
    v_add_u32 v5, {LY_Q}, v8
    v_lshlrev_b32 v13, 4, v3
    v_add_u32 v11, {LY_MX}, v13
    v_lshl_add_u32 v10, {S_WAVE}, 2, v11
    s_lshl_b32 {S_T0}, {S_WAVE}, 10
    s_add_u32 {S_T0}, {S_T0}, {LY_P}
    v_add_u32 v12, {S_T0}, v1
    s_mov_b32 {S_T1}, 0x{f2u(SCALE):08x}
    ''')

    def kread(t, ks):
        g(f'ds_read_b128 {R(40+8*ks+4*t)}, v{7 if t else 4} offset:{ks*64}')
    hb = o.get('hb', 16)
    kb = o.get('kb', 4)
    ckv_dma(16, 32)
    g('s_waitcnt vmcnt(16)')
    g.stamp(1)
    g('s_barrier')
    for ks in range(16):
        kread(0, ks)
    g(f's_waitcnt vmcnt({o.get("hw", 8)})')
    g('s_barrier')
    g('s_waitcnt vmcnt(0) lgkmcnt(0)')
    g.stamp(2)
    g.stwait()
    for ks in range(kb):
        kread(1, ks)
    g('s_barrier')
    order = [('q', k) for k in range(4)]
    nk = kb
    pos = {}
    seq = []

    def issue(item):
        seq.append(item)
        pos[item] = len(seq)
        if item[0] == 'q':
            g(f'ds_read_b128 {R(16 + 4*(item[1] & 3))}, v5 offset:{item[1]*64}')
        else:
            kread(1, item[1])
    for k in range(4):
        issue(('q', k))
        if nk <= k + 1 and nk < 16:
            issue(('k', nk))
            nk += 1
    for ks in range(16):
        q = 16 + 4 * (ks & 3)
        need = max(pos[('q', ks)], pos.get(('k', ks), 0))
        g(f's_waitcnt lgkmcnt({len(seq) - need})')
        for t in range(2):
            c = '0' if ks == 0 else R(32 + 4 * t)
            g(f'{MF} {R(32+4*t)}, {R(40+8*ks+4*t)}, {R(q)}, {c}')
        if ks + 4 < 16:
            issue(('q', ks + 4))
        if nk < 16:
            issue(('k', nk))
            nk += 1
        assert nk > min(ks + 1, 15)
    g(f'''
    s_nop 6
    v_max3_f32 v8, v32, v33, v34
    v_max3_f32 v8, v8, v35, v36
    v_max3_f32 v8, v8, v37, v38
    v_max_f32 v9, v8, v39
    v_max_f32 v8, v8, v39
    s_nop 1
    v_permlane16_swap_b32 v8, v9
    v_max_f32 v15, v8, v9
    v_max_f32 v8, v8, v9
    s_nop 1
    v_permlane32_swap_b32 v8, v15
    v_max_f32 v8, v8, v15
    ds_write_b32 v10, v8
    s_waitcnt lgkmcnt(0)
    s_barrier
    ds_read_b128 v[16:19], v11
    s_waitcnt lgkmcnt(0)
    v_max3_f32 v8, v16, v17, v18
    v_max_f32 v8, v8, v19
    v_mul_f32 v24, {S_T1}, v8
    ''')
    for r in range(8):
        g(f'v_fma_f32 v{32+r}, v{32+r}, {S_T1}, -v24')
    for r in range(8):
        g(f'v_exp_f32 v{32+r}, v{32+r}')
    for r in range(4):
        g(f'v_cvt_pk_bf16_f32 v{16+r}, v{32+2*r}, v{33+2*r}')
    g(f'''
    ds_write_b128 v12, v[16:19]
    v_pk_add_f32 v[32:33], v[32:33], v[34:35]
    v_pk_add_f32 v[36:37], v[36:37], v[38:39]
    v_pk_add_f32 v[32:33], v[32:33], v[36:37]
    v_add_f32 v8, v32, v33
    v_add_f32 v9, v32, v33
    s_nop 1
    v_permlane16_swap_b32 v8, v9
    v_add_f32 v15, v8, v9
    v_add_f32 v8, v8, v9
    s_nop 1
    v_permlane32_swap_b32 v8, v15
    v_add_f32 v8, v8, v15
    ds_write_b32 v10, v8 offset:256
    s_waitcnt lgkmcnt(0)
    s_barrier
    ''')
    g.stamp(6)
    n1 = o.get('n1', 6)
    n2 = o.get('n2', 3)
    rest = 36 - 4 * (n1 + n2)
    assert rest >= 0 and rest % 4 == 0
    n3 = rest // 4

    def w2_batch(first_sgpr, n, vsrc):
        for u in range(n):
            if u % 4 == 0:
                g(f's_lshl_b32 {S_T4}, {first_sgpr}, 10')
                g(f's_add_u32 m0, {S_T4}, {LY_WOA + (u>>2)*4096}')
                g(f's_mul_i32 {S_OFF}, {S_Y}, 36864')
                g(f's_add_u32 {S_OFF}, {S_OFF}, m0')
            g(f'buffer_load_dwordx4 v{vsrc+u}, {SRD_O}, {S_OFF} offen offset:{(u&3)*1024} {NT("wnt", 1)} lds')
    if n2 + n3:
        g(f's_mul_i32 {S_T5}, {S_WAVE}, {n2 + n3}')
        g(f's_add_u32 {S_T5}, {S_T5}, {4*n1}')
        omega_src(g, 40, n2 + n3, S_T5)
        w2_batch(S_T5, n2, 40)
        g(f's_add_u32 {S_T5}, {S_T5}, {n2}')
    no = o.get('no', 0)
    if no:
        assert n3 == 0
        g(f's_lshl_b32 {S_T0}, {S_WAVE}, 2')
        omega_src(g, 24, 4, S_T0)
        g(f"""
        s_lshl_b32 {S_T0}, {S_WAVE}, 12
        s_add_u32 m0, {S_T0}, {LY_WOB}
        s_mul_i32 {S_OFF}, {S_PH}, 36864
        s_add_u32 {S_OFF}, {S_OFF}, {S_T0}
        """)
        for u in range(4):
            if u == no:
                g('s_barrier')
            g(f'buffer_load_dwordx4 v{24+u}, {SRD_W1}, {S_OFF} offen offset:{u*1024} {NT("wnt", 1)} lds')
        if no == 4:
            g('s_barrier')
        g('s_branch L_Y_b5b')
    else:
        g('s_barrier')
        w2_batch(S_T5, n3, 40 + n2)
        g('s_branch L_Y_b5')
    g('L_Y_nqk:')
    g(f"""
    s_sub_u32 {S_T5}, {S_WAVE}, 4
    s_mul_i32 {S_T5}, {S_T5}, {n1}
    """)

    def pv_setup():
        if n1:
            omega_src(g, 24, n1, S_T5)
        g(f"""
        v_lshrrev_b32 v8, 2, v0
        v_mul_u32_u24 v8, 1056, v8
        v_and_b32 v9, 3, v0
        v_lshl_add_u32 v8, v9, 3, v8
        s_lshl_b32 {S_T0}, {S_WAVE}, 8
        s_sub_u32 {S_T0}, {S_T0}, 1024
        v_add_u32 v4, {S_T0}, v8
        v_add_u32 v5, 67584, v4
        v_add_u32 v12, {LY_P}, v1
        v_lshlrev_b32 v8, 4, v3
        v_lshl_add_u32 v13, v2, 18, v8
        s_lshl_b32 {S_T0}, {S_HG}, 20
        s_lshl_b32 {S_T3}, {S_WAVE}, 14
        s_add_u32 {S_T0}, {S_T0}, {S_T3}
        s_lshl_b32 {S_T3}, {S_SPLIT}, 8
        s_add_u32 {S_T0}, {S_T0}, {S_T3}
        s_add_u32 {S_T0}, {S_T0}, {WS_H3 - 4*16384}
        s_add_u32 {S_T1}, {S_T0}, 0x10000
        s_add_u32 {S_T2}, {S_T0}, 0x20000
        s_add_u32 {S_T3}, {S_T0}, 0x30000
        """)
    pv_setup()

    def vreads(t, c0, c1, s0=0, s1=4):
        for ct in range(c0, c1):
            for s in range(s0, s1):
                g(f'ds_read_b64_tr_b16 {R(40+16*ct+4*s+2*t,2)}, v{4+t} offset:{s*16896 + ct*32}')
    g(f"""
    s_lshl2_add_u32 {S_T4}, {S_HG}, {S_WAVE}
    s_lshl3_add_u32 {S_KEEP}, {S_B}, {S_T4}
    s_lshl_b32 {S_KEEP}, {S_KEEP}, 12
    s_add_u32 {S_KEEP}, {S_KEEP}, {WS_H2 - 16384}
    s_mul_i32 {S_OFF}, {S_WAVE}, 4224
    s_add_u32 {S_OFF}, {S_OFF}, {LY_Q - 4*4224}
    v_add_u32 v14, {S_OFF}, v1
    s_barrier
    s_barrier
    """)
    HR = [16, 20, 32, 36]

    def h2_loads():
        for u in range(4):
            g(f'buffer_load_dwordx4 {R(HR[u])}, v1, {SRD_WS}, {S_KEEP} offen offset:{u*1024} sc1')
    v0a = o.get('v0a', 0)
    v0s = o.get('v0s', 4)
    v0p = 0
    assert v0s * 16896 >= 4096 * n1
    vreads(0, 0, 8, 0, v0a)
    g('s_barrier')
    g.stamp(4)
    h2_loads()
    yw = o.get('yw', 0)
    if yw:
        g(f"""
        s_mul_i32 {S_T4}, {S_PH}, 36864
        s_mul_i32 {S_OFF}, {S_WAVE}, {yw*128}
        s_add_u32 {S_T4}, {S_T4}, {S_OFF}
        s_add_u32 {S_T4}, {S_T4}, {36864 - 8*yw*128}
        v_lshlrev_b32 v8, 7, v0
        {lanes(yw) if yw < 64 else ''}
        buffer_load_dword v15, v8, {SRD_W1}, {S_T4} offen
        s_mov_b64 exec, -1
        """)
    vreads(0, 0, 8, v0a, v0s)
    lp = g.lab('h2')
    if yw:
        for u in range(4):
            g(f's_waitcnt vmcnt({4-u})')
            for r in range(4):
                g(f'v_xor_b32 v{HR[u]+r}, {S_TAG2}, v{HR[u]+r}')
            g(f'ds_write_b128 v14, {R(HR[u])} offset:{u*1056}')
            or_chain(g, 8, range(HR[u], HR[u] + 4), u == 0)
        g(f's_branch {lp}_chk')
    else:
        g(f's_branch {lp}_in')
    g(f'{lp}:')
    h2_loads()
    spin_check(g)
    g(f'{lp}_in:')
    for u in range(4):
        g(f's_waitcnt vmcnt({3-u})')
        for r in range(4):
            g(f'v_xor_b32 v{HR[u]+r}, {S_TAG2}, v{HR[u]+r}')
        g(f'ds_write_b128 v14, {R(HR[u])} offset:{u*1056}')
        or_chain(g, 8, range(HR[u], HR[u] + 4), u == 0)
    g(f"""
    {lp}_chk:
    v_and_b32 v8, 0x10001, v8
    v_cmp_ne_u32 vcc, 0, v8
    s_waitcnt lgkmcnt(0)
    s_nop 0
    s_cbranch_vccnz {lp}
    """)
    if v0p == 1:
        vreads(0, 0, 8, 0, v0s)
        g('s_waitcnt lgkmcnt(0)')
    g.stamp(5)
    g('s_barrier')
    g.stamp(3)
    assert n1 <= 8
    vs = o.get('vs', 2)
    n1a = o.get('n1a', n1)
    w2_batch(S_T5, n1a, 24)
    vreads(0, 0, 8, v0s, 4)
    vreads(1, 0, vs)
    g('s_barrier')
    if n1a < n1:
        g(f's_add_u32 {S_T5}, {S_T5}, {n1a}')
        w2_batch(S_T5, n1 - n1a, 24 + n1a)
    vreads(1, vs, 8)
    g('s_waitcnt lgkmcnt(0)')
    g('s_setprio 2')
    g('s_barrier')
    PR = 16
    for s in range(4):
        g(f'ds_read_b128 {R(PR+4*s)}, v12 offset:{s*1024}')

    def accreg(u):
        return 32 if u == 0 else 40 + 32 * (u - 1)
    PK = 56

    def pack(u):
        a = accreg(u)
        return [f'v_cvt_pk_bf16_f32 v{PK+4*r+u}, v{a+r}, v{a+4+r}' for r in range(4)] + \
               [f'v_bfi_b32 v{PK+4*r+u}, {S_MASK2}, v{PK+4*r+u}, v6' for r in range(4)]
    pend = []
    for u in range(4):
        a = accreg(u)
        n = 0
        for s in range(4):
            if u == 0:
                g(f's_waitcnt lgkmcnt({3-s})')
            for t in range(2):
                ct = 2 * u + t
                c = '0' if s == 0 else R(a + 4 * t)
                g(f'{MF} {R(a+4*t)}, {R(PR+4*s)}, {R(40+16*ct+4*s)}, {c}')
                n += 1
                if u >= 2 and pend:
                    g(pend.pop(0))
        if u >= 1:
            pend += pack(u - 1)
    for e in pend:
        g(e)
    a = accreg(3)
    for r, sr in enumerate((S_T0, S_T1, S_T2, S_T3)):
        g(f'v_cvt_pk_bf16_f32 v{PK+4*r+3}, v{a+r}, v{a+4+r}')
        g(f'v_bfi_b32 v{PK+4*r+3}, {S_MASK2}, v{PK+4*r+3}, v6')
        g(f'buffer_store_dwordx4 {R(PK+4*r)}, v13, {SRD_WS}, {sr} offen sc1')
    g('s_setprio 0')
    g.stamp(7)
    g(f's_waitcnt vmcnt({o.get("swait", 4)})')
    g('s_barrier')
    g('s_branch L_Y_b5')
    g('L_Y_w8:')
    if o.get('yt', 0):
        g(f"""
        s_load_dwordx2 s[32:33], s[0:1], 56
        s_mov_b32 s34, {576*9216}
        s_mov_b32 s35, s11
        s_and_b32 {S_T0}, s2, 31
        s_mul_i32 {S_CG}, {S_T0}, 43
        s_lshr_b32 {S_CG}, {S_CG}, 7
        s_mul_i32 {S_RS}, {S_CG}, 3
        s_sub_u32 {S_RS}, {S_T0}, {S_RS}
        s_bfe_u32 {S_J}, s2, 0x20005
        s_add_u32 {S_T1}, s2, {S_J}
        s_add_u32 {S_T1}, {S_T1}, {r3}
        s_and_b32 {S_T1}, {S_T1}, 3
        s_lshl2_add_u32 {S_CG}, {S_CG}, {S_T1}
        s_mul_i32 {S_RS}, {S_RS}, {192*9216}
        s_lshl_b32 {S_CG}, {S_CG}, 8
        s_add_u32 {S_RS}, {S_RS}, {S_CG}
        s_add_u32 {S_RS}, {S_RS}, {160*9216}
        s_cmp_lt_u32 {S_T0}, 27
        s_cselect_b32 {S_RS}, {S_RS}, -1
        """)
        if o.get('ytc', 0):
            g(f's_cmp_eq_u32 {S_T1}, 1')
            g(f's_cselect_b32 {S_RS}, {S_RS}, -1')
        g(f"""
        v_lshrrev_b32 v8, 1, v0
        v_mul_u32_u24 v8, 9216, v8
        v_and_b32 v9, 1, v0
        v_lshl_add_u32 v28, v9, 7, v8
        s_waitcnt lgkmcnt(0)
        """)
    g(f"""
    v_add_u32 v11, {LY_MX}, v1
    s_lshl_b32 {S_T0}, {S_HG}, 6
    s_add_u32 {S_T0}, {S_T0}, {S_SPLIT}
    s_lshl_b32 {S_T0}, {S_T0}, {9 if o.get('mlu', 1) else 8}
    s_add_u32 {S_T0}, {S_T0}, {WS_M}
    s_and_b32 {S_T1}, {S_SPLIT}, 12
    v_add_u32 v8, {S_T1}, v0
    v_bfe_u32 v8, v8, 2, 2
    v_and_b32 v9, 3, v0
    v_lshlrev_b32 v9, 4, v9
    v_lshl_add_u32 v13, v8, 7, v9
    s_mov_b32 {S_T1}, 0x{f2u(SCALE):08x}
    v_mov_b32 v22, v6
    v_mov_b32 v23, v6
    v_lshlrev_b32 v7, 7, v0
    s_lshl_b32 {S_T3}, {S_HG}, 13
    s_add_u32 {S_T3}, {S_T3}, {WS_F2}
    s_setprio 3
    """)
    g('s_barrier')
    g.stamp(14)
    g('s_barrier')
    g('s_barrier')
    g('s_barrier')
    if o.get('yt', 0):
        g(f"""
        s_cmp_lt_u32 {S_RS}, 0x10000000
        s_cbranch_scc0 L_Y_nyt
        """)
        for k in range(o['yt'] // 32):
            g(f'buffer_load_dword v30, v28, {SRD_B2}, {S_RS} offen')
            g(f's_sub_u32 {S_RS}, {S_RS}, {32*9216}')
        g('L_Y_nyt:')
    g('s_mov_b64 exec, 0xffff')
    g('s_barrier')
    g(f"""
    ds_read_b128 v[16:19], v11
    s_waitcnt lgkmcnt(0)
    v_max3_f32 v8, v16, v17, v18
    v_max_f32 v8, v8, v19
    v_mul_f32 v20, {S_T1}, v8
    s_barrier
    ds_read_b128 v[16:19], v11 offset:256
    s_waitcnt lgkmcnt(0)
    v_add_f32 v16, v16, v17
    v_add_f32 v18, v18, v19
    v_add_f32 v21, v16, v18
    buffer_store_dwordx4 v[20:23], v{13 if o.get('mlu', 1) else 1}, {SRD_WS}, {S_T0} offen sc1
    s_mov_b64 exec, -1
    s_setprio 0
    """)
    g.stamp(13)
    g('s_barrier')
    g('L_Y_b5:')
    GW = o.get('gw', 7)
    g(f"""
    s_cmp_eq_u32 {S_WAVE}, {GW}
    s_cbranch_scc0 L_Y_nh
    """)
    bias_prep(g, S_Y, 63)
    g(f"""
    s_mov_b32 exec_hi, 0xffff
    buffer_load_dwordx4 v[16:19], v1, {SRD_WS}, {S_T1} offen sc1
    s_mov_b32 exec_hi, -1
    L_Y_nh:
    """)
    if o.get('pt3', 0):
        g(f"""
        s_cmp_eq_u32 {S_WAVE}, {GW+1}
        s_cbranch_scc0 L_Y_npt
        s_lshl_b32 {S_T2}, {S_CU}, 10
        s_add_u32 {S_T2}, {S_T2}, {WS_H3P}
        buffer_load_dwordx4 v[16:19], v1, {SRD_WS}, {S_T2} offen sc1
        L_Y_npt:
        """)
    g(f's_lshl_b32 {S_T0}, {S_WAVE}, 2')
    omega_src(g, 24, 4, S_T0)
    g(f"""
    s_lshl_b32 {S_T0}, {S_WAVE}, 12
    s_add_u32 m0, {S_T0}, {LY_WOB}
    s_mul_i32 {S_OFF}, {S_PH}, 36864
    s_add_u32 {S_OFF}, {S_OFF}, {S_T0}
    """)
    for u in range(4):
        if u < o.get('skipw', 0):
            g(f'v_mov_b32 v{24+u}, 0x7fff0000')
        g(f'buffer_load_dwordx4 v{24+u}, {SRD_W1}, {S_OFF} offen offset:{u*1024} {NT("wnt", 1)} lds')
    g('L_Y_b5b:')
    g.stamp(8)
    omega_addr(g, 56)
    act_addr(g, 61, LY_ACT)
    h4_soff(g, S_Y)
    gather32_ldsaddr(g, 60, LY_ACT, 64)
    g(f"""
    v_lshlrev_b32 v62, 2, v0
    {'v_lshl_add_u32 v62, v2, 6, v62' if H4U else ''}
    s_lshl_b32 {S_T2}, {S_CU}, 10
    s_add_u32 {S_T2}, {S_T2}, {WS_H3P}
    s_mov_b32 s98, 0xffff0000
    s_mov_b32 s99, 0xffff0000
    s_mov_b32 s48, 0
    s_mov_b32 s49, -1
    s_cmp_eq_u32 {S_WAVE}, {GW}
    s_cbranch_scc0 L_Y_nh2
    s_waitcnt vmcnt(4)
    s_mov_b32 exec_lo, 0
    s_mov_b32 exec_hi, 0xffff0000
    """)
    bias_unpack(g)
    g('s_mov_b32 exec_lo, -1')
    gather32(g, 1, S_T1, 60, act=True, stamp=10, have=True)
    g(f"""
    L_Y_nh2:
    s_cmp_eq_u32 {S_WAVE}, {GW+1}
    s_cbranch_scc1 L_Y_ctx
    s_waitcnt vmcnt(0) lgkmcnt(0)
    """)

    def block_a():
        g.stamp(9)
        g('s_barrier')
        g('ds_read_b128 v[20:23], v61')
        omega_reads(g, 56, 80, LY_WOA)
        omega_reads(g, 56, 96, LY_WOB)

    def mfma_a():
        for t in range(4):
            g(f'{MF} {R(36+4*t)}, {R(20)}, {R(80+4*t)}, 0')
    block_a()
    g('s_waitcnt lgkmcnt(8)')
    g.stwait()
    mfma_a()
    g(f"""
    s_branch L_Y_c
    L_Y_ctx:
    s_setprio 2
    s_waitcnt vmcnt({o.get('cw', 1)})
    """)

    def pre():
        g('s_waitcnt vmcnt(1)')
        block_a()
        g('s_waitcnt lgkmcnt(8)')
        g.stwait()
        mfma_a()
    gather32(g, 1, S_T2, 60, lds_off=128, stamp=11, dual=True, pre=pre)
    g(f"""
    L_Y_c:
    s_waitcnt lgkmcnt(0)
    s_barrier
    ds_read_b128 v[24:27], v61 offset:128
    s_waitcnt lgkmcnt(0)
    """)
    for t in range(4):
        g(f'{MF} {R(36+4*t)}, {R(24)}, {R(96+4*t)}, {R(36+4*t)}')
    g(f"""
    s_nop 5
    v_cndmask_b32 v36, v36, v40, {S_CMP}
    v_cndmask_b32 v37, v37, v41, {S_CMP}
    v_cndmask_b32 v44, v44, v48, {S_CMP}
    v_cndmask_b32 v45, v45, v49, {S_CMP}
    v_cndmask_b32 v36, v36, v44, {S_EXC}
    v_cndmask_b32 v37, v37, v45, {S_EXC}
    v_add_u32 v36, 0x8000, v36
    v_add_u32 v37, 0x8000, v37
    v_cvt_pk_bf16_f32 v36, v36, v37
    v_bfi_b32 v36, {S_MASK2}, v36, v6
    buffer_store_dword v36, v62, {SRD_WS}, {S_T3} offen sc1
    """)
    g.stamp(12)
    g('L_END:')
    if stamps:
        g.stamp(15)
        g(f'''
        s_sleep 127
        s_sleep 127
        s_mov_b64 exec, 1
        s_mul_i32 {S_T0}, s2, 9
        s_add_u32 {S_T0}, {S_T0}, {S_WAVE}
        s_lshl_b32 {S_T0}, {S_T0}, 6
        s_add_u32 {S_T0}, {S_T0}, {WS_ST}
        v_mov_b32 v8, 0
        s_waitcnt lgkmcnt(0)
        ''')
        for k in range(16):
            g(f'v_mov_b32 v9, s{64+2*k}')
            g(f'buffer_store_dword v9, v8, {SRD_WS}, {S_T0} offen offset:{4*k}')
    g('L_EXIT:')
    g('s_endpgm')
    g.L.append('.fill 1200, 4, 0xbf810000')
    g.L.append('.section .rodata,"a"')
    g.L.append('.p2align 6')
    g.L.append(f'.amdhsa_kernel {NAME}_kernel')
    g.L.append('  .amdhsa_next_free_vgpr 168')
    g.L.append('  .amdhsa_next_free_sgpr 102')
    g.L.append('  .amdhsa_accum_offset 168')
    g.L.append('  .amdhsa_group_segment_fixed_size 0')
    g.L.append('  .amdhsa_kernarg_size 112')
    g.L.append('  .amdhsa_user_sgpr_count 2')
    g.L.append('  .amdhsa_user_sgpr_kernarg_segment_ptr 1')
    g.L.append('  .amdhsa_system_sgpr_workgroup_id_x 1')
    g.L.append('.end_amdhsa_kernel')
    return g.text()


def parse_opts(args):
    o = {}
    for a in args:
        if '=' in a:
            k, v = a.split('=')
            o[k] = v if k in ('yp', 'xp', 'op') else int(v)
    return o


if __name__ == '__main__':
    out = sys.argv[1]
    stamps = 'stamps' in sys.argv[2:]
    nt = '' if 'nont' in sys.argv[2:] else 'nt'
    open(out, 'w').write(gen(stamps, nt, parse_opts(sys.argv[2:])))
```

```python
import sys, math, struct

NAME = 'parallel_sum__compressed_kv_cla__dense_activation_squared_relu__decode'

WS_H1 = 0x10000
WS_H2 = 0x30000
WS_H3P = 0x40000
WS_HF = 0x60000
WS_M = 0x90000
WS_F2 = 0xA0000
WS_H4 = 0x100000
H4S = 2432
H4U = 0
WS_H3 = 0x300000
WS_SLOW = 0x500000
WS_ST = 0x600000
WS_SIZE = 0x800000

LX_W1 = 0
LX_WO = 0
LX_WUK = 55296
LX_WUV = 89088
LX_XN = LX_WUV + 36864
LX_QP = LX_XN + 2048
LX_CC = LX_QP + 1024
LX_FIN = LX_CC + 1280
LX_ACT = LX_FIN + 1536
LX_WT = LX_ACT + 640
LX_END = LX_WT + 256
LY_CKV = 0
LY_Q = 135168
LY_P = LY_Q + 16896
LY_MX = LY_P + 4096
LY_LX = LY_MX + 256
LY_ACT = LY_LX + 256
LY_END = LY_ACT + 256
LY_WQ = 67584
LY_XN = LY_P
LY_WOA = 0
LY_WOB = 36864
LDS_BYTES = max(LX_END, LY_END)

SCALE = (128 ** -0.5) * math.log2(math.e)


def f2u(x):
    return struct.unpack('<I', struct.pack('<f', x))[0]


class G:
    def __init__(self, stamps=False, nt='nt', opts=None):
        self.L = []
        self.stamps = stamps
        self.nt = nt
        self.o = opts or {}
        self.nlab = 0

    def __call__(self, s):
        for line in s.strip('\n').split('\n'):
            line = line.strip()
            if not line:
                continue
            if line.endswith(':'):
                self.L.append(line)
            else:
                self.L.append('    ' + line)

    def lab(self, p):
        self.nlab += 1
        return f'L_{p}_{self.nlab}'

    def stamp(self, k):
        if self.stamps:
            self(f's_memrealtime s[{64+2*k}:{65+2*k}]')

    def stwait(self):
        if self.stamps:
            self('s_waitcnt lgkmcnt(0)')

    def text(self):
        return '\n'.join(self.L) + '\n'


S_WAVE = 's3'
S_CU = 's4'
S_H = 's5'
S_J = 's6'
S_T0 = 's7'
SRD_A = 's[8:11]'
SRD_WS = 's[12:15]'
SRD_X = 's[16:19]'
SRD_B = 's[20:23]'
SRD_C = 's[24:27]'
SRD_O = 's[28:31]'
SRD_B2 = 's[32:35]'
SRD_OUT = 's[36:39]'
S_TAG = 's40'
S_EP = 's41'
S_SPIN = 's42'
S_MASK = 's43'
S_OFF = 's44'
S_T1 = 's45'
S_T2 = 's46'
S_T3 = 's47'
S_EXC = 's[48:49]'
S_B = 's50'
S_SPLIT = 's51'
S_HG = 's52'
S_Y = 's53'
S_PC = 's[54:55]'
S_TAG2 = 's56'
S_MASK2 = 's57'
S_T4 = 's58'
S_T5 = 's59'
SRD_W1 = 's[60:63]'
S_CG = 's96'
S_RS = 's97'
S_CMP = 's[98:99]'
S_PH = 's100'
S_KEEP = 's101'
DPPF = 'row_mask:0xf bank_mask:0xf'
MF = 'v_mfma_f32_16x16x32_bf16'


def R(a, n=4):
    return f'v[{a}:{a+n-1}]'


def srd(g, name, karg_off, nbytes):
    n = int(name[2:name.index(':')])
    g(f's_load_dwordx2 s[{n}:{n+1}], s[0:1], {karg_off}')
    return [f's_mov_b32 s{n+2}, {nbytes}', f's_mov_b32 s{n+3}, s11']


def spin_check(g):
    g(f's_sub_u32 {S_SPIN}, {S_SPIN}, 1')
    g('s_cbranch_scc1 L_END')


def or_chain(g, acc, rs, first):
    rs = list(rs)
    if first:
        g(f'v_or3_b32 v{acc}, v{rs[0]}, v{rs[1]}, v{rs[2]}')
        rs = rs[3:]
    while len(rs) >= 2:
        g(f'v_or3_b32 v{acc}, v{acc}, v{rs[0]}, v{rs[1]}')
        rs = rs[2:]
    if rs:
        g(f'v_or_b32 v{acc}, v{acc}, v{rs[0]}')


def tagged_check(g, regs, acc):
    for r in regs:
        g(f'v_xor_b32 v{r}, {S_TAG}, v{r}')
    or_chain(g, acc, regs, True)
    g(f'v_and_b32 v{acc}, 0xfff, v{acc}')
    g(f'v_cmp_ne_u32 vcc, 0, v{acc}')


def slow_toggle(g, soff, extra):
    if g.o.get('one', 0):
        if callable(extra):
            g(f's_and_b32 {S_T0}, {S_SPIN}, 31')
            extra()
        return
    g(f'''
    s_andn2_b32 {soff}, {soff}, {WS_SLOW}
    s_and_b32 {S_T0}, {S_SPIN}, 31
    s_cselect_b32 {S_T0}, 0, {WS_SLOW}
    s_add_u32 {soff}, {soff}, {S_T0}
    ''')
    if callable(extra):
        g(f's_cmp_eq_u32 {S_T0}, 0')
        extra()


def gather32(g, vaddr, soff, vlds, lds_off=0, act=False, stamp=None, pre=None, dual=False, firstwait=0, have=False):
    lp = g.lab('g32')
    if dual:
        g(f's_or_b32 {S_SPIN}, {S_SPIN}, 31')
    if act:
        g('s_mov_b32 exec_hi, 0xffff')
    if have:
        g(f's_branch {lp}_chk')
    if pre is not None:
        g(f'buffer_load_dwordx4 v[16:19], v{vaddr}, {SRD_WS}, {soff} offen sc1')
        pre()
        if firstwait:
            g(f'''
            s_cbranch_scc0 {lp}_in
            s_waitcnt vmcnt(1)
            s_branch {lp}_chk
            ''')
        else:
            g(f's_branch {lp}_in')
    g(f'''
    {lp}:
    buffer_load_dwordx4 v[16:19], v{vaddr}, {SRD_WS}, {soff} offen sc1
    ''')
    spin_check(g)
    if dual:
        slow_toggle(g, soff, dual)
    g(f'{lp}_in:')
    g('s_waitcnt vmcnt(0)')
    g(f'{lp}_chk:')
    tagged_check(g, range(16, 20), 8)
    if act:
        g('s_nop 1')
        g(f's_cbranch_vccnz {lp}')
        g('s_mov_b32 exec_hi, -1')
        g('v_permlane32_swap_b32 v16, v17')
        g('v_permlane32_swap_b32 v18, v19')
    else:
        g('v_permlane32_swap_b32 v16, v17')
        g('v_permlane32_swap_b32 v18, v19')
        g(f's_cbranch_vccnz {lp}')
    if stamp is not None:
        g.stamp(stamp)
    g(f'''
    v_add_f32 v16, v16, v17
    v_add_f32 v18, v18, v19
    s_nop 1
    v_permlane16_swap_b32 v16, v18
    v_add_f32 v16, v16, v18
    ''')
    if act:
        g('v_max_f32 v16, 0, v16')
        g('v_mul_f32 v16, v16, v16')
    g('v_cvt_pk_bf16_f32 v16, v16, v16')
    g(f'ds_write_b16 v{vlds}, v16 offset:{lds_off}')


def flag_poll(g, vaddr, soff, off=0):
    lp = g.lab('fp')
    g(f'{lp}:')
    if g.o.get('slp'):
        g(f's_sleep {g.o["slp"]}')
    g(f'buffer_load_dword v16, v{vaddr}, {SRD_WS}, {soff} offen offset:{off} sc1')
    spin_check(g)
    g(f"""
    s_waitcnt vmcnt(0)
    v_cmp_ne_u32 vcc, {S_EP}, v16
    s_nop 1
    s_and_b64 exec, exec, vcc
    s_cbranch_scc1 {lp}
    s_mov_b64 exec, -1
    """)


def sflag_issue(g, regs, base, stride, off=0):
    for k, r in enumerate(regs):
        g(f's_load_dword s{r}, {base}, {k*stride + off} glc')


def sflag_wait(g, regs, base, stride, off=0):
    lp = g.lab('sf')
    g(f's_branch {lp}_in')
    g(f'{lp}:')
    sflag_issue(g, regs, base, stride, off)
    spin_check(g)
    g(f'{lp}_in:')
    g(f's_mul_i32 {S_T0}, {S_EP}, {len(regs)}')
    g('s_waitcnt lgkmcnt(0)')
    for r in regs:
        g(f's_sub_u32 {S_T0}, {S_T0}, s{r}')
    g(f's_cmp_eq_u32 {S_T0}, 0')
    g(f's_cbranch_scc0 {lp}')


def gather32_ldsaddr(g, dst, base, bstride):
    g(f'''
    v_and_b32 v8, 1, v2
    v_lshl_add_u32 v8, v3, 1, v8
    v_lshrrev_b32 v9, 1, v2
    v_mul_u32_u24 v9, {bstride}, v9
    v_lshl_add_u32 v8, v8, 1, v9
    v_add_u32 v{dst}, {base}, v8
    ''')


def layernorm_loads(g, off_q, off_f):
    g(f'''
    v_lshrrev_b32 v8, 5, v0
    v_mul_u32_u24 v8, 1152, v8
    v_and_b32 v9, 31, v0
    v_lshl_add_u32 v8, v9, 4, v8
    v_cmp_gt_u32 vcc, 8, v9
    v_mov_b32 v9, 0x7fff0000
    s_nop 0
    v_cndmask_b32 v9, v9, v8, vcc
    s_waitcnt lgkmcnt(0)
    buffer_load_dwordx4 v[10:13], v8, {SRD_X}, 0 offen
    buffer_load_dwordx4 v[14:17], v8, {SRD_X}, 0 offen offset:512
    buffer_load_dwordx4 v[18:21], v9, {SRD_X}, 0 offen offset:1024
    buffer_load_dwordx4 v[22:25], v8, {SRD_X}, {off_q} offen
    buffer_load_dwordx4 v[128:131], v8, {SRD_X}, {off_f} offen
    ''')


def layernorm_stats(g):
    g(f's_mov_b32 {S_T1}, 0x3f803f80')
    g('v_mov_b32 v26, 0')
    g('v_mov_b32 v27, 0')
    for r in range(10, 22):
        g(f'v_dot2c_f32_bf16 v26, {S_T1}, v{r}')
        g(f'v_dot2c_f32_bf16 v27, v{r}, v{r}')
    g('s_nop 2')
    for k in (1, 2, 4, 8):
        g(f'v_add_f32_dpp v26, v26, v26 row_ror:{k} {DPPF}')
        g(f'v_add_f32_dpp v27, v27, v27 row_ror:{k} {DPPF}')
        g('s_nop 0')
    g(f'''
    v_mov_b32 v28, v26
    v_mov_b32 v29, v27
    s_nop 0
    v_permlane16_swap_b32 v26, v28
    v_permlane16_swap_b32 v27, v29
    v_add_f32 v26, v26, v28
    v_add_f32 v27, v27, v29
    v_mul_f32 v26, 0x{f2u(1.0/576):08x}, v26
    v_mul_f32 v27, 0x{f2u(1.0/576):08x}, v27
    v_fma_f32 v27, -v26, v26, v27
    v_max_f32 v27, 0, v27
    v_cvt_pk_bf16_f32 v26, v26, v27
    v_and_b32 v27, 0xffff0000, v26
    v_lshlrev_b32 v132, 16, v26
    v_add_f32 v27, 0x{f2u(1e-5):08x}, v27
    v_cvt_pk_bf16_f32 v27, v27, v27
    v_and_b32 v27, 0xffff0000, v27
    v_sqrt_f32 v27, v27
    s_nop 0
    v_cvt_pk_bf16_f32 v27, v27, v27
    v_and_b32 v27, 0xffff0000, v27
    v_rcp_f32 v133, v27
    ''')


def layernorm_addr(g, LX_XN):
    g(f'''
    v_lshrrev_b32 v8, 2, v0
    v_lshlrev_b32 v8, 6, v8
    v_and_b32 v9, 1, v0
    v_lshl_add_u32 v8, v9, 5, v8
    v_bfe_u32 v9, v0, 1, 1
    v_lshl_add_u32 v8, v9, 3, v8
    v_add_u32 v134, {LX_XN}, v8
    ''')


def layernorm_slice(g, r0, off8):
    for r in range(r0, r0 + 4):
        g(f'''
        v_lshlrev_b32 v28, 16, v{r}
        v_and_b32 v29, 0xffff0000, v{r}
        v_sub_f32 v28, v28, v132
        v_sub_f32 v29, v29, v132
        v_cvt_pk_bf16_f32 v29, v28, v29
        v_lshlrev_b32 v28, 16, v29
        v_and_b32 v29, 0xffff0000, v29
        v_mul_f32 v28, v28, v133
        v_mul_f32 v29, v29, v133
        v_cvt_pk_bf16_f32 v{r}, v28, v29
        ''')
    g(f'ds_write2_b64 v134, v[{r0}:{r0+1}], v[{r0+2}:{r0+3}] offset0:{off8} offset1:{off8+2}')


def alpha_addr(g, dst, tile_sgpr):
    g(f'''
    v_lshrrev_b32 v8, 2, v3
    v_bfe_u32 v9, v0, 1, 1
    v_lshl_add_u32 v9, {tile_sgpr}, 1, v9
    v_lshlrev_b32 v{dst}, 1, v8
    v_xor_b32 v9, v9, v{dst}
    v_lshlrev_b32 v9, 4, v9
    v_lshl_add_u32 v9, v8, 8, v9
    v_and_b32 v8, 1, v0
    v_lshl_add_u32 v9, v8, 3, v9
    v_mul_u32_u24 v8, 1152, v2
    v_add_u32 v{dst}, v8, v9
    ''')


def omega_src(g, dst, n, first_sgpr):
    g(f'''
    v_lshrrev_b32 v8, 3, v0
    v_lshl_add_u32 v8, {first_sgpr}, 3, v8
    v_mul_u32_u24 v8, 57, v8
    ''')
    for k in range(n):
        g(f'''
        v_bfe_u32 v9, v8, 10, 1
        v_bfe_u32 v{dst+k}, v8, 12, 1
        v_lshl_add_u32 v9, v{dst+k}, 1, v9
        v_lshlrev_b32 v9, 5, v9
        v_xor_b32 v{dst+k}, v9, v1
        ''')
        if k < n - 1:
            g('v_add_u32 v8, 456, v8')


def omega_addr(g, dst, cb=S_WAVE):
    g(f'''
    v_lshrrev_b32 v8, 2, v3
    v_lshl_add_u32 v9, v2, 3, v8
    v_mul_u32_u24 v9, 1152, v9
    v_lshl_add_u32 v9, {cb}, 7, v9
    v_and_b32 v{dst}, 3, v0
    v_lshl_add_u32 v9, v{dst}, 3, v9
    v_lshrrev_b32 v8, 1, v8
    v_and_b32 v{dst}, 1, v2
    v_lshl_add_u32 v8, v{dst}, 1, v8
    v_lshl_add_u32 v{dst}, v8, 5, v9
    v_xor_b32 v{dst+1}, 32, v{dst}
    v_xor_b32 v{dst+2}, 64, v{dst}
    v_xor_b32 v{dst+3}, 0x60, v{dst}
    ''')


def omega_reads(g, addr, dst, base):
    for t in range(4):
        g(f'ds_read_b64_tr_b16 {R(dst+4*t,2)}, v{addr+t} offset:{base}')
        g(f'ds_read_b64_tr_b16 {R(dst+4*t+2,2)}, v{addr+t} offset:{base+4608}')


def act_addr(g, dst, act):
    g(f'''
    v_and_b32 v8, 1, v0
    v_lshlrev_b32 v8, 6, v8
    v_lshl_add_u32 v8, v2, 4, v8
    v_add_u32 v{dst}, {act}, v8
    ''')


def omega_finish(g, aaddr, wregs, vaddr, soff, late=None):
    n = len(wregs)
    for k in range(n):
        g(f'ds_read_b128 {R(20+4*k)}, v{aaddr} offset:{128*k}')
    if late:
        late()
    g(f'''
    s_mov_b32 s98, 0xffff0000
    s_mov_b32 s99, 0xffff0000
    s_mov_b32 vcc_lo, 0
    s_mov_b32 vcc_hi, -1
    ''')
    g.stwait()
    for k in range(n):
        if not late:
            g(f's_waitcnt lgkmcnt({n-1-k})')
        elif k == 0:
            g('s_waitcnt lgkmcnt(9)')
        for t in range(4):
            if late and k == 1:
                g(f's_waitcnt lgkmcnt({6-2*t})')
            c = '0' if k == 0 else R(36 + 4 * t)
            g(f'{MF} {R(36+4*t)}, {R(20+4*k)}, {R(wregs[k]+4*t)}, {c}')
    g(f'''
    s_nop 5
    v_cndmask_b32 v36, v36, v40, {S_CMP}
    v_cndmask_b32 v37, v37, v41, {S_CMP}
    v_cndmask_b32 v44, v44, v48, {S_CMP}
    v_cndmask_b32 v45, v45, v49, {S_CMP}
    v_cndmask_b32 v36, v36, v44, vcc
    v_cndmask_b32 v37, v37, v45, vcc
    v_bfi_b32 v36, {S_MASK}, v36, v6
    v_bfi_b32 v37, {S_MASK}, v37, v6
    buffer_store_dwordx2 v[36:37], v{vaddr}, {SRD_WS}, {soff} offen sc1
    ''')


def h4_soff(g, prod):
    g(f'''
    s_mul_i32 {S_T3}, {prod}, {H4S}
    s_lshl_b32 {S_T4}, {S_WAVE}, {8+H4U}
    s_add_u32 {S_T3}, {S_T3}, {S_T4}
    s_add_u32 {S_T3}, {S_T3}, {WS_H4}
    ''')


def phys_head(g, dst, x, k, tmp):
    hm = g.o.get('hmap', 4)
    if hm == 0:
        g(f's_lshl2_add_u32 {dst}, {x}, {k}')
    elif hm == 1:
        g(f's_lshl3_add_u32 {dst}, {k}, {x}')
    elif hm == 2:
        g(f"""
        s_and_b32 {tmp}, {k}, 1
        s_lshl1_add_u32 {dst}, {x}, {tmp}
        s_lshr_b32 {tmp}, {k}, 1
        s_lshl4_add_u32 {dst}, {tmp}, {dst}
        """)
    elif hm == 3:
        g(f"""
        s_and_b32 {tmp}, {x}, 3
        s_lshl2_add_u32 {dst}, {k}, {tmp}
        s_lshr_b32 {tmp}, {x}, 2
        s_lshl4_add_u32 {dst}, {tmp}, {dst}
        """)
    elif hm == 4:
        g(f"""
        s_add_u32 {tmp}, {x}, {k}
        s_and_b32 {tmp}, {tmp}, 7
        s_lshl3_add_u32 {dst}, {k}, {tmp}
        """)


def set_role(g, dk, ph_only=None):
    g(f's_lshr_b32 {S_T0}, s2, 5')
    if dk:
        g(f's_add_u32 {S_T0}, {S_T0}, {dk}')
        g(f's_and_b32 {S_T0}, {S_T0}, 3')
    g(f"""
    s_add_u32 {S_T1}, s2, {S_T0}
    s_and_b32 {S_T1}, {S_T1}, 7
    s_lshl3_add_u32 {S_PH}, {S_T0}, {S_T1}
    """)
    if not ph_only:
        g(f"""
        s_and_b32 {S_T1}, s2, 7
        s_lshl2_add_u32 {S_H}, {S_T1}, {S_T0}
        s_lshl2_add_u32 {S_CU}, {S_H}, {S_J}
        """)


def lane_consts(g):
    g(f'''
    v_lshrrev_b32 v1, 6, v0
    v_and_b32 v0, 63, v0
    v_readfirstlane_b32 {S_WAVE}, v1
    v_lshlrev_b32 v1, 4, v0
    v_lshrrev_b32 v2, 4, v0
    v_and_b32 v3, 15, v0
    ''')


def misc_consts(g):
    g(f'''
    s_mov_b32 {S_SPIN}, 0xfffff
    s_mov_b32 {S_MASK}, 0xfffff000
    s_mov_b32 {S_MASK2}, 0xfffefffe
    ''')


def make_tag(g):
    g(f'''
    s_add_u32 {S_EP}, {S_EP}, 1
    s_and_b32 {S_TAG}, {S_EP}, 0xfff
    s_andn2_b32 {S_TAG2}, {S_EP}, {S_MASK2}
    v_mov_b32 v6, {S_EP}
    ''')


def bias_prep(g, blk, va=62, SRD_C=SRD_C):
    g(f'''
    v_lshlrev_b32 v{va}, 2, v3
    s_lshl_b32 {S_T0}, {blk}, 6
    s_lshl_b32 {S_T1}, {blk}, 10
    s_add_u32 {S_T1}, {S_T1}, {WS_HF}
    buffer_load_dword v28, v{va}, {SRD_C}, {S_T0} offen
    ''')


def bias_unpack(g):
    g(f'''
    v_lshlrev_b32 v16, 16, v28
    v_lshlrev_b32 v17, 16, v28
    v_and_b32 v18, 0xffff0000, v28
    v_and_b32 v19, 0xffff0000, v28
    ''')


def gen(stamps=False, nt='nt', opts=None):
    g = G(stamps, nt, opts)
    o = g.o
    global WS_H1, WS_H2, WS_H3P, WS_HF, H4S, H4U
    H4U = o.get('h4u', 0)
    H4S = 37 * 128 if H4U else 19 * 128
    WS_H1 = o.get('ah1', 0x10) << 12
    WS_H2 = o.get('ah2', 0x30) << 12
    WS_H3P = o.get('ah3p', 0x40) << 12
    WS_HF = o.get('ahf', 0x60) << 12
    hdr = open('cdna_kernels/' + NAME + '.s.ref').read().split('\n')
    for line in hdr:
        if line.startswith('; @launch'):
            break
        g.L.append(line)
    g.L.append(f'; @launch grid=(256,1,1) block=(576,1,1) lds={LDS_BYTES}')
    g.L.append('.amdgcn_target "amdgcn-amd-amdhsa--gfx950"')
    g.L.append('.text')
    g.L.append(f'.globl {NAME}_kernel')
    g.L.append('.p2align 12')
    g.L.append(f'.type {NAME}_kernel,@function')
    g.L.append(f'{NAME}_kernel:')
    LNW = o.get('lnw', 3)
    NT = lambda k, d=0: 'nt' if o.get(k, d) else ''
    if o.get('skew'):
        g('''
        s_and_b32 s3, s2, 7
        s_lshl_b32 s3, s3, 2
        s_lshr_b32 s3, 0x679b3000, s3
        s_and_b32 s3, s3, 15
        L_skew:
        s_cmp_eq_u32 s3, 0
        s_cbranch_scc1 L_skew2
        s_sleep 2
        s_sub_u32 s3, s3, 1
        s_branch L_skew
        L_skew2:
        ''')
    g.stamp(0)
    if o.get('hold'):
        g('s_memrealtime s[92:93]')

    def clear_stamps(k0=2):
        if stamps:
            for k in range(k0, 16):
                g(f's_mov_b32 s{64+2*k}, 0')
    g(f"""
    s_load_dwordx2 s[8:9], s[0:1], 16
    s_load_dwordx2 s[20:21], s[0:1], 24
    s_load_dwordx2 s[16:17], s[0:1], 0
    s_load_dwordx2 s[12:13], s[0:1], 104
    s_cmp_ge_u32 s2, 256
    s_cbranch_scc1 L_EXIT
    """)
    lane_consts(g)
    g(f"""
    s_mov_b32 s11, 0x20000
    s_mov_b32 s10, {576*8192}
    s_mov_b32 s23, s11
    s_mov_b32 s22, {512*8192}
    s_mov_b32 s15, s11
    s_mov_b32 s14, {WS_SIZE}
    s_cmp_ge_u32 s2, 128
    s_cbranch_scc1 L_Y
    """)
    r1, r2, r3 = o.get('r1', 3), o.get('r2', 1), o.get('r3', 2)
    g(f"""
    s_mov_b32 s19, s11
    s_movk_i32 s18, 2304
    s_bfe_u32 {S_J}, s2, 0x20003
    """)
    set_role(g, 0, ph_only=True)
    g(f"""
    v_lshlrev_b32 v8, 1, v2
    v_xor_b32 v8, v8, v3
    v_lshlrev_b32 v135, 4, v8
    v_lshl_add_u32 v4, v2, 13, v135
    s_mul_i32 {S_OFF}, {S_J}, 9
    s_add_u32 {S_OFF}, {S_OFF}, {S_WAVE}
    s_lshl_b32 {S_OFF}, {S_OFF}, 9
    s_add_u32 {S_OFF}, {S_OFF}, {S_PH}
    s_lshl_b32 {S_OFF}, {S_OFF}, 8
    s_mul_i32 m0, {S_WAVE}, 4608
    s_mov_b32 {S_T3}, 32768
    s_cmp_eq_u32 {S_WAVE}, {LNW}
    s_cbranch_scc0 L_X_nox
    s_and_b32 {S_Y}, s2, 31
    s_mul_i32 {S_CG}, {S_Y}, 43
    s_lshr_b32 {S_CG}, {S_CG}, 7
    s_mul_i32 {S_RS}, {S_CG}, 3
    s_sub_u32 {S_RS}, {S_Y}, {S_RS}
    s_mul_i32 {S_T1}, {S_J}, 288
    s_mul_i32 {S_T0}, {S_RS}, 384
    """)
    layernorm_loads(g, S_T1, S_T0)
    g('L_X_nox:')
    g('s_waitcnt lgkmcnt(0)')
    for u in range(4):
        g(f'buffer_load_dwordx4 v4, {SRD_A}, {S_OFF} offen {NT("qnt", 1)} lds')
        if u < 3:
            g('s_addk_i32 m0, 1152')
            g(f's_add_u32 {S_OFF}, {S_OFF}, {S_T3}')
    g('s_branch L_X2')
    g('L_Y:')
    cnt = 'nt' if o.get('cnt') else ''
    yk = o.get('yk', 32)
    yq = o.get('yq', 22)
    yqa = o.get('yqa', 10)
    lanes = lambda n: (f's_mov_b64 exec, {hex((1 << n) - 1)}' if n < 32 else f's_mov_b32 exec_hi, {hex((1 << (n-32)) - 1)}')
    g(f"""
    s_cmp_eq_u32 {S_WAVE}, 0
    s_cbranch_scc0 L_nopf
    s_getpc_b64 {S_PC}
    s_bfe_u32 {S_T0}, s2, 0x20003
    s_mul_i32 {S_T0}, {S_T0}, 3456
    v_lshl_add_u32 v8, v0, 7, {S_T0}
    s_mov_b64 exec, 0x7ffffff
    global_load_dword v30, v8, {S_PC} offset:512
    s_mov_b64 exec, -1
    L_nopf:
    v_lshrrev_b32 v8, 1, v0
    v_and_b32 v9, 1, v0
    v_lshlrev_b32 v9, 7, v9
    v_lshl_add_u32 v8, v8, 13, v9
    s_bfe_u32 {S_T2}, s2, 0x40003
    s_cmp_lt_u32 {S_WAVE}, 4
    s_cbranch_scc0 L_Y_nk
    s_add_u32 {S_T1}, s2, {S_WAVE}
    s_and_b32 {S_T1}, {S_T1}, 7
    s_lshl3_add_u32 {S_T1}, {S_WAVE}, {S_T1}
    s_and_b32 {S_T0}, {S_T1}, 3
    s_cmp_eq_u32 {S_T0}, 1
    s_cselect_b32 {S_T4}, {yq}, {yqa}
    s_lshr_b32 {S_T0}, {S_T2}, 2
    s_mul_i32 {S_T0}, {S_T0}, 144
    s_and_b32 {S_T3}, {S_T2}, 3
    s_sub_u32 {S_T3}, {S_T3}, 4
    s_mul_i32 {S_T3}, {S_T3}, {S_T4}
    s_add_u32 {S_T0}, {S_T0}, {S_T3}
    s_add_u32 {S_T0}, {S_T0}, 144
    s_lshl_b32 {S_T0}, {S_T0}, 5
    s_add_u32 {S_T0}, {S_T0}, {S_T1}
    s_lshl_b32 {S_T0}, {S_T0}, 8
    s_lshl_b32 {S_T4}, {S_T4}, 1
    s_bfm_b64 exec, {S_T4}, 0
    s_waitcnt lgkmcnt(0)
    s_cbranch_execz L_Y_nq0
    buffer_load_dword v31, v8, {SRD_A}, {S_T0} offen
    L_Y_nq0:
    s_mov_b64 exec, -1
    s_lshl_b32 {S_T0}, {S_T2}, 10
    s_add_u32 {S_T0}, {S_T0}, {S_T1}
    s_lshl_b32 {S_T0}, {S_T0}, 8
    {lanes(2*yk) if yk < 32 else ''}
    {f'buffer_load_dword v31, v8, {SRD_B}, {S_T0} offen' if yk else ''}
    L_Y_nk:
    """)
    g(f"""
    L_Y_nq:
    s_mov_b64 exec, -1
    s_waitcnt lgkmcnt(0)
    s_load_dwordx2 s[8:9], s[0:1], 8
    s_branch L_Y2
    """)
    g('L_X2:')
    set_role(g, r1, ph_only=True)
    g(f"""
    s_load_dword {S_EP}, s[12:13], 0
    v_lshlrev_b32 v8, 2, v2
    v_xor_b32 v8, v8, v3
    v_lshlrev_b32 v8, 4, v8
    v_lshl_add_u32 v5, v2, 13, v8
    s_cmp_eq_u32 {S_WAVE}, 8
    s_cselect_b32 {S_T1}, {LNW}, {S_WAVE}
    s_lshl3_add_u32 {S_T0}, {S_J}, {S_T1}
    s_lshl_b32 {S_T0}, {S_T0}, 9
    s_add_u32 {S_T0}, {S_T0}, {S_PH}
    s_lshl_b32 {S_OFF}, {S_T0}, 8
    s_mul_i32 {S_T0}, {S_T1}, 4160
    s_add_u32 m0, {S_T0}, {LX_WUK}
    s_cmp_eq_u32 {S_T1}, {LNW}
    s_barrier
    s_cbranch_scc1 L_X_nouk
    """)

    def wuk_dma():
        for u in range(4):
            g(f'buffer_load_dwordx4 v5, {SRD_B}, {S_OFF} offen {NT("knt", 1)} lds')
            if u < 3:
                g('s_addk_i32 m0, 1040')
                g(f's_add_u32 {S_OFF}, {S_OFF}, {S_T3}')
    xk = o.get('xk', 9)
    if xk != 9:
        g(f's_waitcnt vmcnt({xk})')
    wuk_dma()
    g('L_X_nouk:')
    g.stamp(1)
    clear_stamps()
    post = []
    g('s_load_dwordx2 s[8:9], s[0:1], 64')
    g('s_movk_i32 s10, 9216')
    post += srd(g, SRD_C, 32, 512 * 8192)
    post += srd(g, SRD_W1, 56, 0 if o.get('now1') else 576 * 9216)
    post += srd(g, SRD_O, 72, 4608 * 1152)
    post += srd(g, SRD_B2, 80, 1152)
    post += srd(g, SRD_OUT, 88, 2304)
    for p in post:
        g(p)
    misc_consts(g)
    set_role(g, 0)
    g(f"""
    s_and_b32 {S_Y}, s2, 31
    s_mul_i32 {S_CG}, {S_Y}, 43
    s_lshr_b32 {S_CG}, {S_CG}, 7
    s_mul_i32 {S_RS}, {S_CG}, 3
    s_sub_u32 {S_RS}, {S_Y}, {S_RS}
    s_add_u32 {S_SPLIT}, {S_PH}, {r3}
    s_and_b32 {S_SPLIT}, {S_SPLIT}, 3
    s_lshl2_add_u32 {S_CG}, {S_CG}, {S_SPLIT}
    s_lshl2_add_u32 {S_SPLIT}, {S_SPLIT}, {S_Y}
    s_add_u32 {S_SPLIT}, {S_SPLIT}, 101
    v_lshlrev_b32 v136, 3, v0
    s_lshl3_add_u32 {S_KEEP}, {S_CU}, {S_WAVE}
    s_lshl_b32 {S_KEEP}, {S_KEEP}, 7
    s_add_u32 {S_KEEP}, {S_KEEP}, {WS_H1}
    s_waitcnt lgkmcnt(0)
    """)
    make_tag(g)
    g(f"""
    s_cmp_eq_u32 {S_WAVE}, 8
    s_cbranch_scc1 L_X_w8
    s_cmp_eq_u32 {S_WAVE}, {LNW}
    s_cbranch_scc0 L_X_noln
    """)
    layernorm_addr(g, LX_XN)
    g('s_waitcnt vmcnt(4)')
    layernorm_stats(g)
    layernorm_slice(g, 22, 0)
    layernorm_slice(g, 128, 128)
    g('L_X_noln:')
    alpha_addr(g, 7, S_WAVE)
    set_role(g, r1)
    g(f"""
    v_and_b32 v8, 1, v0
    v_lshlrev_b32 v9, 9, v8
    v_lshl_add_u32 v10, v2, 4, v9
    v_add_u32 v10, {LX_XN}, v10
    v_mov_b32 v34, 0
    v_mov_b32 v35, 0
    s_waitcnt lgkmcnt(0)
    s_barrier
    """)
    for s in range(5):
        g(f'ds_read_b128 {R(36+4*s)}, v10 offset:{64*s}')

    def q1(lnw):
        if lnw:
            g(f"""
            s_cmp_eq_u32 {S_WAVE}, {LNW}
            s_cbranch_scc0 L_X_q1a
            s_waitcnt vmcnt(0)
            L_X_q1a:
            """)
        g('s_waitcnt vmcnt(4)')
        g('s_barrier')
        g.stamp(2)
        for s in range(5):
            g(f'ds_read_b64_tr_b16 {R(16+4*s,2)}, v7 offset:{s*9216}')
            if s < 4:
                g(f'ds_read_b64_tr_b16 {R(18+4*s,2)}, v7 offset:{s*9216+4608}')
        g.stwait()
        for s in range(5):
            g(f's_waitcnt lgkmcnt({max(7-2*s, 0)})')
            c = '0' if s == 0 else R(12)
            g(f'{MF} {R(12)}, {R(36+4*s)}, {R(16+4*s)}, {c}')
        g(f"""
        s_nop 6
        s_mov_b64 exec, 0xffff
        v_bfi_b32 v138, {S_MASK}, v12, v6
        v_bfi_b32 v139, {S_MASK}, v13, v6
        buffer_store_dwordx2 v[138:139], v136, {SRD_WS}, {S_KEEP} offen
        s_mov_b64 exec, -1
        s_or_b32 {S_KEEP}, {S_KEEP}, {WS_SLOW}
        """)
        g.stamp(3)
    slowst = f"""
    s_mov_b64 exec, 0xffff
    buffer_store_dwordx2 v[138:139], v136, {SRD_WS}, {S_KEEP} offen sc1
    s_mov_b64 exec, -1
    """
    assert LNW < 4
    g(f"""
    s_cmp_lt_u32 {S_WAVE}, 4
    s_cbranch_scc0 L_X_h1
    """)
    g(f"""
    v_lshrrev_b32 v8, 2, v3
    v_mul_u32_u24 v8, 2080, v8
    v_and_b32 v9, 3, v0
    v_lshl_add_u32 v8, v9, 8, v8
    v_lshl_add_u32 v8, v2, 4, v8
    s_mul_i32 {S_T0}, {S_WAVE}, 8320
    s_add_u32 {S_T0}, {S_T0}, {LX_WUK}
    v_add_u32 v8, {S_T0}, v8
    v_lshlrev_b32 v9, 6, v9
    v_add_u32 v56, v8, v9
    v_xor_b32 v57, 64, v9
    v_add_u32 v57, v8, v57
    v_xor_b32 v58, 0x80, v9
    v_add_u32 v58, v8, v58
    v_xor_b32 v59, 0xc0, v9
    v_add_u32 v59, v8, v59
    v_and_b32 v8, 1, v0
    v_mul_u32_u24 v9, 272, v8
    v_lshl_add_u32 v9, v2, 4, v9
    v_add_u32 v61, {LX_QP}, v9
    v_lshlrev_b32 v8, 15, v8
    v_lshl_add_u32 v62, v2, 4, v8
    s_lshl2_add_u32 {S_T2}, {S_CU}, {S_WAVE}
    s_lshl_b32 {S_T2}, {S_T2}, 6
    s_add_u32 {S_T2}, {S_T2}, {WS_H2}
    s_mov_b32 s48, 0x00030003
    s_mov_b32 s49, 0x00030003
    """)
    set_role(g, r2)
    g(f"""
    v_lshl_add_u32 v4, v2, 17, v135
    s_lshl_b32 {S_OFF}, {S_J}, 5
    s_add_u32 {S_OFF}, {S_OFF}, {S_WAVE}
    s_lshl_b32 {S_OFF}, {S_OFF}, 7
    s_add_u32 {S_OFF}, {S_OFF}, {S_PH}
    s_lshl_b32 {S_OFF}, {S_OFF}, 8
    s_mul_i32 {S_T0}, {S_WAVE}, 9216
    s_add_u32 m0, {S_T0}, {LX_WUV}
    s_nop 0
    """)
    ne0 = o.get('ne0', 0)

    def wuv_dma(a, b):
        for u in range(a, b):
            g(f'buffer_load_dwordx4 v4, {SRD_C}, {S_OFF} offen {NT("x2nt", 1)} lds')
            if u < 7:
                g('s_addk_i32 m0, 1152')
                g(f's_add_u32 {S_OFF}, {S_OFF}, {61*8192 if u == 3 else 8192}')
    q1(True)
    g('s_waitcnt vmcnt(0)')
    g('s_barrier')
    areg = lambda s, t: 64 + 8 * s + 4 * t
    for s in range(4):
        for t in range(2):
            g(f'ds_read_b128 {R(areg(s,t))}, v{56+s} offset:{t*1040}')
    g.stwait()
    g('s_barrier')
    for s in range(4):
        g(f'ds_read_b128 {R(36+4*s)}, v61 offset:{s*64}')
    for s in range(4):
        g(f's_waitcnt lgkmcnt({3-s})')
        for t in range(2):
            c = '0' if s == 0 else R(20 + 4 * t)
            g(f'{MF} {R(20+4*t)}, {R(areg(s,t))}, {R(36+4*s)}, {c}')
    g(f"""
    s_nop 5
    s_mov_b64 exec, {S_EXC}
    v_cvt_pk_bf16_f32 v16, v20, v21
    v_cvt_pk_bf16_f32 v17, v22, v23
    v_cvt_pk_bf16_f32 v18, v24, v25
    v_cvt_pk_bf16_f32 v19, v26, v27
    """)
    for r in range(4):
        g(f'v_bfi_b32 v{16+r}, {S_MASK2}, v{16+r}, v6')
    g(f"""
    buffer_store_dwordx4 v[16:19], v62, {SRD_WS}, {S_T2} offen sc1
    """)
    g.stamp(5)
    g(slowst)
    op = str(o.get('op', 'x')).replace('x', '')
    for k, dch in enumerate(op):
        wuv_dma(ne0 + k, ne0 + k + 1)
        if dch != '9':
            opc = o.get('opc', 2)
            if opc:
                g(f's_and_b32 {S_T0}, {S_CG}, 3')
                g(f's_lshr_b32 {S_T0}, {opc}, {S_T0}')
                g(f's_and_b32 {S_T0}, {S_T0}, 1')
                g(f's_cbranch_scc1 L_X_nop{k}')
            g(f's_waitcnt vmcnt({dch})')
            g(f'L_X_nop{k}:')
    g('s_barrier')
    w1f = o.get('w1f', 1)
    if w1f:
        g('s_barrier')
    wuv_dma(ne0 + len(op), 8)
    g.stamp(6)
    g(f's_lshl_b32 {S_T0}, {S_WAVE}, 1')
    alpha_addr(g, 56, S_T0)
    g(f"""
    v_add_u32 v56, {LX_WUV}, v56
    v_xor_b32 v57, 32, v56
    s_lshl2_add_u32 {S_T4}, {S_H}, {S_WAVE}
    s_lshl2_add_u32 {S_T4}, {S_T4}, {S_J}
    s_lshl_b32 {S_T4}, {S_T4}, 8
    s_add_u32 {S_T4}, {S_T4}, {WS_H3P}
    v_and_b32 v8, 3, v0
    v_mul_u32_u24 v9, 272, v8
    v_lshl_add_u32 v9, v2, 4, v9
    v_add_u32 v60, {LX_CC}, v9
    s_and_b32 {S_B}, {S_WAVE}, 1
    s_lshr_b32 {S_HG}, {S_WAVE}, 1
    s_lshl1_add_u32 {S_B}, {S_B}, {S_HG}
    s_lshl2_add_u32 {S_T1}, {S_CU}, {S_B}
    s_lshl_b32 {S_T1}, {S_T1}, 12
    s_add_u32 {S_T1}, {S_T1}, {WS_H3}
    s_lshl_b32 {S_T0}, {S_B}, 6
    s_add_u32 {S_T0}, {S_T0}, {LX_WT}
    v_lshl_add_u32 v62, v2, 4, {S_T0}
    v_lshlrev_b32 v8, 4, v3
    v_lshl_add_u32 v96, v2, 10, v8
    v_lshl_add_u32 v8, v2, 3, v8
    s_mul_i32 {S_T5}, {S_WAVE}, 272
    s_add_u32 {S_T5}, {S_T5}, {LX_CC}
    v_add_u32 v97, {S_T5}, v8
    v_and_b32 v8, 1, v0
    v_lshlrev_b32 v8, 4, v8
    v_mov_b32 v9, 0xffff
    v_lshlrev_b32 v9, v8, v9
    """)
    for t in range(4):
        m = (3 << (2 * t)) * 0x01010101
        g(f's_mov_b32 vcc_lo, 0x{m:08x}')
        g(f's_mov_b32 vcc_hi, 0x{m:08x}')
        g(f'v_cndmask_b32 v{100+t}, 0, v9, vcc')
    mgate = o.get('mgate', 0)
    XR = [8, 9, 10, 20, 21, 22, 23, 28, 29, 30, 31, 60, 61, 62, 63, 96]
    if mgate:
        g(f"""
        s_lshr_b32 {S_T0}, {S_H}, 4
        s_lshl2_add_u32 {S_T0}, {S_T0}, {S_B}
        s_lshl_b32 {S_T0}, {S_T0}, 12
        s_and_b32 {S_T2}, {S_H}, 15
        s_lshl4_add_u32 {S_T0}, {S_T2}, {S_T0}
        s_add_u32 {S_T0}, {S_T0}, {WS_M + 8}
        s_add_u32 s54, s12, {S_T0}
        s_addc_u32 s55, s13, 0
        """)
    g('s_barrier')
    f1e = 1
    nxw = 0
    if f1e:
        if w1f:
            g('s_barrier')
        g(f's_waitcnt vmcnt({nxw})')
        g('s_barrier')
        g.stamp(7)

    def h3_loads():
        for u in range(4):
            g(f'buffer_load_dwordx4 {R(36+4*u)}, v96, {SRD_WS}, {S_T1} offen offset:{u*256} sc1')
    if mgate:
        sflag_issue(g, XR, S_PC, 256)
        sflag_wait(g, XR, S_PC, 256)
    else:
        g('s_barrier')
    h3_loads()
    g.stamp(8)
    g('s_waitcnt vmcnt(4)')
    g('s_barrier')
    g('ds_read_b128 v[20:23], v62')
    for s in range(4):
        for t in range(2):
            g(f'ds_read_b64_tr_b16 {R(64+8*s+4*t,2)}, v{56+t} offset:{s*9216}')
            g(f'ds_read_b64_tr_b16 {R(66+8*s+4*t,2)}, v{56+t} offset:{s*9216+4608}')
    g.stwait()
    g('s_waitcnt lgkmcnt(15)')
    for u in range(4):
        for t in range(4):
            g(f'v_and_b32 v{104+4*u+t}, v{20+u}, v{100+t}')
    lp = g.lab('h3')
    lp2 = g.lab('h3in')
    g(f's_branch {lp2}')
    g(f'{lp}:')
    h3_loads()
    spin_check(g)
    g(f'{lp2}:')
    for u in range(4):
        g(f's_waitcnt vmcnt({3-u})')
        for r in range(4):
            g(f'v_xor_b32 v{36+4*u+r}, {S_TAG2}, v{36+4*u+r}')
        or_chain(g, 8, range(36 + 4 * u, 40 + 4 * u), u == 0)
        c = '0' if u == 0 else R(12)
        g(f'{MF} {R(12)}, {R(104+4*u)}, {R(36+4*u)}, {c}')
    g(f"""
    v_and_b32 v8, 0x10001, v8
    v_cmp_ne_u32 vcc, 0, v8
    s_nop 3
    s_cbranch_vccnz {lp}
    s_mov_b32 exec_hi, 0
    v_cvt_pk_bf16_f32 v12, v12, v13
    v_cvt_pk_bf16_f32 v13, v14, v15
    ds_write_b64 v97, v[12:13]
    s_mov_b32 exec_hi, -1
    """)
    g.stamp(9)
    g('s_waitcnt lgkmcnt(0)')
    g('s_barrier')
    for s in range(4):
        g(f'ds_read_b128 {R(36+4*s)}, v60 offset:{s*64}')
    g('s_mov_b32 vcc_lo, 0xffff0000')
    g('s_mov_b32 vcc_hi, 0')
    for s in range(4):
        g(f's_waitcnt lgkmcnt({3-s})')
        for t in range(2):
            c = '0' if s == 0 else R(12 + 4 * t)
            g(f'{MF} {R(12+4*t)}, {R(36+4*s)}, {R(64+8*s+4*t)}, {c}')
    g(f"""
    s_nop 5
    s_mov_b32 exec_hi, 0
    v_add_f32 v12, v12, v14
    v_add_f32 v13, v13, v15
    v_add_f32 v16, v16, v18
    v_add_f32 v17, v17, v19
    v_cndmask_b32 v12, v12, v16, vcc
    v_cndmask_b32 v13, v13, v17, vcc
    v_bfi_b32 v12, {S_MASK}, v12, v6
    v_bfi_b32 v13, {S_MASK}, v13, v6
    buffer_store_dwordx2 v[12:13], v136, {SRD_WS}, {S_T4} offen {'sc1' if o.get('noloc3') else ''}
    """)
    g.stamp(10)
    if o.get('one', 0):
        for k in range(o.get('rb', 2)):
            g('s_waitcnt vmcnt(0)')
            g(f'buffer_load_dwordx2 v[12:13], v136, {SRD_WS}, {S_T4} offen sc1')
        g('s_waitcnt vmcnt(0)')
    else:
        g(f's_or_b32 {S_T4}, {S_T4}, {WS_SLOW}')
    if not o.get('noloc3'):
        g(f'buffer_store_dwordx2 v[12:13], v136, {SRD_WS}, {S_T4} offen sc1')
    g('s_mov_b32 exec_hi, -1')
    g('s_branch L_X_post')
    g('L_X_h1:')
    xt = o.get('xt', 0)
    xtpos = o.get('xtpos', 0)

    def xtouch():
        g(f"""
        s_load_dwordx2 s[54:55], s[0:1], 8
        s_and_b32 {S_T0}, s2, 7
        s_lshr_b32 {S_T1}, s2, 4
        s_lshl3_add_u32 {S_T0}, {S_T0}, {S_T1}
        s_bfe_u32 {S_T1}, s2, 0x10003
        s_lshl1_add_u32 {S_T0}, {S_T0}, {S_T1}
        s_lshl2_add_u32 {S_T0}, {S_T0}, {S_WAVE}
        s_lshl_b32 {S_T0}, {S_T0}, 14
        s_sub_u32 {S_T0}, {S_T0}, {3*16384 + xt*1024}
        v_lshl_add_u32 v8, v0, 7, {S_T0}
        s_waitcnt lgkmcnt(0)
        """)
        left = xt * 8
        if left < 64:
            g(f's_mov_b64 exec, {hex((1 << left) - 1)}' if left < 32 else f's_mov_b32 exec_hi, {hex((1 << (left-32)) - 1)}')
        g('global_load_dword v30, v8, s[54:55]')
        g('s_mov_b64 exec, -1')
    if xt and xtpos == 0:
        xtouch()
    f2pos = o.get('f2pos', 4)
    ne = o.get('ne', 0)
    flag_regs = f"""
    v_mov_b32 v32, v6
    v_mov_b32 v33, v6
    v_mov_b32 v34, v6
    v_mov_b32 v35, v6
    s_lshl_b32 {S_T4}, {S_CU}, 7
    s_add_u32 {S_T4}, {S_T4}, {WS_F2}
    """
    fl = f"""
    s_mov_b64 exec, 0xff
    buffer_store_dwordx4 v[32:35], v1, {SRD_WS}, {S_T4} offen sc1
    s_mov_b64 exec, -1
    """
    gather32_ldsaddr(g, 60, LX_QP - 256, 272)
    g(f"""
    v_lshl_add_u32 v60, {S_WAVE}, 6, v60
    v_lshlrev_b32 v8, 4, v3
    v_lshl_add_u32 v61, v2, 10, v8
    s_lshl4_add_u32 {S_T2}, {S_H}, {S_WAVE}
    s_lshl_b32 {S_T2}, {S_T2}, 8
    s_add_u32 {S_T2}, {S_T2}, {WS_H1 - 1024}
    s_sub_u32 {S_T5}, {S_WAVE}, 4
    s_mul_i32 {S_T0}, {S_T5}, 9
    """)
    omega_src(g, 64, 9, S_T0)
    g(f"""
    v_mul_u32_u24 v9, 9216, v2
    v_add_u32 v5, v135, v9
    s_cmp_lt_u32 {S_Y}, 27
    s_cbranch_scc1 L_X_a1
    s_lshl_b32 m0, {S_T0}, 10
    s_mul_i32 {S_OFF}, {S_SPLIT}, 36864
    s_add_u32 {S_OFF}, {S_OFF}, m0
    s_branch L_X_a2
    L_X_a1:
    s_mul_i32 {S_OFF}, {S_RS}, 48
    s_add_u32 {S_OFF}, {S_OFF}, {S_T5}
    s_mul_i32 {S_OFF}, {S_OFF}, {4*9216}
    s_lshl_b32 {S_T0}, {S_CG}, 8
    s_add_u32 {S_OFF}, {S_OFF}, {S_T0}
    s_mul_i32 m0, {S_T5}, 1152
    s_mov_b32 {S_T3}, {16*9216}
    L_X_a2:
    """)
    q1(False)

    def h1_fallback():
        g(f"""
        s_cbranch_scc1 L_X_nfb
        s_waitcnt vmcnt(0)
        s_and_b32 {S_T1}, {S_KEEP}, 0xfffffc00
        s_lshl_b32 {S_T0}, {S_T5}, 8
        s_add_u32 {S_T1}, {S_T1}, {S_T0}
        s_andn2_b32 {S_T0}, {S_T1}, {WS_SLOW}
        s_mov_b64 exec, 0xffff
        buffer_load_dwordx4 v[20:23], v1, {SRD_WS}, {S_T0} offen sc1
        s_waitcnt vmcnt(0)
        buffer_store_dwordx4 v[20:23], v1, {SRD_WS}, {S_T1} offen sc1
        s_mov_b64 exec, -1
        L_X_nfb:
        """)
    h1e = o.get('h1e', 1)
    if h1e:
        def b1b():
            g('s_waitcnt vmcnt(1)')
            g('s_barrier')
            g.stamp(12)
        if h1e == 2:
            g('s_waitcnt vmcnt(1)')
        if h1e == 3:
            g('s_waitcnt vmcnt(0)')
        gather32(g, 61, S_T2, 60, stamp=4, dual=h1_fallback, pre=b1b)
    else:
        g('s_waitcnt vmcnt(0)')
        g('s_barrier')
        g.stamp(12)
        gather32(g, 61, S_T2, 60, stamp=4, dual=h1_fallback)
    g('s_waitcnt lgkmcnt(0)')
    g('s_barrier')
    g(slowst)
    if xt and xtpos == 1:
        xtouch()
    g(f's_cmp_lt_u32 {S_Y}, 27')
    g('s_cbranch_scc0 L_X_nof1')
    for u in range(12):
        if u == ne:
            g('s_barrier')
        g(f'buffer_load_dwordx4 v5, {SRD_W1}, {S_OFF} offen {NT("x2nt", 1)} lds')
        if u < 11:
            g('s_addk_i32 m0, 4608')
            g(f's_add_u32 {S_OFF}, {S_OFF}, {S_T3}')
    if w1f:
        g('s_barrier')
    g('s_barrier')
    g.stamp(6)
    g(f's_lshl_b32 {S_T0}, {S_T5}, 1')
    alpha_addr(g, 56, S_T0)
    for s in range(6):
        g(f'ds_read_b128 {R(140+4*s)}, v10 offset:{1024+64*s}')
    g(f"""
    v_xor_b32 v57, 32, v56
    s_lshl2_add_u32 {S_T2}, {S_CG}, {S_T5}
    s_lshl2_add_u32 {S_T2}, {S_T2}, {S_RS}
    s_lshl_b32 {S_T2}, {S_T2}, 8
    s_add_u32 {S_T2}, {S_T2}, {WS_HF}
    """)
    if stamps and o.get('st7', 0):
        g('s_waitcnt vmcnt(0)')
        g.stamp(7)
    if not f1e:
        g('s_barrier')
    g('s_waitcnt vmcnt(0)')
    g('s_barrier')
    for s in range(6):
        for t in range(2):
            g(f'ds_read_b64_tr_b16 {R(80+8*s+4*t,2)}, v{56+t} offset:{s*9216}')
            g(f'ds_read_b64_tr_b16 {R(82+8*s+4*t,2)}, v{56+t} offset:{s*9216+4608}')
    f1pos = o.get('f1pos', 0)
    if f1pos == 1:
        g('s_barrier')
    g.stwait()
    for s in range(6):
        g(f's_waitcnt lgkmcnt({min(15, 20-4*s)})')
        for t in range(2):
            c = '0' if s == 0 else R(12 + 4 * t)
            g(f'{MF} {R(12+4*t)}, {R(140+4*s)}, {R(80+8*s+4*t)}, {c}')
    g(f"""
    s_mov_b32 vcc_lo, 0xffff0000
    s_mov_b32 vcc_hi, 0
    s_nop 4
    s_mov_b32 exec_hi, 0
    v_cndmask_b32 v12, v12, v16, vcc
    v_cndmask_b32 v13, v13, v17, vcc
    v_bfi_b32 v12, {S_MASK}, v12, v6
    v_bfi_b32 v13, {S_MASK}, v13, v6
    buffer_store_dwordx2 v[12:13], v136, {SRD_WS}, {S_T2} offen sc1
    s_mov_b32 exec_hi, -1
    """)
    g.stamp(11)
    if w1f:
        g('s_barrier')
    if f1e:
        g('s_barrier')
        g('s_barrier')
    if f1pos == 0:
        g('s_barrier')
    g('s_branch L_X_post')
    g('L_X_nof1:')
    g(f"""
    s_cmp_lt_u32 {S_Y}, 31
    s_cbranch_scc0 L_EXIT
    L_X_f2s:
    """)
    for u in range(9):
        if u == ne:
            g('s_barrier')
        g(f'buffer_load_dwordx4 v{64+u}, {SRD_O}, {S_OFF} offen offset:{(u&3)*1024} {NT("x2nt", 1)} lds')
        if u & 3 == 3:
            g('s_addk_i32 m0, 4096')
            g(f's_addk_i32 {S_OFF}, 4096')

    def f2x_prep(nb):
        g(f's_lshl_b32 {S_CG}, {S_T5}, 1')
        omega_addr(g, 56, S_CG)
        for k in range(nb):
            omega_reads(g, 56, 80 + 16 * k, LX_WO + 128 * k)
        bias_prep(g, S_SPLIT, 63, SRD_A)
        g(f's_mov_b32 {S_RS}, {S_T1}')
        act_addr(g, 61, LX_ACT)
        gather32_ldsaddr(g, 60, LX_ACT, 64)
        g(f"""
        v_lshl_add_u32 v60, {S_T5}, 7, v60
        v_lshl_add_u32 v61, {S_T5}, 7, v61
        s_mul_i32 {S_T3}, {S_SPLIT}, {H4S}
        s_lshl_b32 {S_T4}, {S_T5}, {9+H4U}
        s_add_u32 {S_T3}, {S_T3}, {S_T4}
        s_add_u32 {S_T3}, {S_T3}, {WS_H4}
        s_mov_b32 s98, 0xffff0000
        s_mov_b32 s99, 0xffff0000
        s_mov_b32 s48, 0
        s_mov_b32 s49, -1
        """)

    def f2x_run(nb):
        g('s_waitcnt vmcnt(0)')
        bias_unpack(g)
        gather32(g, 1, S_RS, 60, act=True, pre=lambda: g('s_barrier'))
        g('ds_read_b128 v[20:23], v61')
        g('s_waitcnt lgkmcnt(0)')
        for k in range(nb):
            for t in range(4):
                g(f'{MF} {R(112+16*k+4*t)}, {R(20)}, {R(80+16*k+4*t)}, 0')
        g('s_nop 7')
        for k in range(nb):
            a = 112 + 16 * k
            g(f"""
            v_cndmask_b32 v{a}, v{a}, v{a+4}, {S_CMP}
            v_cndmask_b32 v{a+1}, v{a+1}, v{a+5}, {S_CMP}
            v_cndmask_b32 v{a+8}, v{a+8}, v{a+12}, {S_CMP}
            v_cndmask_b32 v{a+9}, v{a+9}, v{a+13}, {S_CMP}
            v_cndmask_b32 v{a}, v{a}, v{a+8}, {S_EXC}
            v_cndmask_b32 v{a+1}, v{a+1}, v{a+9}, {S_EXC}
            v_add_u32 v{a}, 0x8000, v{a}
            v_add_u32 v{a+1}, 0x8000, v{a+1}
            v_cvt_pk_bf16_f32 v{a}, v{a}, v{a+1}
            v_bfi_b32 v{a}, {S_MASK2}, v{a}, v6
            buffer_store_dword v{a}, v55, {SRD_WS}, {S_T3} offen offset:{(256 << H4U)*k} sc1
            """)
        g.stamp(12)
        g('s_branch L_END')
    g(f"""
    v_lshlrev_b32 v55, 2, v0
    {'v_lshl_add_u32 v55, v2, 6, v55' if H4U else ''}
    {'s_barrier' if w1f else ''}
    s_barrier
    s_waitcnt vmcnt(0)
    {'s_barrier' if w1f else ''}
    s_barrier
    """)
    f2x_prep(2)
    g('s_barrier')
    g('s_barrier')
    f2x_run(2)
    g('L_X_w8:')
    pt4 = o.get('pt4', 3)

    def touch4():
        g(f"""
        s_lshr_b32 {S_T0}, s2, 3
        s_mul_i32 {S_T0}, {S_T0}, {9*H4S}
        s_add_u32 {S_T0}, {S_T0}, {WS_H4}
        s_and_b32 {S_T1}, s2, 7
        v_mul_u32_u24 v8, 43, v0
        v_lshrrev_b32 v8, 7, v8
        v_mul_u32_u24 v9, 3, v8
        v_sub_u32 v9, v0, v9
        v_lshl_add_u32 v9, v9, 3, {S_T1}
        v_cmp_gt_u32 vcc, 18, v9
        v_mul_u32_u24 v8, {H4S}, v8
        v_lshl_add_u32 v8, v9, {7+H4U}, v8
        s_and_b32 exec_lo, vcc_lo, 0x7ffffff
        s_mov_b32 exec_hi, 0
        buffer_load_dword v45, v8, {SRD_WS}, {S_T0} offen sc1
        {f'buffer_load_dword v45, v8, {SRD_WS}, {S_T0} offen offset:128 sc1' if H4U else ''}
        s_mov_b64 exec, -1
        """)
    set_role(g, r2)
    g(f"""
    """)
    if o.get('mlu', 1):
        g(f"""
        s_lshr_b32 {S_T1}, {S_H}, 2
        v_lshrrev_b32 v8, 2, v0
        v_add_u32 v8, {S_T1}, v8
        v_and_b32 v8, 3, v8
        v_lshl_add_u32 v8, v0, 2, v8
        v_lshlrev_b32 v62, 7, v8
        s_lshr_b32 {S_T2}, {S_H}, 4
        s_lshl_b32 {S_T2}, {S_T2}, 11
        s_and_b32 {S_T1}, {S_H}, 3
        s_add_u32 {S_T2}, {S_T2}, {S_T1}
        s_lshl_b32 {S_T2}, {S_T2}, 4
        """)
    else:
        g(f"""
        v_lshlrev_b32 v62, 8, v0
        s_lshr_b32 {S_T2}, {S_H}, 4
        s_lshl_b32 {S_T2}, {S_T2}, 14
        s_and_b32 {S_T1}, {S_H}, 15
        s_lshl4_add_u32 {S_T2}, {S_T1}, {S_T2}
        """)
    g(f"""
    s_add_u32 {S_T2}, {S_T2}, {WS_M}
    """)
    if o.get('k8', 0):
        wuk_dma()
        g('s_barrier')
        g('s_waitcnt vmcnt(4)')
        g('s_barrier')
    else:
        g('s_barrier')
        g('s_waitcnt vmcnt(0)')
        g('s_barrier')
        wuk_dma()
    g('s_waitcnt vmcnt(0)')
    g('s_barrier')
    g('s_barrier')
    touch4()
    g(f"""
    s_lshr_b32 {S_T0}, s2, 1
    s_and_b32 {S_T0}, {S_T0}, 60
    s_lshl_b64 exec, 15, {S_T0}
    buffer_load_dword v44, v62, {SRD_WS}, {S_T2} offen sc1
    s_and_b32 {S_T0}, s2, 7
    s_lshr_b32 {S_T1}, s2, 3
    s_lshl4_add_u32 {S_T0}, {S_T0}, {S_T1}
    s_lshl_b32 {S_T0}, {S_T0}, 10
    s_add_u32 {S_T1}, {S_T0}, {WS_H3P}
    s_mov_b64 exec, -1
    buffer_load_dwordx4 v[40:43], v1, {SRD_WS}, {S_T1} offen sc1
    s_lshl_b32 {S_T0}, s2, 10
    s_add_u32 {S_T1}, {S_T0}, {WS_HF}
    buffer_load_dwordx4 v[40:43], v1, {SRD_WS}, {S_T1} offen sc1
    """)
    tlb = o.get('tlb', 0)

    def page_touch():
        g(f"""
        v_mul_u32_u24 v8, 0x3f0000, v0
        s_mov_b32 {S_T4}, 0x200000
        s_mov_b64 exec, 3
        buffer_load_dword v46, v8, {SRD_WS}, {S_T4} offen
        s_mov_b64 exec, -1
        """)
    if tlb & 1:
        page_touch()
    if tlb & 2:
        g(f"""
        s_lshr_b32 {S_T0}, s2, 5
        s_and_b32 {S_T1}, s2, 7
        s_lshl3_add_u32 {S_T0}, {S_T0}, {S_T1}
        s_lshl_b32 {S_T0}, {S_T0}, 6
        v_mul_u32_u24 v8, 1152, v0
        s_mov_b64 exec, 3
        buffer_load_dword v46, v8, {SRD_OUT}, {S_T0} offen
        buffer_load_dword v46, v8, {SRD_B2}, {S_T0} offen
        s_mov_b64 exec, -1
        """)
    g('s_barrier')
    if w1f:
        g('s_barrier')
        g('s_barrier')
    g('s_barrier')
    g('s_barrier')
    g(f"""
    v_lshlrev_b32 v55, 2, v0
    {'v_lshl_add_u32 v55, v2, 6, v55' if H4U else ''}
    s_mov_b32 {S_T5}, 4
    s_sub_u32 {S_T0}, {S_Y}, 27
    s_cmp_lt_u32 {S_T0}, 4
    s_cbranch_scc0 L_X_w8n
    """)
    f2x_prep(1)
    g('L_X_w8n:')
    g('s_setprio 3')
    mls = o.get('mls', 8)
    if mls:
        if o.get('ml1', 1):
            g(f'''
            buffer_load_dwordx3 v[16:18], v62, {SRD_WS}, {S_T2} offen sc1
            s_waitcnt vmcnt(0)
            v_cmp_ne_u32 vcc, {S_EP}, v18
            s_nop 1
            s_cbranch_vccz L_X_mlok
            ''')
        lp = g.lab('ml0')
        m = 0
        for k in range(mls):
            m |= 1 << (k * (64 // mls))
        g(f'''
        s_lshr_b32 {S_T0}, s2, 3
        s_mul_i32 {S_T0}, {S_T0}, 5
        s_and_b32 {S_T0}, {S_T0}, {64 // mls - 1}
        s_mov_b32 exec_lo, 0x{m & 0xffffffff:x}
        s_mov_b32 exec_hi, 0x{m >> 32:x}
        s_lshl_b64 exec, exec, {S_T0}
        {lp}:
        buffer_load_dword v18, v62, {SRD_WS}, {S_T2} offen offset:8 sc1
        ''')
        spin_check(g)
        g(f'''
        s_waitcnt vmcnt(0)
        v_cmp_ne_u32 vcc, {S_EP}, v18
        s_nop 1
        s_cbranch_vccnz {lp}
        s_mov_b64 exec, -1
        ''')
    lp = g.lab('ml')
    g(f'''
    {lp}:
    {'s_sleep ' + str(o['slp']) if o.get('slp') else ''}
    buffer_load_dwordx3 v[16:18], v62, {SRD_WS}, {S_T2} offen sc1
    ''')
    spin_check(g)
    g(f'''
    s_waitcnt vmcnt(0)
    v_cmp_ne_u32 vcc, {S_EP}, v18
    s_nop 1
    s_and_b64 exec, exec, vcc
    s_cbranch_scc1 {lp}
    L_X_mlok:
    {'' if mgate else 's_barrier'}
    s_mov_b64 exec, -1
    v_max_f32_dpp v20, v16, v16 row_ror:1 {DPPF}
    v_lshlrev_b32 v8, 2, v0
    v_add_u32 v8, {LX_WT}, v8
    v_max_f32_dpp v20, v20, v20 row_ror:2 {DPPF}
    s_nop 1
    v_max_f32_dpp v20, v20, v20 row_ror:4 {DPPF}
    s_nop 1
    v_max_f32_dpp v21, v20, v20 row_ror:8 {DPPF}
    v_max_f32_dpp v20, v20, v20 row_ror:8 {DPPF}
    s_nop 1
    v_permlane16_swap_b32 v20, v21
    v_max_f32 v20, v20, v21
    v_sub_f32 v16, v16, v20
    v_exp_f32 v16, v16
    s_nop 0
    v_mul_f32 v17, v16, v17
    s_nop 1
    v_add_f32_dpp v17, v17, v17 row_ror:1 {DPPF}
    s_nop 1
    v_add_f32_dpp v17, v17, v17 row_ror:2 {DPPF}
    s_nop 1
    v_add_f32_dpp v17, v17, v17 row_ror:4 {DPPF}
    s_nop 1
    v_add_f32_dpp v21, v17, v17 row_ror:8 {DPPF}
    v_add_f32_dpp v17, v17, v17 row_ror:8 {DPPF}
    s_nop 1
    v_permlane16_swap_b32 v17, v21
    v_add_f32 v17, v17, v21
    v_rcp_f32 v17, v17
    s_nop 0
    v_mul_f32 v16, v16, v17
    v_cvt_pk_bf16_f32 v16, v16, v16
    ds_write_b32 v8, v16
    s_waitcnt lgkmcnt(0)
    s_barrier
    s_setprio 0
    s_sub_u32 {S_T0}, {S_Y}, 27
    s_cmp_lt_u32 {S_T0}, 4
    s_cbranch_scc0 L_X_w8e
    ''')
    f2x_run(1)
    g(f"""
    L_X_w8e:
    s_barrier
    L_X_post:
    s_cmp_lt_u32 {S_Y}, 16
    s_cbranch_scc0 L_END
    """)
    g('L_X_final:')
    g(f"""
    s_lshr_b32 {S_T0}, s2, 5
    s_and_b32 {S_T1}, s2, 7
    s_lshl3_add_u32 {S_T0}, {S_T0}, {S_T1}
    s_lshl1_add_u32 {S_CU}, {S_T0}, {S_J}
    s_cmp_lt_u32 {S_CU}, 36
    s_cbranch_scc0 L_END
    v_lshrrev_b32 v8, 2, v0
    v_mul_u32_u24 v8, {H4S}, v8
    v_and_b32 v9, 3, v0
    v_lshl_add_u32 v10, v9, 4, v8
    s_mul_i32 {S_T0}, {S_WAVE}, {16*H4S}
    s_lshl_b32 {S_T1}, {S_CU}, {6+H4U}
    s_add_u32 {S_T0}, {S_T0}, {S_T1}
    s_add_u32 {S_T0}, {S_T0}, {WS_H4}
    s_lshl_b32 {S_T4}, {S_CU}, 5
    v_lshlrev_b32 v55, 1, v3
    v_and_b32 v8, 1, v2
    v_mul_u32_u24 v56, 1152, v8
    v_add_u32 v56, v56, v55
    v_lshrrev_b32 v59, 1, v2
    v_lshl_add_u32 v8, v8, 1, v59
    v_lshl_add_u32 v8, v9, 2, v8
    v_mul_u32_u24 v8, 48, v8
    v_lshl_add_u32 v8, {S_WAVE}, 2, v8
    v_and_b32 v11, 31, v0
    v_mul_u32_u24 v11, 48, v11
    v_add_u32 v61, {LX_FIN}, v11
    v_lshl_add_u32 v60, v59, 4, v61
    v_add_u32 v59, {LX_FIN}, v8
    {'s_barrier' if o.get('rb', 0) else ''}
    s_cmp_eq_u32 {S_WAVE}, 8
    s_cbranch_scc0 L_X_nxb
    buffer_load_ushort v57, v56, {SRD_X}, {S_T4} offen
    buffer_load_ushort v58, v55, {SRD_B2}, {S_T4} offen
    L_X_nxb:
    """)
    lp = g.lab('h4')
    D = o.get('h4d', 1)
    if D == 1:
        g(f'{lp}:')
        g(f'buffer_load_dwordx4 {R(16)}, v10, {SRD_WS}, {S_T0} offen sc1')
        spin_check(g)
        g('s_waitcnt vmcnt(0)')
        for r in range(4):
            g(f'v_xor_b32 v{16+r}, {S_TAG2}, v{16+r}')
        or_chain(g, 8, range(16, 20), True)
        g(f"""
        v_and_b32 v8, 0x10001, v8
        v_cmp_ne_u32 vcc, 0, v8
        v_permlane32_swap_b32 v16, v17
        v_permlane32_swap_b32 v18, v19
        s_cbranch_vccnz {lp}
        """)
    else:
        for k in range(D - 1):
            g(f'buffer_load_dwordx4 {R(64+4*k)}, v10, {SRD_WS}, {S_T0} offen sc1')
        g(f'{lp}:')
        spin_check(g)
        for k in range(D):
            g(f'buffer_load_dwordx4 {R(64+4*((k+D-1) % D))}, v10, {SRD_WS}, {S_T0} offen sc1')
            g(f's_waitcnt vmcnt({D-1})')
            for r in range(4):
                g(f'v_xor_b32 v{16+r}, {S_TAG2}, v{64+4*k+r}')
            or_chain(g, 8, range(16, 20), True)
            g(f"""
            v_and_b32 v8, 0x10001, v8
            v_cmp_ne_u32 vcc, 0, v8
            v_permlane32_swap_b32 v16, v17
            v_permlane32_swap_b32 v18, v19
            s_cbranch_vccz {lp}_ok
            """)
            if o.get('h4p', 0):
                g(f's_sleep {o["h4p"]}')
        g(f's_branch {lp}')
        g(f'{lp}_ok:')
    g.stamp(13)
    g(f"""
    v_lshlrev_b32 v20, 16, v16
    v_and_b32 v21, 0xffff0000, v16
    v_lshlrev_b32 v22, 16, v17
    v_and_b32 v23, 0xffff0000, v17
    v_lshlrev_b32 v24, 16, v18
    v_and_b32 v25, 0xffff0000, v18
    v_lshlrev_b32 v26, 16, v19
    v_and_b32 v27, 0xffff0000, v19
    v_pk_add_f32 v[20:21], v[20:21], v[22:23]
    v_pk_add_f32 v[24:25], v[24:25], v[26:27]
    v_lshlrev_b32 v57, 16, v57
    v_lshlrev_b32 v58, 16, v58
    v_permlane16_swap_b32 v20, v24
    v_permlane16_swap_b32 v21, v25
    v_pk_add_f32 v[20:21], v[20:21], v[24:25]
    v_add_f32 v57, v57, v58
    s_cmp_eq_u32 {S_WAVE}, 8
    v_add_f32_dpp v20, v20, v20 row_ror:8 {DPPF}
    v_add_f32_dpp v21, v21, v21 row_ror:8 {DPPF}
    s_nop 0
    v_add_f32_dpp v20, v20, v20 row_ror:4 {DPPF}
    v_add_f32_dpp v21, v21, v21 row_ror:4 {DPPF}
    ds_write2_b32 v59, v20, v21 offset0:0 offset1:192
    s_waitcnt lgkmcnt(0)
    s_barrier
    s_cbranch_scc0 L_END
    ds_read_b128 v[16:19], v60
    ds_read_b32 v20, v61 offset:32
    s_waitcnt lgkmcnt(1)
    v_pk_add_f32 v[16:17], v[16:17], v[18:19]
    v_add_f32 v18, v16, v17
    v_add_f32 v16, v16, v17
    s_waitcnt lgkmcnt(0)
    v_add_f32 v57, v57, v20
    v_permlane32_swap_b32 v16, v18
    v_add3_u32 v8, 0, 0, 0
    v_add_f32 v16, v16, v18
    v_add_f32 v16, v16, v57
    v_cvt_pk_bf16_f32 v16, v16, v16
    s_mov_b32 exec_hi, 0
    buffer_store_short v16, v56, {SRD_OUT}, {S_T4} offen {'sc1' if o.get('osc1') else ''}
    """.replace("    v_add3_u32 v8, 0, 0, 0\n", ""))
    if o.get('hold'):
        g(f'''
        s_and_b32 s94, s2, 7
        s_lshr_b32 s94, {o.get('holdm', 1)}, s94
        s_and_b32 s94, s94, 1
        s_cbranch_scc0 L_nohold
        L_hold:
        s_memrealtime s[94:95]
        s_waitcnt lgkmcnt(0)
        s_sub_u32 s94, s94, s92
        s_cmp_lt_u32 s94, {o['hold']}
        s_cbranch_scc1 L_hold
        L_nohold:
        ''')
    g(f'''
    s_cmp_eq_u32 s2, 0
    s_cbranch_scc0 L_END
    v_mov_b32 v17, {S_EP}
    v_mov_b32 v18, 0
    buffer_store_dword v17, v18, {SRD_WS}, 0 offen {'sc1' if o.get('osc1') else ''}
    s_branch L_END
    ''')

    g('L_Y2:')
    clear_stamps(1)
    g(f"""
    s_mov_b32 s10, {2*4096*1024}
    s_sub_u32 {S_Y}, s2, 128
    s_bfe_u32 {S_HG}, s2, 0x10003
    s_and_b32 {S_T0}, s2, 7
    s_lshr_b32 {S_T1}, {S_Y}, 4
    s_lshl3_add_u32 {S_SPLIT}, {S_T0}, {S_T1}
    s_lshl1_add_u32 {S_OFF}, {S_SPLIT}, {S_HG}
    s_lshl2_add_u32 {S_OFF}, {S_OFF}, {S_WAVE}
    s_lshl_b32 {S_OFF}, {S_OFF}, 14
    s_mul_i32 m0, {S_WAVE}, 16896
    s_cmp_lt_u32 {S_WAVE}, 4
    s_waitcnt lgkmcnt(0)
    s_load_dword {S_EP}, s[12:13], 0
    s_cmp_eq_u32 {S_WAVE}, 5
    s_cbranch_scc0 L_Y_nh1
    s_lshr_b32 {S_T1}, {S_Y}, 3
    s_lshl4_add_u32 {S_T0}, {S_T0}, {S_T1}
    s_lshl_b32 {S_T0}, {S_T0}, 10
    s_add_u32 {S_T0}, {S_T0}, {WS_H1}
    buffer_load_dwordx4 v[16:19], v1, {SRD_WS}, {S_T0} offen sc1
    L_Y_nh1:
    s_cmp_lt_u32 {S_WAVE}, 4
    s_barrier
    s_cbranch_scc0 L_Y_noc
    """)
    nc0 = o.get('nc0', 8)

    def ckv_dma(a, b, yp=''):
        for n in range(a, b):
            k, u = n >> 2, n & 3
            w = n - a < len(yp) and yp[n - a] != '9'
            if w:
                g(f's_waitcnt vmcnt({yp[n-a]})')
            g(f'buffer_load_dwordx4 v1, {SRD_A}, {S_OFF} offen offset:{u*1024} {cnt} lds')
            if u < 3:
                g('s_addk_i32 m0, 32')
                g('s_nop 0')
            elif k < 7:
                g(f's_add_u32 m0, m0, {4128 + (48*1056 if k == 3 else 0)}')
                if k == 3:
                    g(f's_xor_b32 {S_OFF}, {S_OFF}, {0x1c000 if o.get("rev", 1) else 0x13000}')
                    g('s_barrier')
                else:
                    g(f's_addk_i32 {S_OFF}, {-4096 if (k > 3 and o.get("rev", 1)) else 4096}')
    ckv_dma(0, nc0, str(o.get('yp', '9')))
    g('L_Y_noc:')
    post = []
    post += srd(g, SRD_W1, 40, 0 if o.get('nowo') else 4096 * 1152)
    post += srd(g, SRD_C, 64, 9216)
    post += srd(g, SRD_O, 72, 0 if o.get('now2') else 4608 * 1152)
    for p in post:
        g(p)
    g(f"""
    s_lshr_b32 {S_B}, {S_SPLIT}, 5
    s_and_b32 {S_T0}, s2, 7
    s_lshr_b32 {S_T1}, {S_Y}, 3
    s_lshl4_add_u32 {S_CU}, {S_T0}, {S_T1}
    s_lshr_b32 {S_T2}, {S_T1}, 2
    """)
    phys_head(g, S_PH, S_T0, S_T2, S_T3)
    g(f"""
    s_and_b32 {S_T1}, {S_T1}, 3
    s_lshl2_add_u32 {S_PH}, {S_PH}, {S_T1}
    s_lshl2_add_u32 {S_H}, {S_T0}, {S_T1}
    """)
    misc_consts(g)
    g('s_waitcnt lgkmcnt(0)')
    make_tag(g)
    g(f"""
    s_cmp_eq_u32 {S_WAVE}, 8
    s_cbranch_scc1 L_Y_w8
    s_cmp_lt_u32 {S_WAVE}, 4
    s_cbranch_scc0 L_Y_nqk
    """)
    ckv_dma(nc0, 16)
    g(f'''
    v_mul_u32_u24 v8, 1056, v3
    v_lshl_add_u32 v8, v2, 4, v8
    s_mul_i32 {S_T0}, {S_WAVE}, 16896
    v_add_u32 v4, {S_T0}, v8
    v_add_u32 v7, 67584, v4
    v_add_u32 v5, {LY_Q}, v8
    v_lshlrev_b32 v13, 4, v3
    v_add_u32 v11, {LY_MX}, v13
    v_lshl_add_u32 v10, {S_WAVE}, 2, v11
    s_lshl_b32 {S_T0}, {S_WAVE}, 10
    s_add_u32 {S_T0}, {S_T0}, {LY_P}
    v_add_u32 v12, {S_T0}, v1
    s_mov_b32 {S_T1}, 0x{f2u(SCALE):08x}
    ''')

    def kread(t, ks):
        g(f'ds_read_b128 {R(40+8*ks+4*t)}, v{7 if t else 4} offset:{ks*64}')
    hb = o.get('hb', 16)
    kb = o.get('kb', 4)
    ckv_dma(16, 32)
    g('s_waitcnt vmcnt(16)')
    g.stamp(1)
    g('s_barrier')
    for ks in range(16):
        kread(0, ks)
    g(f's_waitcnt vmcnt({o.get("hw", 8)})')
    g('s_barrier')
    g('s_waitcnt vmcnt(0) lgkmcnt(0)')
    g.stamp(2)
    g.stwait()
    for ks in range(kb):
        kread(1, ks)
    g('s_barrier')
    order = [('q', k) for k in range(4)]
    nk = kb
    pos = {}
    seq = []

    def issue(item):
        seq.append(item)
        pos[item] = len(seq)
        if item[0] == 'q':
            g(f'ds_read_b128 {R(16 + 4*(item[1] & 3))}, v5 offset:{item[1]*64}')
        else:
            kread(1, item[1])
    for k in range(4):
        issue(('q', k))
        if nk <= k + 1 and nk < 16:
            issue(('k', nk))
            nk += 1
    for ks in range(16):
        q = 16 + 4 * (ks & 3)
        need = max(pos[('q', ks)], pos.get(('k', ks), 0))
        g(f's_waitcnt lgkmcnt({len(seq) - need})')
        for t in range(2):
            c = '0' if ks == 0 else R(32 + 4 * t)
            g(f'{MF} {R(32+4*t)}, {R(40+8*ks+4*t)}, {R(q)}, {c}')
        if ks + 4 < 16:
            issue(('q', ks + 4))
        if nk < 16:
            issue(('k', nk))
            nk += 1
        assert nk > min(ks + 1, 15)
    g(f'''
    s_nop 6
    v_max3_f32 v8, v32, v33, v34
    v_max3_f32 v8, v8, v35, v36
    v_max3_f32 v8, v8, v37, v38
    v_max_f32 v9, v8, v39
    v_max_f32 v8, v8, v39
    s_nop 1
    v_permlane16_swap_b32 v8, v9
    v_max_f32 v15, v8, v9
    v_max_f32 v8, v8, v9
    s_nop 1
    v_permlane32_swap_b32 v8, v15
    v_max_f32 v8, v8, v15
    ds_write_b32 v10, v8
    s_waitcnt lgkmcnt(0)
    s_barrier
    ds_read_b128 v[16:19], v11
    s_waitcnt lgkmcnt(0)
    v_max3_f32 v8, v16, v17, v18
    v_max_f32 v8, v8, v19
    v_mul_f32 v24, {S_T1}, v8
    ''')
    for r in range(8):
        g(f'v_fma_f32 v{32+r}, v{32+r}, {S_T1}, -v24')
    for r in range(8):
        g(f'v_exp_f32 v{32+r}, v{32+r}')
    for r in range(4):
        g(f'v_cvt_pk_bf16_f32 v{16+r}, v{32+2*r}, v{33+2*r}')
    g(f'''
    ds_write_b128 v12, v[16:19]
    v_pk_add_f32 v[32:33], v[32:33], v[34:35]
    v_pk_add_f32 v[36:37], v[36:37], v[38:39]
    v_pk_add_f32 v[32:33], v[32:33], v[36:37]
    v_add_f32 v8, v32, v33
    v_add_f32 v9, v32, v33
    s_nop 1
    v_permlane16_swap_b32 v8, v9
    v_add_f32 v15, v8, v9
    v_add_f32 v8, v8, v9
    s_nop 1
    v_permlane32_swap_b32 v8, v15
    v_add_f32 v8, v8, v15
    ds_write_b32 v10, v8 offset:256
    s_waitcnt lgkmcnt(0)
    s_barrier
    ''')
    g.stamp(6)
    n1 = o.get('n1', 6)
    n2 = o.get('n2', 3)
    rest = 36 - 4 * (n1 + n2)
    assert rest >= 0 and rest % 4 == 0
    n3 = rest // 4

    def w2_batch(first_sgpr, n, vsrc):
        for u in range(n):
            if u % 4 == 0:
                g(f's_lshl_b32 {S_T4}, {first_sgpr}, 10')
                g(f's_add_u32 m0, {S_T4}, {LY_WOA + (u>>2)*4096}')
                g(f's_mul_i32 {S_OFF}, {S_Y}, 36864')
                g(f's_add_u32 {S_OFF}, {S_OFF}, m0')
            g(f'buffer_load_dwordx4 v{vsrc+u}, {SRD_O}, {S_OFF} offen offset:{(u&3)*1024} {NT("wnt", 1)} lds')
    if n2 + n3:
        g(f's_mul_i32 {S_T5}, {S_WAVE}, {n2 + n3}')
        g(f's_add_u32 {S_T5}, {S_T5}, {4*n1}')
        omega_src(g, 40, n2 + n3, S_T5)
        w2_batch(S_T5, n2, 40)
        g(f's_add_u32 {S_T5}, {S_T5}, {n2}')
    no = o.get('no', 0)
    if no:
        assert n3 == 0
        g(f's_lshl_b32 {S_T0}, {S_WAVE}, 2')
        omega_src(g, 24, 4, S_T0)
        g(f"""
        s_lshl_b32 {S_T0}, {S_WAVE}, 12
        s_add_u32 m0, {S_T0}, {LY_WOB}
        s_mul_i32 {S_OFF}, {S_PH}, 36864
        s_add_u32 {S_OFF}, {S_OFF}, {S_T0}
        """)
        for u in range(4):
            if u == no:
                g('s_barrier')
            g(f'buffer_load_dwordx4 v{24+u}, {SRD_W1}, {S_OFF} offen offset:{u*1024} {NT("wnt", 1)} lds')
        if no == 4:
            g('s_barrier')
        g('s_branch L_Y_b5b')
    else:
        g('s_barrier')
        w2_batch(S_T5, n3, 40 + n2)
        g('s_branch L_Y_b5')
    g('L_Y_nqk:')
    g(f"""
    s_sub_u32 {S_T5}, {S_WAVE}, 4
    s_mul_i32 {S_T5}, {S_T5}, {n1}
    """)

    def pv_setup():
        if n1:
            omega_src(g, 24, n1, S_T5)
        g(f"""
        v_lshrrev_b32 v8, 2, v0
        v_mul_u32_u24 v8, 1056, v8
        v_and_b32 v9, 3, v0
        v_lshl_add_u32 v8, v9, 3, v8
        s_lshl_b32 {S_T0}, {S_WAVE}, 8
        s_sub_u32 {S_T0}, {S_T0}, 1024
        v_add_u32 v4, {S_T0}, v8
        v_add_u32 v5, 67584, v4
        v_add_u32 v12, {LY_P}, v1
        v_lshlrev_b32 v8, 4, v3
        v_lshl_add_u32 v13, v2, 18, v8
        s_lshl_b32 {S_T0}, {S_HG}, 20
        s_lshl_b32 {S_T3}, {S_WAVE}, 14
        s_add_u32 {S_T0}, {S_T0}, {S_T3}
        s_lshl_b32 {S_T3}, {S_SPLIT}, 8
        s_add_u32 {S_T0}, {S_T0}, {S_T3}
        s_add_u32 {S_T0}, {S_T0}, {WS_H3 - 4*16384}
        s_add_u32 {S_T1}, {S_T0}, 0x10000
        s_add_u32 {S_T2}, {S_T0}, 0x20000
        s_add_u32 {S_T3}, {S_T0}, 0x30000
        """)
    pv_setup()

    def vreads(t, c0, c1, s0=0, s1=4):
        for ct in range(c0, c1):
            for s in range(s0, s1):
                g(f'ds_read_b64_tr_b16 {R(40+16*ct+4*s+2*t,2)}, v{4+t} offset:{s*16896 + ct*32}')
    g(f"""
    s_lshl2_add_u32 {S_T4}, {S_HG}, {S_WAVE}
    s_lshl3_add_u32 {S_KEEP}, {S_B}, {S_T4}
    s_lshl_b32 {S_KEEP}, {S_KEEP}, 12
    s_add_u32 {S_KEEP}, {S_KEEP}, {WS_H2 - 16384}
    s_mul_i32 {S_OFF}, {S_WAVE}, 4224
    s_add_u32 {S_OFF}, {S_OFF}, {LY_Q - 4*4224}
    v_add_u32 v14, {S_OFF}, v1
    s_barrier
    s_barrier
    """)
    HR = [16, 20, 32, 36]

    def h2_loads():
        for u in range(4):
            g(f'buffer_load_dwordx4 {R(HR[u])}, v1, {SRD_WS}, {S_KEEP} offen offset:{u*1024} sc1')
    v0a = o.get('v0a', 0)
    v0s = o.get('v0s', 4)
    v0p = 0
    assert v0s * 16896 >= 4096 * n1
    vreads(0, 0, 8, 0, v0a)
    g('s_barrier')
    g.stamp(4)
    h2_loads()
    yw = o.get('yw', 0)
    if yw:
        g(f"""
        s_mul_i32 {S_T4}, {S_PH}, 36864
        s_mul_i32 {S_OFF}, {S_WAVE}, {yw*128}
        s_add_u32 {S_T4}, {S_T4}, {S_OFF}
        s_add_u32 {S_T4}, {S_T4}, {36864 - 8*yw*128}
        v_lshlrev_b32 v8, 7, v0
        {lanes(yw) if yw < 64 else ''}
        buffer_load_dword v15, v8, {SRD_W1}, {S_T4} offen
        s_mov_b64 exec, -1
        """)
    vreads(0, 0, 8, v0a, v0s)
    lp = g.lab('h2')
    if yw:
        for u in range(4):
            g(f's_waitcnt vmcnt({4-u})')
            for r in range(4):
                g(f'v_xor_b32 v{HR[u]+r}, {S_TAG2}, v{HR[u]+r}')
            g(f'ds_write_b128 v14, {R(HR[u])} offset:{u*1056}')
            or_chain(g, 8, range(HR[u], HR[u] + 4), u == 0)
        g(f's_branch {lp}_chk')
    else:
        g(f's_branch {lp}_in')
    g(f'{lp}:')
    h2_loads()
    spin_check(g)
    g(f'{lp}_in:')
    for u in range(4):
        g(f's_waitcnt vmcnt({3-u})')
        for r in range(4):
            g(f'v_xor_b32 v{HR[u]+r}, {S_TAG2}, v{HR[u]+r}')
        g(f'ds_write_b128 v14, {R(HR[u])} offset:{u*1056}')
        or_chain(g, 8, range(HR[u], HR[u] + 4), u == 0)
    g(f"""
    {lp}_chk:
    v_and_b32 v8, 0x10001, v8
    v_cmp_ne_u32 vcc, 0, v8
    s_waitcnt lgkmcnt(0)
    s_nop 0
    s_cbranch_vccnz {lp}
    """)
    if v0p == 1:
        vreads(0, 0, 8, 0, v0s)
        g('s_waitcnt lgkmcnt(0)')
    g.stamp(5)
    g('s_barrier')
    g.stamp(3)
    assert n1 <= 8
    vs = o.get('vs', 2)
    n1a = o.get('n1a', n1)
    w2_batch(S_T5, n1a, 24)
    vreads(0, 0, 8, v0s, 4)
    vreads(1, 0, vs)
    g('s_barrier')
    if n1a < n1:
        g(f's_add_u32 {S_T5}, {S_T5}, {n1a}')
        w2_batch(S_T5, n1 - n1a, 24 + n1a)
    vreads(1, vs, 8)
    g('s_waitcnt lgkmcnt(0)')
    g('s_setprio 2')
    g('s_barrier')
    PR = 16
    for s in range(4):
        g(f'ds_read_b128 {R(PR+4*s)}, v12 offset:{s*1024}')

    def accreg(u):
        return 32 if u == 0 else 40 + 32 * (u - 1)
    PK = 56

    def pack(u):
        a = accreg(u)
        return [f'v_cvt_pk_bf16_f32 v{PK+4*r+u}, v{a+r}, v{a+4+r}' for r in range(4)] + \
               [f'v_bfi_b32 v{PK+4*r+u}, {S_MASK2}, v{PK+4*r+u}, v6' for r in range(4)]
    pend = []
    for u in range(4):
        a = accreg(u)
        n = 0
        for s in range(4):
            if u == 0:
                g(f's_waitcnt lgkmcnt({3-s})')
            for t in range(2):
                ct = 2 * u + t
                c = '0' if s == 0 else R(a + 4 * t)
                g(f'{MF} {R(a+4*t)}, {R(PR+4*s)}, {R(40+16*ct+4*s)}, {c}')
                n += 1
                if u >= 2 and pend:
                    g(pend.pop(0))
        if u >= 1:
            pend += pack(u - 1)
    for e in pend:
        g(e)
    a = accreg(3)
    for r, sr in enumerate((S_T0, S_T1, S_T2, S_T3)):
        g(f'v_cvt_pk_bf16_f32 v{PK+4*r+3}, v{a+r}, v{a+4+r}')
        g(f'v_bfi_b32 v{PK+4*r+3}, {S_MASK2}, v{PK+4*r+3}, v6')
        g(f'buffer_store_dwordx4 {R(PK+4*r)}, v13, {SRD_WS}, {sr} offen sc1')
    g('s_setprio 0')
    g.stamp(7)
    g(f's_waitcnt vmcnt({o.get("swait", 4)})')
    g('s_barrier')
    g('s_branch L_Y_b5')
    g('L_Y_w8:')
    if o.get('yt', 0):
        g(f"""
        s_load_dwordx2 s[32:33], s[0:1], 56
        s_mov_b32 s34, {576*9216}
        s_mov_b32 s35, s11
        s_and_b32 {S_T0}, s2, 31
        s_mul_i32 {S_CG}, {S_T0}, 43
        s_lshr_b32 {S_CG}, {S_CG}, 7
        s_mul_i32 {S_RS}, {S_CG}, 3
        s_sub_u32 {S_RS}, {S_T0}, {S_RS}
        s_bfe_u32 {S_J}, s2, 0x20005
        s_add_u32 {S_T1}, s2, {S_J}
        s_add_u32 {S_T1}, {S_T1}, {r3}
        s_and_b32 {S_T1}, {S_T1}, 3
        s_lshl2_add_u32 {S_CG}, {S_CG}, {S_T1}
        s_mul_i32 {S_RS}, {S_RS}, {192*9216}
        s_lshl_b32 {S_CG}, {S_CG}, 8
        s_add_u32 {S_RS}, {S_RS}, {S_CG}
        s_add_u32 {S_RS}, {S_RS}, {160*9216}
        s_cmp_lt_u32 {S_T0}, 27
        s_cselect_b32 {S_RS}, {S_RS}, -1
        """)
        if o.get('ytc', 0):
            g(f's_cmp_eq_u32 {S_T1}, 1')
            g(f's_cselect_b32 {S_RS}, {S_RS}, -1')
        g(f"""
        v_lshrrev_b32 v8, 1, v0
        v_mul_u32_u24 v8, 9216, v8
        v_and_b32 v9, 1, v0
        v_lshl_add_u32 v28, v9, 7, v8
        s_waitcnt lgkmcnt(0)
        """)
    g(f"""
    v_add_u32 v11, {LY_MX}, v1
    s_lshl_b32 {S_T0}, {S_HG}, 6
    s_add_u32 {S_T0}, {S_T0}, {S_SPLIT}
    s_lshl_b32 {S_T0}, {S_T0}, {9 if o.get('mlu', 1) else 8}
    s_add_u32 {S_T0}, {S_T0}, {WS_M}
    s_and_b32 {S_T1}, {S_SPLIT}, 12
    v_add_u32 v8, {S_T1}, v0
    v_bfe_u32 v8, v8, 2, 2
    v_and_b32 v9, 3, v0
    v_lshlrev_b32 v9, 4, v9
    v_lshl_add_u32 v13, v8, 7, v9
    s_mov_b32 {S_T1}, 0x{f2u(SCALE):08x}
    v_mov_b32 v22, v6
    v_mov_b32 v23, v6
    v_lshlrev_b32 v7, 7, v0
    s_lshl_b32 {S_T3}, {S_HG}, 13
    s_add_u32 {S_T3}, {S_T3}, {WS_F2}
    s_setprio 3
    """)
    if tlb & 4:
        page_touch()
    if tlb & 8:
        g(f"""
        s_mul_i32 {S_T4}, {S_Y}, 36864
        s_mul_i32 {S_T5}, {S_PH}, 36864
        s_lshl_b32 {S_T2}, {S_Y}, 6
        s_mov_b64 exec, 1
        buffer_load_dword v46, v1, {SRD_O}, {S_T4} offen
        buffer_load_dword v46, v1, {SRD_W1}, {S_T5} offen
        buffer_load_dword v46, v1, {SRD_C}, {S_T2} offen
        s_mov_b64 exec, -1
        """)
    g('s_barrier')
    g.stamp(14)
    g('s_barrier')
    g('s_barrier')
    g('s_barrier')
    if o.get('yt', 0):
        g(f"""
        s_cmp_lt_u32 {S_RS}, 0x10000000
        s_cbranch_scc0 L_Y_nyt
        """)
        for k in range(o['yt'] // 32):
            g(f'buffer_load_dword v30, v28, {SRD_B2}, {S_RS} offen')
            g(f's_sub_u32 {S_RS}, {S_RS}, {32*9216}')
        g('L_Y_nyt:')
    g('s_mov_b64 exec, 0xffff')
    g('s_barrier')
    g(f"""
    ds_read_b128 v[16:19], v11
    s_waitcnt lgkmcnt(0)
    v_max3_f32 v8, v16, v17, v18
    v_max_f32 v8, v8, v19
    v_mul_f32 v20, {S_T1}, v8
    s_barrier
    ds_read_b128 v[16:19], v11 offset:256
    s_waitcnt lgkmcnt(0)
    v_add_f32 v16, v16, v17
    v_add_f32 v18, v18, v19
    v_add_f32 v21, v16, v18
    buffer_store_dwordx4 v[20:23], v{13 if o.get('mlu', 1) else 1}, {SRD_WS}, {S_T0} offen sc1
    s_mov_b64 exec, -1
    s_setprio 0
    """)
    g.stamp(13)
    g('s_barrier')
    g('L_Y_b5:')
    GW = o.get('gw', 7)
    g(f"""
    s_cmp_eq_u32 {S_WAVE}, {GW}
    s_cbranch_scc0 L_Y_nh
    """)
    bias_prep(g, S_Y, 63)
    g(f"""
    s_mov_b32 exec_hi, 0xffff
    buffer_load_dwordx4 v[16:19], v1, {SRD_WS}, {S_T1} offen sc1
    s_mov_b32 exec_hi, -1
    L_Y_nh:
    """)
    if o.get('pt3', 0):
        g(f"""
        s_cmp_eq_u32 {S_WAVE}, {GW+1}
        s_cbranch_scc0 L_Y_npt
        s_lshl_b32 {S_T2}, {S_CU}, 10
        s_add_u32 {S_T2}, {S_T2}, {WS_H3P}
        buffer_load_dwordx4 v[16:19], v1, {SRD_WS}, {S_T2} offen sc1
        L_Y_npt:
        """)
    g(f's_lshl_b32 {S_T0}, {S_WAVE}, 2')
    omega_src(g, 24, 4, S_T0)
    g(f"""
    s_lshl_b32 {S_T0}, {S_WAVE}, 12
    s_add_u32 m0, {S_T0}, {LY_WOB}
    s_mul_i32 {S_OFF}, {S_PH}, 36864
    s_add_u32 {S_OFF}, {S_OFF}, {S_T0}
    """)
    for u in range(4):
        if u < o.get('skipw', 0):
            g(f'v_mov_b32 v{24+u}, 0x7fff0000')
        g(f'buffer_load_dwordx4 v{24+u}, {SRD_W1}, {S_OFF} offen offset:{u*1024} {NT("wnt", 1)} lds')
    g('L_Y_b5b:')
    g.stamp(8)
    omega_addr(g, 56)
    act_addr(g, 61, LY_ACT)
    h4_soff(g, S_Y)
    gather32_ldsaddr(g, 60, LY_ACT, 64)
    g(f"""
    v_lshlrev_b32 v62, 2, v0
    {'v_lshl_add_u32 v62, v2, 6, v62' if H4U else ''}
    s_lshl_b32 {S_T2}, {S_CU}, 10
    s_add_u32 {S_T2}, {S_T2}, {WS_H3P}
    s_mov_b32 s98, 0xffff0000
    s_mov_b32 s99, 0xffff0000
    s_mov_b32 s48, 0
    s_mov_b32 s49, -1
    s_cmp_eq_u32 {S_WAVE}, {GW}
    s_cbranch_scc0 L_Y_nh2
    s_waitcnt vmcnt(4)
    s_mov_b32 exec_lo, 0
    s_mov_b32 exec_hi, 0xffff0000
    """)
    bias_unpack(g)
    g('s_mov_b32 exec_lo, -1')
    gather32(g, 1, S_T1, 60, act=True, stamp=10, have=True)
    g(f"""
    L_Y_nh2:
    s_cmp_eq_u32 {S_WAVE}, {GW+1}
    s_cbranch_scc1 L_Y_ctx
    s_waitcnt vmcnt(0) lgkmcnt(0)
    """)

    def block_a():
        g.stamp(9)
        g('s_barrier')
        g('ds_read_b128 v[20:23], v61')
        omega_reads(g, 56, 80, LY_WOA)
        omega_reads(g, 56, 96, LY_WOB)

    def mfma_a():
        for t in range(4):
            g(f'{MF} {R(36+4*t)}, {R(20)}, {R(80+4*t)}, 0')
    block_a()
    g('s_waitcnt lgkmcnt(8)')
    g.stwait()
    mfma_a()
    g(f"""
    s_branch L_Y_c
    L_Y_ctx:
    s_setprio 2
    s_waitcnt vmcnt({o.get('cw', 1)})
    """)

    def pre():
        g('s_waitcnt vmcnt(1)')
        block_a()
        g('s_waitcnt lgkmcnt(8)')
        g.stwait()
        mfma_a()
    gather32(g, 1, S_T2, 60, lds_off=128, stamp=11, dual=True, pre=pre)
    g(f"""
    L_Y_c:
    s_waitcnt lgkmcnt(0)
    s_barrier
    ds_read_b128 v[24:27], v61 offset:128
    s_waitcnt lgkmcnt(0)
    """)
    for t in range(4):
        g(f'{MF} {R(36+4*t)}, {R(24)}, {R(96+4*t)}, {R(36+4*t)}')
    g(f"""
    s_nop 5
    v_cndmask_b32 v36, v36, v40, {S_CMP}
    v_cndmask_b32 v37, v37, v41, {S_CMP}
    v_cndmask_b32 v44, v44, v48, {S_CMP}
    v_cndmask_b32 v45, v45, v49, {S_CMP}
    v_cndmask_b32 v36, v36, v44, {S_EXC}
    v_cndmask_b32 v37, v37, v45, {S_EXC}
    v_add_u32 v36, 0x8000, v36
    v_add_u32 v37, 0x8000, v37
    v_cvt_pk_bf16_f32 v36, v36, v37
    v_bfi_b32 v36, {S_MASK2}, v36, v6
    buffer_store_dword v36, v62, {SRD_WS}, {S_T3} offen sc1
    """)
    g.stamp(12)
    g('L_END:')
    if stamps:
        g.stamp(15)
        g(f'''
        s_sleep 127
        s_sleep 127
        s_mov_b64 exec, 1
        s_mul_i32 {S_T0}, s2, 9
        s_add_u32 {S_T0}, {S_T0}, {S_WAVE}
        s_lshl_b32 {S_T0}, {S_T0}, 6
        s_add_u32 {S_T0}, {S_T0}, {WS_ST}
        v_mov_b32 v8, 0
        s_waitcnt lgkmcnt(0)
        ''')
        for k in range(16):
            g(f'v_mov_b32 v9, s{64+2*k}')
            g(f'buffer_store_dword v9, v8, {SRD_WS}, {S_T0} offen offset:{4*k}')
    g('L_EXIT:')
    g('s_endpgm')
    g.L.append('.fill 1200, 4, 0xbf810000')
    g.L.append('.section .rodata,"a"')
    g.L.append('.p2align 6')
    g.L.append(f'.amdhsa_kernel {NAME}_kernel')
    g.L.append('  .amdhsa_next_free_vgpr 168')
    g.L.append('  .amdhsa_next_free_sgpr 102')
    g.L.append('  .amdhsa_accum_offset 168')
    g.L.append('  .amdhsa_group_segment_fixed_size 0')
    g.L.append('  .amdhsa_kernarg_size 112')
    g.L.append('  .amdhsa_user_sgpr_count 2')
    g.L.append('  .amdhsa_user_sgpr_kernarg_segment_ptr 1')
    g.L.append('  .amdhsa_system_sgpr_workgroup_id_x 1')
    g.L.append('.end_amdhsa_kernel')
    return g.text()


def parse_opts(args):
    o = {}
    for a in args:
        if '=' in a:
            k, v = a.split('=')
            o[k] = v if k in ('yp', 'xp', 'op') else int(v)
    return o


if __name__ == '__main__':
    out = sys.argv[1]
    stamps = 'stamps' in sys.argv[2:]
    nt = '' if 'nont' in sys.argv[2:] else 'nt'
    open(out, 'w').write(gen(stamps, nt, parse_opts(sys.argv[2:])))
```
